```python
import torch

def _softmax(x, axis=-1):
    return torch.softmax(x, dim=axis)
def _gelu(x):
    return torch.nn.functional.gelu(x, approximate="tanh")
def _silu(x):
    return torch.nn.functional.silu(x)
def _sigmoid(x):
    return torch.sigmoid(x)
def _layernorm(x, axis=-1, eps=1e-5):
    m = x.mean(dim=axis, keepdim=True)
    v = x.var(dim=axis, keepdim=True, unbiased=False)
    return (x - m) / torch.sqrt(v + eps)
def _scatter_add(tgt, idx, src, axis=0):
    return tgt.clone().index_add_(axis, idx, src)
def _segment_sum(src, seg, n):
    out = torch.zeros((n,) + src.shape[1:], dtype=src.dtype)
    return out.index_add_(0, seg, src)
def _pad(x, pw):
    flat = tuple(v for pair in reversed(pw) for v in pair)
    return torch.nn.functional.pad(x, flat)

kernel_name = 'standalone__kernel_systems_refs_featgraph__graph'

def setup_inputs():

    _w = (lambda a: (lambda t: t.to(torch.bfloat16) if t.is_floating_point() else t)(torch.as_tensor(a)))
    N, deg, D = 12500, 32, 128
    E = N * deg
    scale = D ** -0.5
    src = (lambda lo, hi, *s: torch.randint(lo, hi, s))(0, N, E).to(torch.int64)
    dst = (lambda lo, hi, *s: torch.randint(lo, hi, s))(0, N, E).to(torch.int64)
    return {
        "x": _w((lambda *s: torch.randn(*s, dtype=torch.bfloat16) * 0.8)(N, D)),
        "src": _w(src),
        "dst": _w(dst),
        "w_q": _w((lambda *s: torch.randn(*s, dtype=torch.bfloat16) * 0.8)(D, D) * scale),
        "w_v": _w((lambda *s: torch.randn(*s, dtype=torch.bfloat16) * 0.05)(D, D) * scale),
    }

def reference(x, src, dst, w_q, w_v):
    N, D = x.shape
    xs = x[src]
    xd = x[dst]
    q = xd @ w_q
    logits = torch.einsum('ed,ed->e', xs, q) * (float(D) ** -0.5)
    alpha = _sigmoid(logits)
    msg = alpha[:, None] * (xs @ w_v)
    return _segment_sum(msg, dst, N)
```

```python
import sys, argparse

KN = "standalone__kernel_systems_refs_featgraph__graph"
N, E, D = 12500, 400000, 128
NB, NPB = 250, 50
NC, CE = 125, 3200
CAP = 32
CELLS_BYTES = NB * NC * 128
WS_OVF = 4 << 20
WS_OVFCNT = 6 << 20
WS_STAMP = 8 << 20
PADMARK = 0x40000000

class G:
    def __init__(self):
        self.L = []
        self.uid = 0
    def __call__(self, s=""):
        for ln in s.split("\n"):
            ln = ln.strip()
            if not ln: continue
            if ln.endswith(":") or ln.startswith("."): self.L.append(ln)
            else: self.L.append("    " + ln)
    def lab(self, p="L"):
        self.uid += 1
        return f"{p}_{self.uid}"
    def text(self): return "\n".join(self.L) + "\n"

def vr(a, n=1): return f"v{a}" if n == 1 else f"v[{a}:{a+n-1}]"
def sr(a, n=1): return f"s{a}" if n == 1 else f"s[{a}:{a+n-1}]"

def srd(g, d, lo, hi, nbytes):
    g(f"s_mov_b32 s{d}, {lo}\ns_mov_b32 s{d+1}, {hi}\ns_mov_b32 s{d+2}, {nbytes}\ns_mov_b32 s{d+3}, 0x20000")

def kd(name, vg, sg):
    acc = (vg + 3) // 4 * 4
    return f""".amdhsa_kernel {name}
  .amdhsa_next_free_vgpr {vg}
  .amdhsa_next_free_sgpr {sg}
  .amdhsa_accum_offset {acc}
  .amdhsa_group_segment_fixed_size 0
  .amdhsa_kernarg_size 64
  .amdhsa_user_sgpr_count 2
  .amdhsa_user_sgpr_kernarg_segment_ptr 1
  .amdhsa_system_sgpr_workgroup_id_x 1
.end_amdhsa_kernel
"""

ST0 = 80
def stamp(g, o, i):
    if o.stamps:
        g(f"s_memrealtime s[{ST0+2*i}:{ST0+2*i+1}]\ns_waitcnt lgkmcnt(0)")
def stamp_out(g, o, ws_lo, ws_hi, slot_base, nst=8):
    if not o.stamps: return
    l = g.lab("st")
    g(f"""v_cmp_eq_u32 vcc, 0, v0
    s_and_saveexec_b64 s[76:77], vcc
    s_cbranch_execz {l}
    s_add_u32 s72, s{ws_lo}, {WS_STAMP + slot_base}
    s_addc_u32 s73, s{ws_hi}, 0
    s_mul_i32 s74, s2, {8*nst}
    v_mov_b32 v1, s74""")
    for i in range(nst):
        g(f"v_mov_b32 v2, s{ST0+2*i}\nv_mov_b32 v3, s{ST0+2*i+1}\nglobal_store_dwordx2 v1, v[2:3], s[72:73] offset:{8*i}\ns_nop 1")
    g(f"s_waitcnt vmcnt(0)\n{l}:\ns_mov_b64 exec, -1")

def gen_k1(g, o):
    IMG, CNT, OVN = 0, 32768, 33792
    nwg = o.k1_wgs
    g(f""".p2align 8
.globl k1_kernel
.type k1_kernel,@function
k1_kernel:
    s_cmp_ge_u32 s2, {nwg}
    s_cbranch_scc1 k1_end
    s_load_dwordx2 s[4:5], s[0:1], 0
    s_load_dwordx4 s[8:11], s[0:1], 8
    s_load_dwordx2 s[6:7], s[0:1], 56""")
    if o.stamps:
        for i in range(8): g(f"s_mov_b64 s[{ST0+2*i}:{ST0+2*i+1}], 0")
    stamp(g, o, 0)
    g("""v_lshlrev_b32 v1, 4, v0
    v_mov_b32 v4, 0
    v_mov_b32 v5, 0
    v_mov_b32 v6, 0
    v_mov_b32 v7, 0
    s_waitcnt lgkmcnt(0)""")
    srd(g, 12, "s8", "s9", E * 4)
    srd(g, 16, "s10", "s11", E * 4)
    srd(g, 20, "s4", "s5", N * 256)
    srd(g, 24, "s6", "s7", CELLS_BYTES)
    g(f"""s_add_u32 s28, s6, {WS_OVF}
    s_addc_u32 s29, s7, 0
    s_mov_b32 s30, {(WS_OVFCNT - WS_OVF) + 4096}
    s_mov_b32 s31, 0x20000
    s_mul_i32 s32, s2, {CE*4}
    s_cmp_ge_u32 s2, {NC}
    s_cbranch_scc1 k1_pf_only
    v_cmp_gt_u32 vcc, {CE//4}, v0
    s_and_saveexec_b64 s[34:35], vcc
    s_cbranch_execz k1_noload
    buffer_load_dwordx4 v[8:11], v1, s[16:19], s32 offen
    buffer_load_dwordx4 v[12:15], v1, s[12:15], s32 offen
k1_noload:
    s_mov_b64 exec, -1""")
    def prefetch():
        if not o.pf: return
        nsl = o.pf_slices; sl = (N * 256 + nsl - 1) // nsl; sl = (sl + 127) // 128 * 128
        g(f"""s_lshr_b32 s33, s2, 3
        s_min_u32 s33, s33, {nsl-1}
        s_mul_i32 s33, s33, {sl}
        v_lshlrev_b32 v2, {o.pf_shift}, v0""")
        step = 1024 << o.pf_shift
        k = 0
        while k * step < sl:
            rem = sl - k * step
            if rem < step:
                l = g.lab("pf")
                g(f"""v_cmp_gt_u32 vcc, {rem >> o.pf_shift}, v0
                s_and_saveexec_b64 s[36:37], vcc
                s_cbranch_execz {l}
                buffer_load_dword v31, v2, s[20:23], s33 offen
                {l}:
                s_mov_b64 exec, -1""")
            else:
                g("buffer_load_dword v31, v2, s[20:23], s33 offen")
                g(f"s_add_u32 s33, s33, {step}")
            k += 1
    g(f"""ds_write_b128 v1, v[4:7]
    ds_write_b128 v1, v[4:7] offset:16384
    v_cmp_gt_u32 vcc, 65, v0
    s_and_saveexec_b64 s[36:37], vcc
    ds_write_b128 v1, v[4:7] offset:{CNT}
    s_mov_b64 exec, -1
    v_mov_b32 v16, 1
    s_movk_i32 s38, -200
    s_mov_b32 s39, 0x80000000
    s_waitcnt lgkmcnt(0)
    s_barrier
    s_mov_b64 exec, s[34:35]
    v_cmp_gt_u32 vcc, {CE//4}, v0
    s_and_saveexec_b64 s[34:35], vcc
    s_cbranch_execz k1_binned
    s_waitcnt vmcnt(0)""")
    stamp(g, o, 1)
    for i in range(4):
        g(f"""v_mul_u32_u24 v{20+i}, 5243, v{8+i}
        v_lshrrev_b32 v{20+i}, 18, v{20+i}
        v_lshlrev_b32 v{28+i}, 2, v{20+i}
        ds_add_rtn_u32 v{24+i}, v{28+i}, v16 offset:{CNT}""")
    for i in range(4):
        g(f"""v_lshlrev_b32 v{8+i}, 2, v{8+i}
        v_mad_i32_i24 v{8+i}, v{20+i}, s38, v{8+i}
        v_lshl_or_b32 v{12+i}, v{12+i}, 8, v{8+i}
        v_or_b32 v{12+i}, s39, v{12+i}
        v_lshlrev_b32 v{28+i}, 7, v{20+i}""")
    g("s_waitcnt lgkmcnt(0)")
    for i in range(4):
        g(f"v_lshl_add_u32 v{28+i}, v{24+i}, 2, v{28+i}")
    g(f"""v_max3_u32 v17, v24, v25, v26
    v_max_u32 v17, v17, v27
    v_cmp_le_u32 vcc, {CAP}, v17
    s_cbranch_vccnz k1_slow""")
    for i in range(4):
        g(f"ds_write_b32 v{28+i}, v{12+i}")
    g("s_branch k1_binned")
    g("k1_slow:\ns_mov_b64 s[40:41], exec")
    g(f"v_mov_b32 v18, {OVN}")
    for i in range(4):
        l = g.lab("ov")
        g(f"""s_mov_b64 exec, s[40:41]
        v_cmp_gt_u32 vcc, {CAP}, v{24+i}
        s_and_b64 exec, s[40:41], vcc
        ds_write_b32 v{28+i}, v{12+i}
        s_andn2_b64 exec, s[40:41], vcc
        s_cbranch_execz {l}
        ds_add_rtn_u32 v17, v18, v16
        v_lshl_or_b32 v19, v{20+i}, 22, v{12+i}
        s_waitcnt lgkmcnt(0)
        v_lshlrev_b32 v17, 2, v17
        buffer_store_dword v19, v17, s[28:31], s32 offen
        {l}:""")
    g(f"""s_waitcnt vmcnt(0)
k1_binned:
    s_mov_b64 exec, -1
    s_waitcnt lgkmcnt(0)
    s_barrier""")
    stamp(g, o, 2)
    prefetch()
    g(f"""v_mov_b32 v18, {OVN}
    ds_read_b32 v17, v18
    ds_read_b128 v[8:11], v1
    ds_read_b128 v[12:15], v1 offset:16384
    v_lshrrev_b32 v2, 3, v0
    s_movk_i32 s38, 16000
    v_mul_lo_u32 v2, v2, s38
    v_and_b32 v3, 7, v0
    v_lshl_add_u32 v2, v3, 4, v2
    s_lshl_b32 s33, s2, 7
    s_add_u32 s36, s33, {128*16000}
    s_waitcnt lgkmcnt(2)
    v_readfirstlane_b32 s37, v17
    s_cmp_lg_u32 s37, 0
    s_cbranch_scc1 k1_flag
k1_copy:
    s_waitcnt lgkmcnt(0)
    buffer_store_dwordx4 v[8:11], v2, s[24:27], s33 offen
    buffer_store_dwordx4 v[12:15], v2, s[24:27], s36 offen""")
    stamp(g, o, 3)
    if o.stamps:
        g("s_waitcnt vmcnt(0)")
        stamp(g, o, 4)
        stamp_out(g, o, 6, 7, 65536)
    g("s_endpgm")
    g(f"""k1_flag:
    s_waitcnt lgkmcnt(0)
    s_barrier
    v_cmp_gt_u32 vcc, {NB}, v0
    s_and_saveexec_b64 s[40:41], vcc
    v_lshlrev_b32 v18, 2, v0
    ds_read_b32 v19, v18 offset:{CNT}
    v_lshlrev_b32 v18, 7, v0
    v_mov_b32 v20, 2
    s_waitcnt lgkmcnt(0)
    v_cmp_lt_u32 vcc, {CAP}, v19
    s_and_b64 exec, exec, vcc
    ds_or_b32 v18, v20
    s_mov_b64 exec, -1
    s_lshl_b32 s38, s2, 2
    s_add_u32 s38, s38, {WS_OVFCNT - WS_OVF}
    v_mov_b32 v18, 0
    buffer_store_dword v17, v18, s[28:31], s38 offen
    s_waitcnt vmcnt(0) lgkmcnt(0)
    s_barrier
    ds_read_b128 v[8:11], v1
    ds_read_b128 v[12:15], v1 offset:16384
    s_branch k1_copy
k1_pf_only:""")
    prefetch()
    if o.stamps:
        g("s_waitcnt vmcnt(0)")
        stamp(g, o, 4)
        stamp_out(g, o, 6, 7, 65536)
    g("k1_end:\ns_endpgm")
    return 33792 + 64, 32, 96

WQ, WV = 0, 32768
QT = 65536
LIST = QT + 17408
GN = LIST + 17408
CNT2 = GN + 4368
OVM = CNT2 + 256
AGG = OVM + 16
LDS2 = AGG + 64 * 544
assert GN % 16 == 0 and AGG % 16 == 0 and AGG + 50 * 544 - GN <= 32768

def gen_k2(g, o):
    S_X, S_CELL, S_WQ, S_WV, S_OUT, S_OVF = 12, 16, 20, 24, 28, 32
    sW, sG, sB, sEnd, sRem, sFl, sN, sRound = 36, 37, 38, 39, 40, 42, 44, 45
    sM = 46
    sVal = 54
    sRet = 62
    sSc = 64
    sT = 65
    sMap = 66
    X = [8, 24]
    A = 40
    Ee = 56
    CN = [60, 62]
    AL = 64
    AC = 68
    AP = 76
    AN = 80
    vLP, vM0, vM1, vFL, vLA, vGA, vQ, vT0, vT1 = 88, 89, 90, 91, 92, 93, 94, 95, 96
    TT = 98
    vLPQ = 97
    vOne = 104
    NV = 106
    g(f""".p2align 8
.globl k2_kernel
.type k2_kernel,@function
k2_kernel:
    s_cmp_ge_u32 s2, {NB}
    s_cbranch_scc1 k2_end
    s_load_dwordx2 s[4:5], s[0:1], 0
    s_load_dwordx4 s[8:11], s[0:1], 24
    s_load_dwordx2 s[6:7], s[0:1], 40
    s_load_dwordx2 s[70:71], s[0:1], 56""")
    if o.stamps:
        for i in range(8): g(f"s_mov_b64 s[{ST0+2*i}:{ST0+2*i+1}], 0")
    stamp(g, o, 0)
    g(f"""v_lshlrev_b32 v1, 4, v0
    v_lshrrev_b32 v2, 6, v0
    v_and_b32 v0, 63, v0
    v_readfirstlane_b32 s{sW}, v2
    s_mul_i32 s{sT}, s2, 16000
    s_mul_i32 s{sN}, s2, {NPB*256}
    s_waitcnt lgkmcnt(0)
    s_add_u32 s{S_CELL}, s70, s{sT}
    s_addc_u32 s{S_CELL+1}, s71, 0
    s_mov_b32 s{S_CELL+2}, 16000
    s_mov_b32 s{S_CELL+3}, 0x20000
    buffer_load_dwordx4 v[4:7], v1, s[{S_CELL}:{S_CELL+3}], 0 offen""")
    srd(g, S_X, "s4", "s5", N * 256)
    srd(g, S_WQ, "s8", "s9", 32768)
    srd(g, S_WV, "s10", "s11", 32768)
    g(f"""s_add_u32 s{S_OUT}, s6, s{sN}
    s_addc_u32 s{S_OUT+1}, s7, 0
    s_mov_b32 s{S_OUT+2}, {NPB*256}
    s_mov_b32 s{S_OUT+3}, 0x20000""")
    g(f"""v_and_b32 v2, 15, v0
    v_lshrrev_b32 v3, 4, v0""")
    g(f"""s_and_b32 s{sT}, s{sW}, 3
    s_lshl_b32 s{sT}, s{sT}, 12
    s_add_u32 s{sT}, s{sT}, s{sN}
    v_lshlrev_b32 v{vT0}, 8, v2
    v_lshl_add_u32 v{vT0}, v3, 4, v{vT0}""")
    for s in range(4):
        g(f"buffer_load_dwordx4 {vr(X[0]+4*s,4)}, v{vT0}, s[{S_X}:{S_X+3}], s{sT} offen offset:{64*s}")
    g(f"""v_lshlrev_b32 v{vT1}, 2, v3
    v_xor_b32 v{vT1}, v{vT1}, v2
    v_lshlrev_b32 v{vT1}, 4, v{vT1}
    v_lshl_add_u32 v{vT1}, v3, 8, v{vT1}
    s_lshl_b32 s{sT}, s{sW}, 11
    s_mov_b32 m0, s{sT}
    s_nop 0
    buffer_load_dwordx4 v{vT1}, s[{S_WQ}:{S_WQ+3}], s{sT} offen lds
    buffer_load_dwordx4 v{vT1}, s[{S_WQ}:{S_WQ+3}], s{sT} offen offset:1024 lds
    s_add_u32 s{sT+1}, s{sT}, {WV}
    s_mov_b32 m0, s{sT+1}
    s_nop 0
    buffer_load_dwordx4 v{vT1}, s[{S_WV}:{S_WV+3}], s{sT} offen lds
    buffer_load_dwordx4 v{vT1}, s[{S_WV}:{S_WV+3}], s{sT} offen offset:1024 lds""")
    g(f"""s_add_u32 s{S_OVF}, s70, {WS_OVF}
    s_addc_u32 s{S_OVF+1}, s71, 0
    s_mov_b32 s{S_OVF+2}, {(WS_OVFCNT - WS_OVF) + 4096}
    s_mov_b32 s{S_OVF+3}, 0x20000""")
    g(f"""v_add_u32 v{vQ}, {LIST}, v1
    v_mov_b32 v{AN}, 0
    v_mov_b32 v{AN+1}, 0
    v_mov_b32 v{AN+2}, 0
    v_mov_b32 v{AN+3}, 0
    v_mov_b32 v{AN+4}, {PADMARK}
    v_mov_b32 v{AN+5}, {PADMARK}
    v_mov_b32 v{AN+6}, {PADMARK}
    v_mov_b32 v{AN+7}, {PADMARK}
    ds_write_b128 v{vQ}, {vr(AN,4)} offset:{GN-LIST}
    ds_write_b128 v{vQ}, {vr(AN,4)} offset:{GN-LIST+16384}
    ds_write_b128 v{vQ}, {vr(AN+4,4)}
    s_cmp_lg_u32 s{sW}, 0
    s_cbranch_scc1 k2_i1
    ds_write_b128 v{vQ}, {vr(AN+4,4)} offset:16384
k2_i1:""")
    g(f"""v_and_b32 v{vT0}, 3, v0
    v_lshl_add_u32 v{vLP}, v3, 2, v{vT0}
    v_lshlrev_b32 v{vLP}, 4, v{vLP}
    v_add_u32 v{vLPQ}, {QT}, v{vLP}
    v_lshrrev_b32 v{vT1}, 2, v2
    v_lshlrev_b32 v{vFL}, 1, v{vLP}
    v_lshl_add_u32 v{vFL}, v{vT1}, 3, v{vFL}
    v_add_u32 v{vFL}, {AGG}, v{vFL}
    v_mov_b32 v{vM0}, 0xffff
    v_and_b32 v{vM1}, 1, v0
    v_lshlrev_b32 v{vM1}, 4, v{vM1}
    v_lshlrev_b32 v{vM1}, v{vM1}, v{vM0}
    v_cmp_gt_u32 vcc, 2, v{vT0}
    v_mov_b32 v{vOne}, 1
    s_mov_b32 s{sM}, 0x000f000f
    v_cndmask_b32 v{vM0}, 0, v{vM1}, vcc
    v_cndmask_b32 v{vM1}, v{vM1}, 0, vcc
    s_mov_b32 s{sM+1}, 0x000f000f
    s_lshl_b64 s[{sM+2}:{sM+3}], s[{sM}:{sM+1}], 4
    s_lshl_b64 s[{sM+4}:{sM+5}], s[{sM}:{sM+1}], 8
    s_lshl_b64 s[{sM+6}:{sM+7}], s[{sM}:{sM+1}], 12
    s_mov_b32 s{sSc}, 0xbe0293ee
    s_mov_b32 s{sRound}, 0
    s_waitcnt lgkmcnt(0)
    s_barrier
    s_waitcnt vmcnt(8)""")
    stamp(g, o, 1)
    g(f"""v_and_b32 v{vT0}, 2, v4
    v_cmp_ne_u32 vcc, 0, v{vT0}
    s_cbranch_vccnz k2_mark
k2_marked:""")
    for i in range(4):
        g(f"v_cmp_gt_i32 s[{sVal+2*i}:{sVal+2*i+1}], 0, v{4+i}")
    g("k2_round:")
    for i in range(4):
        g(f"v_and_b32 v{AP+i}, 0xfc, v{4+i}")
        g(f"v_add_u32 v{AN+4+i}, {CNT2}, v{AP+i}")
    for i in range(4):
        g(f"s_mov_b64 exec, s[{sVal+2*i}:{sVal+2*i+1}]\nds_add_rtn_u32 v{AN+i}, v{AN+4+i}, v{vOne}")
    g(f"""s_mov_b64 exec, -1
    v_lshlrev_b32 v{vT0}, 2, v0
    v_add_u32 v{vT0}, {CNT2}, v{vT0}
    s_waitcnt vmcnt(2) lgkmcnt(0)
    s_barrier""")
    stamp(g, o, 2)
    g(f"ds_read_b32 v{vT1}, v{vT0}")
    g(f"""s_cmp_lg_u32 s{sRound}, 0
    s_cbranch_scc1 k2_noq1
    s_lshr_b32 s{sT}, s{sW}, 2
    s_lshl_b32 s{sT}, s{sT}, 2
    v_lshrrev_b32 v{vQ}, 2, v2
    v_and_b32 v{TT}, 3, v0
    v_add_u32 v{TT}, s{sT}, v{TT}
    v_lshlrev_b32 v{TT+1}, 2, v{vQ}
    v_xor_b32 v{TT}, v{TT}, v{TT+1}
    v_lshl_add_u32 v{vQ}, v3, 3, v{vQ}
    v_lshlrev_b32 v{vQ}, 8, v{vQ}
    v_lshl_add_u32 v{vQ}, v{TT}, 4, v{vQ}""")
    for T in range(2):
        for s in range(4):
            for h in range(2):
                d = (X[1] if T == 0 else A) + 4 * s + 2 * h
                g(f"ds_read_b64_tr_b16 {vr(d,2)}, v{vQ} offset:{WQ + s*8192 + h*1024 + T*8}")
    g("s_waitcnt lgkmcnt(15)\ns_branch k2_q1d\nk2_noq1:\ns_waitcnt lgkmcnt(0)\nk2_q1d:")
    c = vT1
    g(f"""v_add_u32 v{c}, 3, v{c}
    v_and_b32 v{c}, -4, v{c}
    v_mov_b32 v{vT0}, v{c}
    s_nop 1
    v_add_u32_dpp v{vT0}, v{vT0}, v{vT0} row_shr:1 row_mask:0xf bank_mask:0xf bound_ctrl:0
    s_nop 1
    v_add_u32_dpp v{vT0}, v{vT0}, v{vT0} row_shr:2 row_mask:0xf bank_mask:0xf bound_ctrl:0
    s_nop 1
    v_add_u32_dpp v{vT0}, v{vT0}, v{vT0} row_shr:4 row_mask:0xf bank_mask:0xf bound_ctrl:0
    s_nop 1
    v_add_u32_dpp v{vT0}, v{vT0}, v{vT0} row_shr:8 row_mask:0xf bank_mask:0xf bound_ctrl:0
    s_nop 1
    v_add_u32_dpp v{vT0}, v{vT0}, v{vT0} row_bcast:15 row_mask:0xa bank_mask:0xf
    s_nop 1
    v_add_u32_dpp v{vT0}, v{vT0}, v{vT0} row_bcast:31 row_mask:0xc bank_mask:0xf
    s_nop 0
    v_readlane_b32 s{sG}, v{vT0}, 63
    v_sub_u32 v{c}, v{vT0}, v{c}""")
    for i in range(4):
        g(f"ds_bpermute_b32 v{AN+4+i}, v{AP+i}, v{c}")
    g(f"s_mov_b32 s{sT}, 0x3fff00")
    for i in range(4):
        g(f"v_and_b32 v{4+i}, s{sT}, v{4+i}")
        g(f"v_mul_u32_u24 v{AP+i}, 68, v{AP+i}")
    g("s_waitcnt lgkmcnt(0)")
    for i in range(4):
        g(f"""v_add_u32 v{AN+i}, v{AN+i}, v{AN+4+i}
        v_and_b32 v{AN+4+i}, -4, v{AN+i}
        v_lshlrev_b32 v{AN+i}, 2, v{AN+i}
        v_add_u32 v{AN+i}, {LIST}, v{AN+i}
        v_add_u32 v{AN+4+i}, {GN}, v{AN+4+i}""")
    for i in range(4):
        g(f"""s_mov_b64 exec, s[{sVal+2*i}:{sVal+2*i+1}]
        ds_write_b32 v{AN+i}, v{4+i}
        ds_write_b32 v{AN+4+i}, v{AP+i}""")
    g("s_mov_b64 exec, -1")
    g(f"""s_cmp_lg_u32 s{sRound}, 0
    s_cbranch_scc1 k2_noq2""")
    for s in range(4):
        for T in range(2):
            a = (X[1] if T == 0 else A) + 4 * s
            d = AL if T == 0 else AC
            cc = "0" if s == 0 else vr(d, 4)
            g(f"v_mfma_f32_16x16x32_bf16 {vr(d,4)}, {vr(a,4)}, {vr(X[0]+4*s,4)}, {cc}")
    g(f"""s_and_b32 s{sT}, s{sW}, 3
    s_mul_i32 s{sT}, s{sT}, {16*272}
    s_lshr_b32 s{sT+1}, s{sW}, 2
    s_lshl_b32 s{sT+1}, s{sT+1}, 6
    s_add_u32 s{sT}, s{sT}, s{sT+1}
    s_add_u32 s{sT}, s{sT}, {QT}
    v_mul_u32_u24 v{vQ}, 272, v2
    v_lshl_add_u32 v{vQ}, v3, 4, v{vQ}
    v_add_u32 v{vQ}, s{sT}, v{vQ}
    s_nop 1
    v_cvt_pk_bf16_f32 v{AN}, v{AL}, v{AL+1}
    v_cvt_pk_bf16_f32 v{AN+1}, v{AL+2}, v{AL+3}
    v_cvt_pk_bf16_f32 v{AN+2}, v{AC}, v{AC+1}
    v_cvt_pk_bf16_f32 v{AN+3}, v{AC+2}, v{AC+3}
    ds_write_b128 v{vQ}, {vr(AN,4)}
k2_noq2:""")
    g(f"""s_add_u32 s{sG}, s{sG}, 15
    s_lshr_b32 s{sG}, s{sG}, 4
    s_mul_i32 s{sB}, s{sW}, s{sG}
    s_add_u32 s{sEnd}, s{sB}, s{sG}
    s_lshr_b32 s{sB}, s{sB}, 4
    s_lshr_b32 s{sEnd}, s{sEnd}, 4
    s_sub_u32 s{sRem}, s{sEnd}, s{sB}
    v_lshrrev_b32 v{vT0}, 2, v2
    v_lshlrev_b32 v{vT0}, 2, v{vT0}
    s_lshl_b32 s{sT}, s{sB}, 6
    s_add_u32 s{sT}, s{sT}, {LIST}
    v_add_u32 v{vLA}, s{sT}, v{vT0}
    s_lshl_b32 s{sT}, s{sB}, 4
    s_add_u32 s{sT}, s{sT}, {GN}
    v_add_u32 v{vGA}, s{sT}, v{vT0}""")
    for i in range(16): g(f"v_mov_b32 v{A+i}, 0")
    for i in range(8): g(f"v_mov_b32 v{AC+i}, 0")
    g("s_waitcnt vmcnt(0) lgkmcnt(0)\ns_barrier")
    stamp(g, o, 3)
    def readE():
        g(f"ds_read2_b32 {vr(Ee,2)}, v{vLA} offset0:0 offset1:4\nds_read2_b32 {vr(Ee+2,2)}, v{vLA} offset0:8 offset1:12")
    def readCN(p):
        g(f"ds_read2_b32 {vr(CN[p],2)}, v{vGA} offset0:0 offset1:1")
    def adv():
        g(f"v_add_u32 v{vLA}, 64, v{vLA}\nv_add_u32 v{vGA}, 16, v{vGA}")
    def addrE():
        for t in range(4): g(f"v_add_u32 v{Ee+t}, v{Ee+t}, v{vLP}")
    def loadX(p):
        for t in range(4): g(f"buffer_load_dwordx4 {vr(X[p]+4*t,4)}, v{Ee+t}, s[{S_X}:{S_X+3}], 0 offen")
    def readQ(p):
        g(f"v_add_u32 v{vQ}, v{CN[p]}, v{vLPQ}")
        for t in range(4):
            g(f"s_mov_b64 exec, s[{sM+2*t}:{sM+2*t+1}]\nds_read_b128 {vr(A+4*t,4)}, v{vQ}")
        g("s_mov_b64 exec, -1")
    flush_sites = []
    def body(p, issue, qnext, vm, last):
        q = p ^ 1
        if issue: readE()
        g(f"s_waitcnt vmcnt({vm}) lgkmcnt({2 if issue else 0})")
        for t in range(4):
            cc = "0" if t == 0 else vr(AL, 4)
            g(f"v_mfma_f32_16x16x32_bf16 {vr(AL,4)}, {vr(A+4*t,4)}, {vr(X[p]+4*t,4)}, {cc}")
        g(f"v_cmp_ne_u32 s[{sFl}:{sFl+1}], v{CN[p]}, v{CN[p]+1}")
        if qnext:
            readQ(q)
        else:
            g("s_nop 7")
        if last: g(f"s_bitset1_b32 s{sFl}, 12")
        g(f"""v_add_f32_dpp v{vT0}, v{AL+1}, v{AL} quad_perm:[1,1,1,1] row_mask:0xf bank_mask:0xf
        v_add_f32_dpp v{vT0}, v{AL+2}, v{vT0} quad_perm:[2,2,2,2] row_mask:0xf bank_mask:0xf
        v_add_f32_dpp v{vT0}, v{AL+3}, v{vT0} quad_perm:[3,3,3,3] row_mask:0xf bank_mask:0xf
        v_mul_f32 v{vT0}, s{sSc}, v{vT0}
        v_exp_f32 v{vT0}, v{vT0}""")
        if issue: g("s_waitcnt lgkmcnt(4)")
        else: g("s_nop 0")
        g(f"""v_add_f32 v{vT0}, 1.0, v{vT0}
        v_rcp_f32 v{vT0}, v{vT0}""")
        if issue: g(f"v_add_u32 v{Ee}, v{Ee}, v{vLP}")
        else: g("s_nop 0")
        g(f"""v_cvt_pk_bf16_f32 v{AP}, v{vT0}, v{vT0}
        v_cvt_pk_bf16_f32 v{AP+1}, v{vT0}, v{vT0}""")
        if issue: g(f"v_add_u32 v{Ee+1}, v{Ee+1}, v{vLP}\nv_add_u32 v{Ee+2}, v{Ee+2}, v{vLP}")
        else: g("s_nop 1")
        g(f"""v_permlane16_swap_b32 v{AP}, v{AP+1}
        v_mov_b32 v{AP+2}, v{AP}
        v_mov_b32 v{AP+3}, v{AP+1}""")
        if issue: g(f"v_add_u32 v{Ee+3}, v{Ee+3}, v{vLP}\ns_nop 0")
        else: g("s_nop 1")
        g(f"""v_permlane32_swap_b32 v{AP}, v{AP+2}
        v_permlane32_swap_b32 v{AP+1}, v{AP+3}
        s_nop 0""")
        for t in range(4):
            g(f"""v_and_b32_dpp v{AN+2*t}, v{AP+t}, v{vM0} quad_perm:[0,0,0,0] row_mask:0xf bank_mask:0xf
            v_and_b32_dpp v{AN+2*t+1}, v{AP+t}, v{vM1} quad_perm:[0,0,0,0] row_mask:0xf bank_mask:0xf""")
        for t in range(4):
            lf, lb = g.lab("fl"), g.lab("fb")
            g(f"""v_mfma_f32_4x4x4_16b_bf16 {vr(AC,4)}, {vr(AN+2*t,2)}, {vr(X[p]+4*t,2)}, {vr(AC,4)}
            v_mfma_f32_4x4x4_16b_bf16 {vr(AC+4,4)}, {vr(AN+2*t,2)}, {vr(X[p]+4*t+2,2)}, {vr(AC+4,4)}
            s_bitcmp1_b32 s{sFl}, {4*t}
            s_cbranch_scc1 {lf}
            {lb}:""")
            flush_sites.append((lf, lb, CN[p], 4 * t))
        if issue:
            loadX(p); readCN(p); adv()
    g(f"""s_cmp_eq_u32 s{sRem}, 0
    s_cbranch_scc1 k2_done""")
    readE(); readCN(0); adv()
    g("s_waitcnt lgkmcnt(0)")
    addrE(); loadX(0); readQ(0)
    g(f"""s_cmp_eq_u32 s{sRem}, 1
    s_cbranch_scc1 k2_t0_one""")
    readE(); readCN(1); adv()
    g("s_waitcnt lgkmcnt(1)")
    addrE(); loadX(1)
    g(f"""k2_l0:
    s_cmp_lt_u32 s{sRem}, 3
    s_cbranch_scc1 k2_t0""")
    body(0, True, True, 4, False)
    g(f"""s_cmp_lt_u32 s{sRem}, 4
    s_cbranch_scc1 k2_t1""")
    body(1, True, True, 4, False)
    g(f"""s_sub_u32 s{sRem}, s{sRem}, 2
    s_branch k2_l0
k2_t1:""")
    body(1, False, True, 4, False)
    g("k2_t0_one:")
    body(0, False, False, 0, True)
    g("s_branch k2_done\nk2_t0:")
    body(0, False, True, 4, False)
    body(1, False, False, 0, True)
    g("k2_done:")
    stamp(g, o, 4)
    g(f"""s_lshr_b32 s{sT}, s{sW}, 2
    s_lshl_b32 s{sT}, s{sT}, 2
    v_lshrrev_b32 v{vQ}, 2, v2
    v_and_b32 v{TT}, 3, v0
    v_add_u32 v{TT}, s{sT}, v{TT}
    v_lshlrev_b32 v{TT+1}, 2, v{vQ}
    v_xor_b32 v{TT}, v{TT}, v{TT+1}
    v_lshl_add_u32 v{vQ}, v3, 2, v{vQ}
    v_lshlrev_b32 v{vQ}, 8, v{vQ}
    v_lshl_add_u32 v{vQ}, v{TT}, 4, v{vQ}""")
    for T in range(2):
        for s in range(4):
            for h in range(2):
                d = X[T] + 4 * s + 2 * h
                g(f"ds_read_b64_tr_b16 {vr(d,2)}, v{vQ} offset:{WV + s*8192 + h*4096 + T*8}")
    g(f"""s_and_b32 s{sT}, s{sW}, 3
    s_mul_i32 s{sT+1}, s{sT}, {16*544}
    s_add_u32 s{sT+1}, s{sT+1}, {AGG}
    v_mul_u32_u24 v{vQ}, 544, v2
    v_lshl_add_u32 v{vQ}, v3, 4, v{vQ}
    v_add_u32 v{vQ}, s{sT+1}, v{vQ}
    v_mov_b32 v{vT0}, {OVM}
    s_waitcnt lgkmcnt(0)
    s_barrier""")
    stamp(g, o, 5)
    g(f"ds_read_b128 {vr(AN,4)}, v{vT0}")
    for s in range(4):
        for h in range(2):
            g(f"ds_read_b128 {vr(A+8*s+4*h,4)}, v{vQ} offset:{s*128+h*64}")
    g(f"""s_lshl_b32 s{sT}, s{sT}, 12
    s_lshr_b32 s{sT+1}, s{sW}, 2
    s_lshl_b32 s{sT+1}, s{sT+1}, 6
    s_add_u32 s{sT}, s{sT}, s{sT+1}
    v_lshlrev_b32 v{vT1}, 8, v2
    v_lshl_add_u32 v{vT1}, v3, 4, v{vT1}
    v_add_u32 v{vT1}, s{sT}, v{vT1}
    s_waitcnt lgkmcnt(8)
    v_or3_b32 v{vT0}, v{AN}, v{AN+1}, v{AN+2}
    v_or_b32 v{vT0}, v{vT0}, v{AN+3}
    v_cmp_ne_u32 vcc, 0, v{vT0}
    s_cbranch_vccnz k2_extra""")
    for s in range(4):
        g(f"s_waitcnt lgkmcnt({6-2*s})")
        b = A + 8 * s
        for k in range(4):
            g(f"v_cvt_pk_bf16_f32 v{b+k}, v{b+2*k}, v{b+2*k+1}")
    g("s_nop 0")
    for s in range(4):
        for T in range(2):
            d = AP if T == 0 else AN
            cc = "0" if s == 0 else vr(d, 4)
            g(f"v_mfma_f32_16x16x32_bf16 {vr(d,4)}, {vr(X[T]+4*s,4)}, {vr(A+8*s,4)}, {cc}")
    g(f"""s_nop 6
    v_cvt_pk_bf16_f32 v{AL}, v{AP}, v{AP+1}
    v_cvt_pk_bf16_f32 v{AL+1}, v{AP+2}, v{AP+3}
    v_cvt_pk_bf16_f32 v{AL+2}, v{AN}, v{AN+1}
    v_cvt_pk_bf16_f32 v{AL+3}, v{AN+2}, v{AN+3}
    buffer_store_dwordx4 {vr(AL,4)}, v{vT1}, s[{S_OUT}:{S_OUT+3}], 0 offen""")
    stamp(g, o, 6)
    if o.stamps:
        g("s_waitcnt vmcnt(0)")
        stamp(g, o, 7)
        g(f"v_lshl_add_u32 v0, s{sW}, 6, v0")
        stamp_out(g, o, 70, 71, 0)
    g("k2_end:\ns_endpgm")
    for lf, lb, cn, lane in flush_sites:
        g(f"""{lf}:
        v_readlane_b32 s{sN}, v{cn}, {lane}
        s_call_b64 s[{sRet}:{sRet+1}], k2_flush
        s_branch {lb}""")
    g("k2_flush:\ns_nop 1")
    for k in range(4):
        g(f"v_add_f32_dpp v{TT+k}, v{AC+k}, v{AC+k} row_ror:8 row_mask:0xf bank_mask:0x3")
    for k in range(4):
        g(f"v_add_f32_dpp v{TT+k}, v{AC+4+k}, v{AC+4+k} row_ror:8 row_mask:0xf bank_mask:0xc")
    g(f"v_lshl_add_u32 v{vT1}, s{sN}, 1, v{vFL}")
    for k in range(2):
        g(f"v_add_f32_dpp v{TT+4+k}, v{TT+k}, v{TT+k} row_shl:4 row_mask:0xf bank_mask:0x5")
    for k in range(2):
        g(f"v_add_f32_dpp v{TT+4+k}, v{TT+2+k}, v{TT+2+k} row_shr:4 row_mask:0xf bank_mask:0xa")
    for k in range(8): g(f"v_mov_b32 v{AC+k}, 0")
    g(f"""ds_add_f32 v{vT1}, v{TT+4}
    ds_add_f32 v{vT1}, v{TT+5} offset:4
    s_setpc_b64 s[{sRet}:{sRet+1}]""")
    g(f"""k2_mark:
    s_and_saveexec_b64 s[{sVal}:{sVal+1}], vcc
    v_lshrrev_b32 v{vT0}, 7, v1
    v_lshrrev_b32 v{vT1}, 5, v{vT0}
    v_lshlrev_b32 v{vT1}, 2, v{vT1}
    v_add_u32 v{vT1}, {OVM}, v{vT1}
    v_and_b32 v{vT0}, 31, v{vT0}
    v_lshlrev_b32 v{vT0}, v{vT0}, v{vOne}
    ds_or_b32 v{vT1}, v{vT0}
    s_mov_b64 exec, -1
    s_branch k2_marked""")
    g(f"""k2_extra:
    s_waitcnt lgkmcnt(0)
    v_readfirstlane_b32 s{sMap}, v{AN}
    v_readfirstlane_b32 s{sMap+1}, v{AN+1}
    v_readfirstlane_b32 s{sMap+2}, v{AN+2}
    v_readfirstlane_b32 s{sMap+3}, v{AN+3}
    s_barrier
    s_cmp_lg_u64 s[{sMap}:{sMap+1}], 0
    s_cbranch_scc1 k2_x1
    s_ff1_i32_b64 s{sT}, s[{sMap+2}:{sMap+3}]
    s_bitset0_b64 s[{sMap+2}:{sMap+3}], s{sT}
    s_add_u32 s{sT}, s{sT}, 64
    s_branch k2_x2
k2_x1:
    s_ff1_i32_b64 s{sT}, s[{sMap}:{sMap+1}]
    s_bitset0_b64 s[{sMap}:{sMap+1}], s{sT}
k2_x2:
    s_lshl_b32 s{sG}, s{sT}, 2
    s_add_u32 s{sG}, s{sG}, {WS_OVFCNT - WS_OVF}
    v_mov_b32 v{vT0}, 0
    buffer_load_dword v{vT1}, v{vT0}, s[{S_OVF}:{S_OVF+3}], s{sG} offen
    s_mul_i32 s{sG}, s{sT}, {CE*4}
    buffer_load_dwordx4 v[4:7], v1, s[{S_OVF}:{S_OVF+3}], s{sG} offen
    v_add_u32 v{vQ}, {LIST}, v1
    v_mov_b32 v{AN}, 0
    v_mov_b32 v{AN+1}, 0
    v_mov_b32 v{AN+2}, 0
    v_mov_b32 v{AN+3}, 0
    v_mov_b32 v{AN+4}, {PADMARK}
    v_mov_b32 v{AN+5}, {PADMARK}
    v_mov_b32 v{AN+6}, {PADMARK}
    v_mov_b32 v{AN+7}, {PADMARK}
    ds_write_b128 v{vQ}, {vr(AN+4,4)}
    v_cmp_gt_u32 vcc, {(OVM-GN)}, v1
    s_and_saveexec_b64 s[{sVal}:{sVal+1}], vcc
    ds_write_b128 v{vQ}, {vr(AN,4)} offset:{GN-LIST}
    s_mov_b64 exec, -1
    s_cmp_lg_u32 s{sW}, 0
    s_cbranch_scc1 k2_x3
    ds_write_b128 v{vQ}, {vr(AN+4,4)} offset:16384
    v_mov_b32 v{AN}, s{sMap}
    v_mov_b32 v{AN+1}, s{sMap+1}
    v_mov_b32 v{AN+2}, s{sMap+2}
    v_mov_b32 v{AN+3}, s{sMap+3}
    v_mov_b32 v{vT0}, {OVM}
    ds_write_b128 v{vT0}, {vr(AN,4)}
k2_x3:
    s_mov_b32 s{sRound}, 1
    s_add_u32 s{sT}, s2, 512
    v_lshrrev_b32 v{vT0}, 2, v1
    s_waitcnt vmcnt(0)""")
    for i in range(4):
        g(f"""v_lshrrev_b32 v{AP}, 22, v{4+i}
        v_cmp_eq_u32 vcc, s{sT}, v{AP}
        v_add_u32 v{AP+1}, {i}, v{vT0}
        v_cmp_lt_u32 s[{sVal+2*i}:{sVal+2*i+1}], v{AP+1}, v{vT1}
        s_and_b64 s[{sVal+2*i}:{sVal+2*i+1}], s[{sVal+2*i}:{sVal+2*i+1}], vcc""")
    g("""s_waitcnt lgkmcnt(0)
    s_barrier
    s_branch k2_round""")
    return LDS2, NV, 96

def main():
    ap = argparse.ArgumentParser()
    ap.add_argument("-o", default="cdna_kernels/" + KN + ".s")
    ap.add_argument("--stamps", action="store_true")
    ap.add_argument("--pf", type=int, default=1)
    ap.add_argument("--pf_slices", type=int, default=32)
    ap.add_argument("--pf_shift", type=int, default=7)
    ap.add_argument("--k1_wgs", type=int, default=256)
    o = ap.parse_args()
    g = G()
    l1, v1, s1 = gen_k1(g, o)
    l2, v2, s2 = gen_k2(g, o)
    head = f"""; featgraph: bucket edges by dst (k1), then per-bucket attention-style gather/aggregate (k2)
; @launch kernel=k1_kernel grid=({o.k1_wgs},1,1) block=(1024,1,1) lds={l1}
; @launch kernel=k2_kernel grid=({NB},1,1) block=(1024,1,1) lds={l2}
.amdgcn_target "amdgcn-amd-amdhsa--gfx950"
.text
"""
    tail = '.section .rodata,"a"\n.p2align 6\n' + kd("k1_kernel", v1, s1) + ".p2align 6\n" + kd("k2_kernel", v2, s2)
    open(o.o, "w").write(head + g.text() + tail)
main()
```

```python
import sys, argparse

KN = "standalone__kernel_systems_refs_featgraph__graph"
N, E, D = 12500, 400000, 128
NB, NPB = 250, 50
NC, CE = 125, 3200
CAP = 32
WS_EPOCH = 0
WS_CELLS = 4096
CELLS_BYTES = NB * NC * 128
WS_OVF = 4 << 20
WS_OVFCNT = 6 << 20
WS_STAMP = 8 << 20
PADMARK = 0x003FFF00
TAGMASK = 0x7FC00000
BIG = 0x400000

CNT2, OVM, AGG = 0, 256, 512
PCNT = AGG + 50 * 544
OVN = PCNT + 1000
QT = PCNT + 1024
LIST = QT + 64 * 272
WQ = (LIST + 17408 + 255) // 256 * 256
WV = WQ + 32768
IMG = WV + 32768
LDS = IMG + 32768
assert LDS <= 163840

class G:
    def __init__(self):
        self.L = []; self.uid = 0
    def __call__(self, s=""):
        for ln in s.split("\n"):
            ln = ln.strip()
            if not ln: continue
            if ln.endswith(":") or ln.startswith("."): self.L.append(ln)
            else: self.L.append("    " + ln)
    def lab(self, p="L"):
        self.uid += 1
        return f"{p}_{self.uid}"
    def text(self): return "\n".join(self.L) + "\n"

def vr(a, n=1): return f"v{a}" if n == 1 else f"v[{a}:{a+n-1}]"
def sp(a): return f"s[{a}:{a+1}]"
def sq(a): return f"s[{a}:{a+3}]"

ST0 = 86
def gen(g, o):
    sel = o.stamps.split(",") if o.stamps else []
    def stamp(nm):
        if nm in sel:
            i = sel.index(nm)
            g(f"{'s_memtime' if o.cyc else 's_memrealtime'} s[{ST0+2*i}:{ST0+2*i+1}]")
    pX, pSRC, pDST, pWQ, pWV, pOUT, pDBG, pWS = 4, 6, 8, 10, 12, 14, 16, 18
    S_X, S_CELL, S_CST, S_OUT = 20, 24, 28, 32
    sW, sTag, sG, sRem, sFl, sN, sRound = 36, 37, 38, 39, 40, 42, 43
    sM, sVal, sRet, sSc, s68, sAM = 44, 52, 68, 70, 71, 72
    sO, sL, sLM, sT = 72, 75, 79, 80
    sLB = 3
    X = [12, 28]; A = 44; Ee = 60; CN = [64, 66]; AL = 68; AC = 72; AP = 80; AN = 84
    vLP, vM0, vM1, vFL, vLA, vGA, vQ, vT0, vT1, vFour, TT = 92, 93, 94, 95, 96, 97, 98, 99, 100, 101, 102
    NV = 108
    SC = " sc1" if o.sc == 1 else " sc0 sc1"
    g(f""".p2align 8
.globl {KN}_kernel
.type {KN}_kernel,@function
{KN}_kernel:
    s_cmp_ge_u32 s2, {NB}
    s_cbranch_scc1 k_end
    s_load_dwordx16 s[4:19], s[0:1], 0
    v_lshlrev_b32 v1, 4, v0
    v_lshrrev_b32 v{vT0}, 6, v0
    v_and_b32 v2, 15, v0
    v_readfirstlane_b32 s{sW}, v{vT0}
    v_bfe_u32 v3, v0, 4, 2
    s_mul_i32 s{sT}, s2, {CE*4}""")
    if o.stamps:
        for i in range(8): g(f"s_mov_b64 s[{ST0+2*i}:{ST0+2*i+1}], 0")
    g(f"""v_cmp_gt_u32 vcc, {CE//4}, v0
    v_add_u32 v{vT1}, s{sT}, v1
    s_mov_b64 {sp(sVal)}, vcc
    s_waitcnt lgkmcnt(0)""")
    stamp("start")
    g(f"""s_load_dword s{sTag}, {sp(pWS)}, {WS_EPOCH}
    s_cmp_ge_u32 s2, {NC}
    s_cbranch_scc1 k_noedge
    s_mov_b64 exec, {sp(sVal)}
    s_cbranch_execz k_noedge
    global_load_dwordx4 v[44:47], v{vT1}, {sp(pDST)}
    global_load_dwordx4 v[48:51], v{vT1}, {sp(pSRC)}
k_noedge:
    s_mov_b64 exec, -1
    s_mov_b32 s{S_X}, s{pX}
    s_mov_b32 s{S_X+1}, s{pX+1}
    s_mov_b32 s{S_X+2}, {N*256}
    s_mov_b32 s{S_X+3}, 0x20000
    s_mul_i32 s{sN}, s2, {NPB*256}""")
    def aux_loads():
        g(f"""s_sub_u32 s{sT}, s{sW}, 8
        s_lshl_b32 s{sT+1}, s{sT}, 12
        v_lshlrev_b32 v{vT1}, 2, v3
        v_xor_b32 v{vT1}, v{vT1}, v2
        v_lshlrev_b32 v{vT1}, 4, v{vT1}
        v_lshl_add_u32 v{vT1}, v3, 8, v{vT1}
        v_add_u32 v{vT1}, s{sT+1}, v{vT1}
        s_add_u32 m0, s{sT+1}, {WQ}
        v_lshlrev_b32 v{vT0}, 8, v2""")
        for k in range(4): g(f"global_load_lds_dwordx4 v{vT1}, {sp(pWQ)} offset:{1024*k}")
        g(f"""s_and_b32 s{sT+2}, s{sT}, 3
        s_lshl_b32 s{sT+2}, s{sT+2}, 12
        s_add_u32 s{sT+2}, s{sT+2}, s{sN}
        v_lshl_add_u32 v{vT0}, v3, 4, v{vT0}
        s_add_u32 m0, s{sT+1}, {WV}""")
        for s_ in range(4):
            g(f"buffer_load_dwordx4 {vr(X[0]+4*s_,4)}, v{vT0}, {sq(S_X)}, s{sT+2} offen offset:{64*s_}")
        for k in range(4): g(f"global_load_lds_dwordx4 v{vT1}, {sp(pWV)} offset:{1024*k}")
    def prefetch(n, first, nsl):
        g(f"""s_sub_u32 s{sT}, s2, {first}
        s_lshr_b32 s{sT}, s{sT}, 3
        s_mul_i32 s{sT}, s{sT}, {n*65536}
        s_add_u32 s{sT}, s{sT}, {nsl}
        v_lshlrev_b32 v{vT0}, 3, v1
        v_and_b32 v{vT0}, 0xffff, v{vT0}""")
        for k in range(n):
            g(f"buffer_load_dword v{TT+5}, v{vT0}, {sq(S_X)}, s{sT} offen")
            if k < n - 1: g(f"s_add_u32 s{sT}, s{sT}, 65536")
    g(f"""s_cmp_lt_u32 s2, {NC}
    s_cbranch_scc1 k_noaux
    s_cmp_lt_u32 s{sW}, 8
    s_cbranch_scc1 k_noaux""")
    aux_loads()
    if o.pf: prefetch(o.pf, NC, 0)
    g("k_noaux:")
    stamp("aux")
    for i in range(4): g(f"v_mov_b32 v{AN+i}, 0")
    for i in range(4): g(f"v_mov_b32 v{AN+4+i}, {PADMARK}")
    g(f"""ds_write_b128 v1, {vr(AN,4)}
    ds_write_b128 v1, {vr(AN,4)} offset:16384
    ds_write_b128 v1, {vr(AN+4,4)} offset:{LIST}
    s_cmp_lg_u32 s{sW}, 0
    s_cbranch_scc1 k_i1
    ds_write_b128 v1, {vr(AN+4,4)} offset:{LIST+16384}
k_i1:""")
    g(f"""s_mul_i32 s{sT}, s2, 16000
    s_add_u32 s{S_CST}, s{pWS}, {WS_CELLS}
    s_addc_u32 s{S_CST+1}, s{pWS+1}, 0
    s_mov_b32 s{S_CST+2}, {CELLS_BYTES}
    s_mov_b32 s{S_CST+3}, 0x20000
    s_add_u32 s{S_CELL}, s{S_CST}, s{sT}
    s_addc_u32 s{S_CELL+1}, s{S_CST+1}, 0
    s_mov_b32 s{S_CELL+2}, 16000
    s_mov_b32 s{S_CELL+3}, 0x20000
    s_add_u32 s{S_OUT}, s{pOUT}, s{sN}
    s_addc_u32 s{S_OUT+1}, s{pOUT+1}, 0
    s_mov_b32 s{S_OUT+2}, {NPB*256}
    s_mov_b32 s{S_OUT+3}, 0x20000
    v_and_b32 v{vT0}, 3, v0
    v_lshl_add_u32 v{vLP}, v3, 2, v{vT0}
    v_lshlrev_b32 v{vLP}, 4, v{vLP}
    v_and_b32 v{vT1}, 12, v0
    v_lshlrev_b32 v{vFL}, 1, v{vLP}
    v_lshl_add_u32 v{vFL}, v{vT1}, 1, v{vFL}
    v_mov_b32 v{vM0}, 0xffff
    v_and_b32 v{vM1}, 1, v0
    v_lshlrev_b32 v{vM1}, 4, v{vM1}
    v_lshlrev_b32 v{vM1}, v{vM1}, v{vM0}
    v_cmp_gt_u32 vcc, 2, v{vT0}
    v_mov_b32 v{vFour}, 4
    s_mov_b32 s{sM}, 0x000f000f
    v_cndmask_b32 v{vM0}, 0, v{vM1}, vcc
    v_cndmask_b32 v{vM1}, v{vM1}, 0, vcc
    s_mov_b32 s{sM+1}, 0x000f000f
    s_lshl_b64 {sp(sM+2)}, {sp(sM)}, 4
    s_lshl_b64 {sp(sM+4)}, {sp(sM)}, 8
    s_lshl_b64 {sp(sM+6)}, {sp(sM)}, 12
    s_mov_b32 s{sSc}, 0xbe0293ee
    s_movk_i32 s{s68}, 68
    s_mov_b32 s{sAM}, {PADMARK}
    s_mov_b32 s{sRound}, 0""")
    stamp("consts")
    g(f"""s_waitcnt lgkmcnt(0)""")
    stamp("epoch")
    g(f"""s_add_u32 s{sTag}, s{sTag}, 0x400000
    s_and_b32 s{sTag}, s{sTag}, {TAGMASK}
    s_cmp_ge_u32 s2, {NC}
    s_cbranch_scc1 k_cons""")
    for i in range(4): g(f"v_mov_b32 v{AN+i}, s{sTag}")
    g(f"""v_add_u32 v{vQ}, {IMG}, v1
    s_mov_b32 s{sT}, 85899346
    s_movk_i32 s{sT+1}, -50
    s_or_b32 s{sT+2}, s{sTag}, 0x80000000
    s_mov_b32 s{sT+3}, {IMG}
    ds_write_b128 v{vQ}, {vr(AN,4)}
    ds_write_b128 v{vQ}, {vr(AN,4)} offset:16384
    s_waitcnt lgkmcnt(0)""")
    stamp("img")
    g(f"""s_barrier""")
    stamp("ba")
    g(f"""s_mov_b64 exec, {sp(sVal)}
    s_cbranch_execz k_binned
    s_waitcnt vmcnt(0)""")
    stamp("edges")
    Dd, Ss, B4, Rk, Tm = 44, 48, 52, 56, 60
    for i in range(4):
        g(f"""v_mul_hi_u32 v{B4+i}, v{Dd+i}, s{sT}
        v_lshlrev_b32 v{B4+i}, 2, v{B4+i}
        ds_add_rtn_u32 v{Rk+i}, v{B4+i}, v{vFour} offset:{PCNT}""")
    for i in range(4):
        g(f"""v_lshl_add_u32 v{Ss+i}, v{Ss+i}, 6, v{Dd+i}
        v_lshl_add_u32 v{Ss+i}, v{Ss+i}, 2, s{sT+2}
        v_mad_i32_i24 v{Ss+i}, v{B4+i}, s{sT+1}, v{Ss+i}
        v_lshl_add_u32 v{Tm+i}, v{B4+i}, 5, s{sT+3}""")
    g("s_waitcnt lgkmcnt(0)")
    g(f"""v_max3_u32 v{vT0}, v{Rk}, v{Rk+1}, v{Rk+2}
    v_max_u32 v{vT0}, v{vT0}, v{Rk+3}
    v_cmp_le_u32 vcc, {CAP*4}, v{vT0}""")
    for i in range(4): g(f"v_add_u32 v{Tm+i}, v{Rk+i}, v{Tm+i}")
    g("s_cbranch_vccnz k_slow")
    for i in range(4): g(f"ds_write_b32 v{Tm+i}, v{Ss+i}")
    g(f"""k_binned:
    s_mov_b64 exec, -1
    v_mov_b32 v{vT0}, {OVN}
    v_lshrrev_b32 v{vT1}, 3, v0
    s_movk_i32 s{sT}, 16000
    v_mul_lo_u32 v{vT1}, v{vT1}, s{sT}
    v_and_b32 v{Tm}, 0x70, v1
    v_add_u32 v{vT1}, v{vT1}, v{Tm}
    s_lshl_b32 s{sT}, s2, 7
    s_add_u32 s{sT+1}, s{sT}, {128*16000}
    s_waitcnt lgkmcnt(0)""")
    stamp("binned")
    g(f"""s_barrier""")
    stamp("bb")
    g(f"""ds_read_b32 v{Tm}, v{vT0}
    ds_read_b128 v[44:47], v{vQ}
    ds_read_b128 v[48:51], v{vQ} offset:16384
    s_waitcnt lgkmcnt(2)
    v_cmp_ne_u32 vcc, 0, v{Tm}
    s_cbranch_vccnz k_flag
k_copy:
    s_waitcnt lgkmcnt(1)
    buffer_store_dwordx4 v[44:47], v{vT1}, {sq(S_CST)}, s{sT} offen{SC}
    s_waitcnt lgkmcnt(0)
    buffer_store_dwordx4 v[48:51], v{vT1}, {sq(S_CST)}, s{sT+1} offen{SC}""")
    stamp("copied")
    g(f"""s_cmp_lt_u32 s{sW}, 8
    s_cbranch_scc1 k_bc""")
    aux_loads()
    if o.pf2: prefetch(o.pf2, 0, 16 * o.pf * 65536)
    g(f"""s_waitcnt vmcnt({o.pf2})
    s_branch k_bc""")
    g(f"""k_cons:
    s_cmp_lt_u32 s{sW}, 8
    s_cbranch_scc1 k_bc
    s_waitcnt vmcnt({o.pf})
    s_cmp_lg_u32 s{sW}, 15
    s_cbranch_scc1 k_bc
    v_mov_b32 v{vT0}, 0
    s_mov_b64 exec, 1
    global_atomic_add v{vT0}, v{vFour}, {sp(pDBG)}
    s_mov_b64 exec, -1
k_bc:""")
    stamp("prebc")
    g("s_barrier")
    stamp("bc")
    g(f"""s_cmp_lt_u32 s{sW}, 8
    s_cbranch_scc1 k_sorter""")
    g(f"""s_bfe_u32 s{sT}, s{sW}, 0x10002
    s_lshl_b32 s{sT+1}, s{sT}, 3
    v_lshrrev_b32 v{vQ}, 2, v2
    v_and_b32 v{TT}, 3, v0
    v_add_u32 v{TT}, s{sT+1}, v{TT}
    v_lshlrev_b32 v{TT+1}, 2, v{vQ}
    v_xor_b32 v{TT}, v{TT}, v{TT+1}
    v_lshl_add_u32 v{vQ}, v3, 3, v{vQ}
    v_lshlrev_b32 v{vQ}, 8, v{vQ}
    v_lshl_add_u32 v{vQ}, v{TT}, 4, v{vQ}
    v_add_u32 v{vQ}, {WQ}, v{vQ}
    v_xor_b32 v{TT}, 64, v{vQ}""")
    WF = [28, 60]
    QD = [4, 92 - 92 + 0]
    def trq(jj):
        va = vQ if jj == 0 else TT
        for s_ in range(4):
            for T in range(2):
                for h in range(2):
                    g(f"ds_read_b64_tr_b16 {vr(WF[jj]+16*T+4*s_+2*h,2)}, v{va} offset:{s_*8192 + h*1024 + T*8}")
    trq(0)
    g(f"""s_and_b32 s{sT+1}, s{sW}, 3
    s_mul_i32 s{sT+1}, s{sT+1}, {16*272}
    s_lshl_b32 s{sT}, s{sT}, 7
    s_add_u32 s{sT}, s{sT}, s{sT+1}
    v_mul_u32_u24 v{vT0}, 272, v2
    v_lshl_add_u32 v{vT0}, v3, 4, v{vT0}
    v_add_u32 v{vT0}, s{sT}, v{vT0}
    s_waitcnt lgkmcnt(0)""")
    trq(1)
    for jj in range(2):
        if jj == 1: g("s_waitcnt lgkmcnt(1)")
        for s_ in range(4):
            for T in range(2):
                d = 4 + 4 * T
                cc = "0" if s_ == 0 else vr(d, 4)
                g(f"v_mfma_f32_16x16x32_bf16 {vr(d,4)}, {vr(WF[jj]+16*T+4*s_,4)}, {vr(X[0]+4*s_,4)}, {cc}")
        g("s_nop 6")
        for k in range(4):
            g(f"v_cvt_pk_bf16_f32 v{4+k}, v{4+2*k}, v{4+2*k+1}")
        g(f"ds_write_b128 v{vT0}, v[4:7] offset:{QT + jj*64}")
    def zero_main():
        for i in range(16): g(f"v_mov_b32 v{A+i}, 0")
        for i in range(8): g(f"v_mov_b32 v{AC+i}, 0")
    zero_main()
    stamp("qdone")
    g("s_branch k_b1")
    g("k_sorter:")
    zero_main()
    pA, pB = sVal, sVal + 2
    g(f"""s_mov_b64 {sp(pA)}, -1
    s_movk_i32 s{sT}, {16000-8192}
    v_cmp_gt_u32 {sp(pB)}, s{sT}, v1""")
    for i in range(4): g(f"v_mov_b32 v{8+i}, 0")
    g(f"""s_movk_i32 s{sT}, 8192
    s_mov_b32 s{sT+1}, {TAGMASK}
    s_mov_b32 s{sT+2}, {o.spin}
k_poll:
    s_mov_b64 exec, {sp(pA)}
    s_cbranch_execz k_p1
    buffer_load_dwordx4 v[4:7], v1, {sq(S_CELL)}, 0 offen{SC}
k_p1:
    s_mov_b64 exec, {sp(pB)}
    s_cbranch_execz k_p2
    buffer_load_dwordx4 v[8:11], v1, {sq(S_CELL)}, s{sT} offen{SC}
k_p2:
    s_mov_b64 exec, -1
    s_sub_u32 s{sT+2}, s{sT+2}, 1
    s_cbranch_scc1 k_polled
    s_waitcnt vmcnt(0)
    v_bitop3_b32 v{vT0}, v4, v5, s{sTag} bitop3:0x7e
    v_bitop3_b32 v{vT1}, v6, v7, s{sTag} bitop3:0x7e
    v_bitop3_b32 v{TT}, v8, v9, s{sTag} bitop3:0x7e
    v_bitop3_b32 v{TT+1}, v10, v11, s{sTag} bitop3:0x7e
    v_bitop3_b32 v{vT0}, v{vT0}, v{vT1}, s{sT+1} bitop3:0xa8
    v_bitop3_b32 v{TT}, v{TT}, v{TT+1}, s{sT+1} bitop3:0xa8
    v_cmp_ne_u32 {sp(pA)}, 0, v{vT0}
    v_cmp_ne_u32 vcc, 0, v{TT}
    s_and_b64 {sp(pB)}, {sp(pB)}, vcc
    s_or_b64 vcc, {sp(pA)}, {sp(pB)}
    s_cbranch_scc1 k_poll
k_polled:
    s_waitcnt vmcnt(0)""")
    stamp("polled")
    g(f"""v_or_b32 v{vT0}, v4, v8
    v_and_b32 v{vT0}, 2, v{vT0}
    v_cmp_ne_u32 vcc, 0, v{vT0}
    s_cbranch_vccnz k_mark
k_marked:""")
    for i in range(8): g(f"v_cmp_gt_i32 {sp(sVal+2*i)}, 0, v{4+i}")
    g("k_round:")
    Tn, Rn = X[0], X[0] + 8
    for i in range(8): g(f"v_and_b32 v{Tn+i}, 0xfc, v{4+i}")
    for i in range(8):
        g(f"s_mov_b64 exec, {sp(sVal+2*i)}\nds_add_rtn_u32 v{Rn+i}, v{Tn+i}, v{vFour} offset:{CNT2}")
    g(f"""s_mov_b64 exec, -1
k_b1:
    v_and_b32 v{vT0}, 63, v0
    v_lshlrev_b32 v{vT0}, 2, v{vT0}
    v_and_b32 v{vLA}, 12, v0
    v_lshlrev_b32 v{vGA}, 2, v{vLA}
    s_waitcnt lgkmcnt(0)
    s_barrier""")
    stamp("b1")
    c, inc = vT1, vT0
    g(f"""ds_read_b32 v{c}, v{vT0} offset:{CNT2}
    s_waitcnt lgkmcnt(0)
    v_add_u32 v{c}, 12, v{c}
    v_and_b32 v{c}, -16, v{c}
    s_nop 1
    v_add_u32_dpp v{inc}, v{c}, v{c} row_shr:1 row_mask:0xf bank_mask:0xf bound_ctrl:0
    s_nop 1
    v_add_u32_dpp v{inc}, v{inc}, v{inc} row_shr:2 row_mask:0xf bank_mask:0xf bound_ctrl:0
    s_nop 1
    v_add_u32_dpp v{inc}, v{inc}, v{inc} row_shr:4 row_mask:0xf bank_mask:0xf bound_ctrl:0
    s_nop 1
    v_add_u32_dpp v{inc}, v{inc}, v{inc} row_shr:8 row_mask:0xf bank_mask:0xf bound_ctrl:0
    s_nop 1
    v_add_u32_dpp v{inc}, v{inc}, v{inc} row_bcast:15 row_mask:0xa bank_mask:0xf
    s_nop 1
    v_add_u32_dpp v{inc}, v{inc}, v{inc} row_bcast:31 row_mask:0xc bank_mask:0xf
    s_cmp_ge_u32 s{sW}, 8
    v_sub_u32 v{c}, v{inc}, v{c}
    v_readlane_b32 s{sG}, v{inc}, 63
    s_cbranch_scc1 k_nosc""")
    On = X[1]
    for i in range(8): g(f"ds_bpermute_b32 v{On+i}, v{Tn+i}, v{c}")
    g("k_nosc:")
    g(f"""v_add_u32 v{inc}, v{inc}, v{c}
    v_lshlrev_b32 v{inc}, 3, v{inc}
    s_mul_i32 s{sT}, s{sW}, s{sG}
    s_add_u32 s{sT+1}, s{sT}, s{sG}
    v_cmp_le_u32 vcc, s{sT}, v{inc}
    v_cmp_le_u32 {sp(sFl)}, s{sT+1}, v{inc}
    s_ff1_i32_b64 s{sT}, vcc
    s_ff1_i32_b64 s{sT+1}, {sp(sFl)}
    v_readlane_b32 s{sT}, v{c}, s{sT}
    v_readlane_b32 s{sT+1}, v{c}, s{sT+1}
    s_cmp_ge_u32 s{sW}, 8
    s_cbranch_scc1 k_nosc2""")
    for half in range(2):
        g("s_waitcnt lgkmcnt(4)")
        for i in range(4 * half, 4 * half + 4): g(f"v_add_u32 v{On+i}, v{On+i}, v{Rn+i}")
        for i in range(4 * half, 4 * half + 4):
            g(f"s_mov_b64 exec, {sp(sVal+2*i)}\nds_write_b32 v{On+i}, v{4+i} offset:{LIST}")
        g("s_mov_b64 exec, -1")
    g(f"""k_nosc2:
    s_sub_u32 s{sRem}, s{sT+1}, s{sT}
    s_add_u32 s{sT}, s{sT}, {LIST}
    v_add_u32 v{vLA}, s{sT}, v{vLA}
    v_add_u32 v{vGA}, s{sT}, v{vGA}
    s_lshr_b32 s{sRem}, s{sRem}, 4
    s_sub_u32 s{sLB}, s{sRem}, 1
    s_and_b32 s{sLB}, s{sLB}, 3
    s_cmp_lt_u32 s{sLB}, 1
    s_cselect_b32 s{sL+1}, {BIG}, 0
    s_cmp_lt_u32 s{sLB}, 2
    s_cselect_b32 s{sL+2}, {BIG}, 0
    s_cmp_lt_u32 s{sLB}, 3
    s_cselect_b32 s{sL+3}, {BIG}, 0
    s_lshl_b32 s{sLB}, s{sLB}, 2
    s_lshl_b32 s{sLM}, 2, s{sLB}
    s_sub_u32 s{sLM}, s{sLM}, 1
    s_add_u32 s{sRem}, s{sRem}, 3
    s_lshr_b32 s{sRem}, s{sRem}, 2
    s_waitcnt lgkmcnt(0)
    s_barrier""")
    stamp("b2")
    def readE():
        g(f"ds_read2_b32 {vr(Ee,2)}, v{vLA} offset0:0 offset1:4\nds_read2_b32 {vr(Ee+2,2)}, v{vLA} offset0:8 offset1:12")
    def readCN(p):
        g(f"ds_read_u8 v{CN[p]}, v{vGA}\nds_read_u8 v{CN[p]+1}, v{vGA} offset:16")
    def adv():
        g(f"v_add_u32 v{vLA}, 64, v{vLA}\nv_add_u32 v{vGA}, 64, v{vGA}")
    def addr(t): return f"v_and_or_b32 v{Ee+t}, v{Ee+t}, s{sAM}, v{vLP}"
    def setO(k):
        g(f"s_cmp_eq_u32 s{sRem}, {k}")
        for t in range(1, 4): g(f"s_cselect_b32 s{sO+t}, s{sL+t}, 0")
    def loadX(p):
        for t in range(4):
            so = "0" if t == 0 else f"s{sO+t}"
            g(f"buffer_load_dwordx4 {vr(X[p]+4*t,4)}, v{Ee+t}, {sq(S_X)}, {so} offen")
    def readQ(p):
        g(f"v_mad_u32_u24 v{vQ}, v{CN[p]}, s{s68}, v{vLP}")
        for t in range(4):
            g(f"s_mov_b64 exec, {sp(sM+2*t)}\nds_read_b128 {vr(A+4*t,4)}, v{vQ} offset:{QT}")
        g("s_mov_b64 exec, -1")
    flush_sites = []
    def body(p, issue, qnext, vm, last, lastk=0):
        q = p ^ 1
        if issue: readE()
        g(f"s_waitcnt vmcnt({vm}) lgkmcnt({2 if issue else 0})")
        for t in range(4):
            cc = "0" if t == 0 else vr(AL, 4)
            g(f"v_mfma_f32_16x16x32_bf16 {vr(AL,4)}, {vr(A+4*t,4)}, {vr(X[p]+4*t,4)}, {cc}")
        g(f"v_cmp_ne_u32 {sp(sFl)}, v{CN[p]}, v{CN[p]+1}")
        if qnext: readQ(q)
        else: g("s_nop 7")
        if last: g(f"s_and_b32 s{sFl}, s{sFl}, s{sLM}\ns_bitset1_b32 s{sFl}, s{sLB}")
        if issue: setO(lastk)
        g(f"""v_add_f32_dpp v{vT0}, v{AL+1}, v{AL} quad_perm:[1,1,1,1] row_mask:0xf bank_mask:0xf
        v_add_f32_dpp v{vT0}, v{AL+2}, v{vT0} quad_perm:[2,2,2,2] row_mask:0xf bank_mask:0xf
        v_add_f32_dpp v{vT0}, v{AL+3}, v{vT0} quad_perm:[3,3,3,3] row_mask:0xf bank_mask:0xf
        v_mul_f32 v{vT0}, s{sSc}, v{vT0}
        v_exp_f32 v{vT0}, v{vT0}""")
        g("s_waitcnt lgkmcnt(4)" if issue else "s_nop 0")
        g(f"v_add_f32 v{vT0}, 1.0, v{vT0}\nv_rcp_f32 v{vT0}, v{vT0}")
        g(addr(0) if issue else "s_nop 0")
        g(f"v_cvt_pk_bf16_f32 v{AP}, v{vT0}, v{vT0}\nv_cvt_pk_bf16_f32 v{AP+1}, v{vT0}, v{vT0}")
        g(addr(1) + "\n" + addr(2) if issue else "s_nop 1")
        g(f"""v_permlane16_swap_b32 v{AP}, v{AP+1}
        v_mov_b32 v{AP+2}, v{AP}
        v_mov_b32 v{AP+3}, v{AP+1}""")
        g(addr(3) + "\ns_nop 0" if issue else "s_nop 1")
        g(f"""v_permlane32_swap_b32 v{AP}, v{AP+2}
        v_permlane32_swap_b32 v{AP+1}, v{AP+3}
        s_nop 0""")
        for t in range(4):
            g(f"""v_and_b32_dpp v{AN+2*t}, v{AP+t}, v{vM0} quad_perm:[0,0,0,0] row_mask:0xf bank_mask:0xf
            v_and_b32_dpp v{AN+2*t+1}, v{AP+t}, v{vM1} quad_perm:[0,0,0,0] row_mask:0xf bank_mask:0xf""")
        for t in range(4):
            lf, lb = g.lab("fl"), g.lab("fb")
            g(f"""v_mfma_f32_4x4x4_16b_bf16 {vr(AC,4)}, {vr(AN+2*t,2)}, {vr(X[p]+4*t,2)}, {vr(AC,4)}
            v_mfma_f32_4x4x4_16b_bf16 {vr(AC+4,4)}, {vr(AN+2*t,2)}, {vr(X[p]+4*t+2,2)}, {vr(AC+4,4)}
            s_bitcmp1_b32 s{sFl}, {4*t}
            s_cbranch_scc1 {lf}
            {lb}:""")
            flush_sites.append((lf, lb, CN[p], 4 * t))
        if issue:
            loadX(p); readCN(p); adv()
    g(f"""s_cmp_eq_u32 s{sRem}, 0
    s_cbranch_scc1 k_done""")
    readE(); readCN(0); adv(); setO(1)
    g("s_waitcnt lgkmcnt(2)")
    for t in range(4): g(addr(t))
    loadX(0)
    g(f"""s_cmp_eq_u32 s{sRem}, 1
    s_cbranch_scc1 k_one""")
    readE(); readCN(1); adv(); setO(2)
    g("s_waitcnt lgkmcnt(2)")
    for t in range(4): g(addr(t))
    loadX(1)
    readQ(0)
    g(f"""k_l0:
    s_cmp_lt_u32 s{sRem}, 3
    s_cbranch_scc1 k_t0""")
    body(0, True, True, 4, False, 3)
    g(f"""s_cmp_lt_u32 s{sRem}, 4
    s_cbranch_scc1 k_t1""")
    body(1, True, True, 4, False, 4)
    g(f"""s_sub_u32 s{sRem}, s{sRem}, 2
    s_branch k_l0
k_one:
    s_waitcnt lgkmcnt(0)""")
    readQ(0)
    g("s_branch k_t0_one\nk_t1:")
    body(1, False, True, 4, False)
    g("k_t0_one:")
    body(0, False, False, 0, True)
    g("s_branch k_done\nk_t0:")
    body(0, False, True, 4, False)
    body(1, False, False, 0, True)
    g("k_done:")
    stamp("main")
    g(f"""s_cmp_lg_u32 s2, {NB-1}
    s_cbranch_scc1 k_ne1
    v_mov_b32 v{vLA}, 0
    global_load_dword v{vGA}, v{vLA}, {sp(pDBG)}{SC}
k_ne1:""")
    g(f"""s_lshr_b32 s{sT}, s{sW}, 2
    s_lshl_b32 s{sT+1}, s{sT}, 2
    v_lshrrev_b32 v{vQ}, 2, v2
    v_and_b32 v{TT}, 3, v0
    v_add_u32 v{TT}, s{sT+1}, v{TT}
    v_lshlrev_b32 v{TT+1}, 2, v{vQ}
    v_xor_b32 v{TT}, v{TT}, v{TT+1}
    v_lshl_add_u32 v{vQ}, v3, 2, v{vQ}
    v_lshlrev_b32 v{vQ}, 8, v{vQ}
    v_lshl_add_u32 v{vQ}, v{TT}, 4, v{vQ}
    v_add_u32 v{vQ}, {WV}, v{vQ}""")
    for T in range(2):
        for s in range(4):
            for h in range(2):
                g(f"ds_read_b64_tr_b16 {vr(X[T]+4*s+2*h,2)}, v{vQ} offset:{s*8192 + h*4096 + T*8}")
    g(f"""s_and_b32 s{sT+2}, s{sW}, 3
    s_mul_i32 s{sT+1}, s{sT+2}, {16*544}
    v_mul_u32_u24 v{vQ}, 544, v2
    v_lshl_add_u32 v{vQ}, v3, 4, v{vQ}
    v_add_u32 v{vQ}, s{sT+1}, v{vQ}
    v_mov_b32 v{vT0}, 0
    s_lshl_b32 s{sT+2}, s{sT+2}, 12
    s_lshl_b32 s{sT}, s{sT}, 6
    s_add_u32 s{sT}, s{sT}, s{sT+2}
    v_lshlrev_b32 v{vT1}, 8, v2
    v_lshl_add_u32 v{vT1}, v3, 4, v{vT1}
    v_add_u32 v{vT1}, s{sT}, v{vT1}
    s_waitcnt lgkmcnt(0)
    s_barrier""")
    stamp("b3")
    g(f"""ds_read_b128 {vr(AN,4)}, v{vT0} offset:{OVM}""")
    for s in range(4):
        for h in range(2):
            g(f"ds_read_b128 {vr(A+8*s+4*h,4)}, v{vQ} offset:{AGG+s*128+h*64}")
    g(f"""s_waitcnt lgkmcnt(8)
    v_or3_b32 v{vT0}, v{AN}, v{AN+1}, v{AN+2}
    v_or_b32 v{vT0}, v{vT0}, v{AN+3}
    v_cmp_ne_u32 vcc, 0, v{vT0}
    s_cbranch_vccnz k_extra""")
    for s in range(4):
        g(f"s_waitcnt lgkmcnt({6-2*s})")
        b = A + 8 * s
        for k in range(4):
            g(f"v_cvt_pk_bf16_f32 v{b+k}, v{b+2*k}, v{b+2*k+1}")
        if s > 0:
            for T in range(2):
                d = AP if T == 0 else AN
                cc = "0" if s == 1 else vr(d, 4)
                g(f"v_mfma_f32_16x16x32_bf16 {vr(d,4)}, {vr(X[T]+4*(s-1),4)}, {vr(A+8*(s-1),4)}, {cc}")
    for T in range(2):
        d = AP if T == 0 else AN
        g(f"v_mfma_f32_16x16x32_bf16 {vr(d,4)}, {vr(X[T]+12,4)}, {vr(A+24,4)}, {vr(d,4)}")
    g(f"""s_nop 6
    v_cvt_pk_bf16_f32 v4, v{AP}, v{AP+1}
    v_cvt_pk_bf16_f32 v5, v{AP+2}, v{AP+3}
    v_cvt_pk_bf16_f32 v6, v{AN}, v{AN+1}
    v_cvt_pk_bf16_f32 v7, v{AN+2}, v{AN+3}
    buffer_store_dwordx4 v[4:7], v{vT1}, {sq(S_OUT)}, 0 offen""")
    stamp("stored")
    g(f"""s_cmp_lg_u32 s2, {NB-1}
    s_cbranch_scc1 k_fin
    s_cmp_lg_u32 s{sW}, 15
    s_cbranch_scc1 k_fin
    s_mov_b32 s{sT+2}, {o.spin}
k_ep:
    s_waitcnt vmcnt(0)
    v_readfirstlane_b32 s{sT}, v{vGA}
    s_cmp_ge_u32 s{sT}, {4*(NB-NC)}
    s_cbranch_scc1 k_ep2
    s_sub_u32 s{sT+2}, s{sT+2}, 1
    s_cbranch_scc1 k_ep2
    global_load_dword v{vGA}, v{vLA}, {sp(pDBG)}{SC}
    s_branch k_ep
k_ep2:
    v_mov_b32 v{vGA}, s{sTag}
    s_mov_b64 exec, 1
    global_store_dword v{vLA}, v{vGA}, {sp(pWS)} offset:{WS_EPOCH}
    s_mov_b64 exec, -1
k_fin:""")
    if o.stamps:
        g("s_waitcnt vmcnt(0)")
        stamp("end")
        g("s_waitcnt lgkmcnt(0)")
        l = g.lab("st")
        g(f"""v_cmp_eq_u32 vcc, {o.stw*64}, v0
        s_and_saveexec_b64 s[52:53], vcc
        s_cbranch_execz {l}
        s_add_u32 s54, s{pWS}, {WS_STAMP}
        s_addc_u32 s55, s{pWS+1}, 0
        s_mul_i32 s56, s2, 64
        v_mov_b32 v1, s56""")
        for i in range(8):
            g(f"v_mov_b32 v2, s{ST0+2*i}\nv_mov_b32 v3, s{ST0+2*i+1}\nglobal_store_dwordx2 v1, v[2:3], s[54:55] offset:{8*i}\ns_nop 1")
        g(f"s_waitcnt vmcnt(0)\n{l}:")
    g("k_end:\ns_endpgm")
    for lf, lb, cn, lane in flush_sites:
        g(f"""{lf}:
        v_readlane_b32 s{sN}, v{cn}, {lane}
        s_call_b64 {sp(sRet)}, k_flush
        s_branch {lb}""")
    g(f"k_flush:\ns_nop 0\ns_mulk_i32 s{sN}, 136")
    for k in range(4):
        g(f"v_add_f32_dpp v{TT+k}, v{AC+k}, v{AC+k} row_ror:8 row_mask:0xf bank_mask:0x3")
    for k in range(4):
        g(f"v_add_f32_dpp v{TT+k}, v{AC+4+k}, v{AC+4+k} row_ror:8 row_mask:0xf bank_mask:0xc")
    g(f"v_add_u32 v{vT1}, s{sN}, v{vFL}")
    for k in range(2):
        g(f"v_add_f32_dpp v{TT+4+k}, v{TT+k}, v{TT+k} row_shl:4 row_mask:0xf bank_mask:0x5")
    for k in range(2):
        g(f"v_add_f32_dpp v{TT+4+k}, v{TT+2+k}, v{TT+2+k} row_shr:4 row_mask:0xf bank_mask:0xa")
    g(f"s_cmp_lg_u32 s{sRound}, 0\ns_cbranch_scc1 k_flush2\nk_flush3:")
    g(f"ds_write_b64 v{vT1}, {vr(TT+4,2)} offset:{AGG}")
    for k in range(8): g(f"v_mov_b32 v{AC+k}, 0")
    g(f"""s_setpc_b64 {sp(sRet)}
k_flush2:
    ds_read_b64 {vr(TT,2)}, v{vT1} offset:{AGG}
    s_waitcnt lgkmcnt(0)
    v_add_f32 v{TT+4}, v{TT+4}, v{TT}
    v_add_f32 v{TT+5}, v{TT+5}, v{TT+1}
    s_branch k_flush3""")
    S_OV = 60
    def build_ovf(d):
        g(f"""s_add_u32 s{d}, s{pWS}, {WS_OVF}
        s_addc_u32 s{d+1}, s{pWS+1}, 0
        s_mov_b32 s{d+2}, {(WS_OVFCNT - WS_OVF) + 4096}
        s_mov_b32 s{d+3}, 0x20000""")
    g(f"k_slow:")
    build_ovf(S_OV)
    g(f"""s_mul_i32 s{sT+4}, s2, {CE*4}
    s_mov_b32 s{sT+5}, {TAGMASK}
    v_mov_b32 v{vT0}, {OVN}""")
    for i in range(4):
        l = g.lab("ov")
        g(f"""s_mov_b64 exec, {sp(sVal)}
        v_cmp_gt_u32 vcc, {CAP*4}, v{Rk+i}
        s_and_b64 exec, {sp(sVal)}, vcc
        ds_write_b32 v{Tm+i}, v{Ss+i}
        s_andn2_b64 exec, {sp(sVal)}, vcc
        s_cbranch_execz {l}
        ds_add_rtn_u32 v{vT1}, v{vT0}, v{vFour}
        v_lshlrev_b32 v{TT}, 20, v{B4+i}
        v_bfi_b32 v{TT}, s{sT+5}, v{TT}, v{Ss+i}
        s_waitcnt lgkmcnt(0)
        buffer_store_dword v{TT}, v{vT1}, {sq(S_OV)}, s{sT+4} offen{SC}
        {l}:""")
    g(f"""s_mov_b64 exec, -1
    s_waitcnt vmcnt(0)
    s_branch k_binned""")
    g(f"""k_flag:
    s_waitcnt lgkmcnt(0)
    s_barrier""")
    build_ovf(S_OV)
    g(f"""v_cmp_gt_u32 vcc, {NB}, v0
    s_mov_b64 exec, vcc
    v_lshlrev_b32 v{TT}, 2, v0
    ds_read_b32 v{TT+1}, v{TT} offset:{PCNT}
    v_lshlrev_b32 v{TT}, 7, v0
    v_add_u32 v{TT}, {IMG}, v{TT}
    v_mov_b32 v{TT+2}, 2
    s_waitcnt lgkmcnt(0)
    v_cmp_lt_u32 vcc, {CAP*4}, v{TT+1}
    s_and_b64 exec, exec, vcc
    ds_or_b32 v{TT}, v{TT+2}
    s_mov_b64 exec, -1
    s_lshl_b32 s{sT+4}, s2, 2
    s_add_u32 s{sT+4}, s{sT+4}, {WS_OVFCNT - WS_OVF}
    v_mov_b32 v{TT}, 0
    buffer_store_dword v{Tm}, v{TT}, {sq(S_OV)}, s{sT+4} offen{SC}
    s_waitcnt vmcnt(0) lgkmcnt(0)
    s_barrier
    ds_read_b128 v[44:47], v{vQ}
    ds_read_b128 v[48:51], v{vQ} offset:16384
    s_branch k_copy""")
    g("k_mark:")
    for h in range(2):
        e = 4 + 4 * h
        g(f"""v_and_b32 v{vT0}, 2, v{e}
        v_cmp_ne_u32 vcc, 0, v{vT0}
        s_mov_b64 exec, vcc
        v_and_b32 v{e}, -3, v{e}
        v_lshrrev_b32 v{vT0}, 3, v0
        v_add_u32 v{vT0}, {64*h}, v{vT0}
        v_lshrrev_b32 v{vT1}, 5, v{vT0}
        v_lshlrev_b32 v{vT1}, 2, v{vT1}
        v_and_b32 v{vT0}, 31, v{vT0}
        v_lshlrev_b32 v{vT0}, v{vT0}, 1
        ds_or_b32 v{vT1}, v{vT0} offset:{OVM}
        s_mov_b64 exec, -1""")
    g("s_branch k_marked")
    sMap = 52
    g(f"""k_extra:
    s_waitcnt lgkmcnt(0)
    v_readfirstlane_b32 s{sMap}, v{AN}
    v_readfirstlane_b32 s{sMap+1}, v{AN+1}
    v_readfirstlane_b32 s{sMap+2}, v{AN+2}
    v_readfirstlane_b32 s{sMap+3}, v{AN+3}
    s_barrier
    s_cmp_lg_u64 {sp(sMap)}, 0
    s_cbranch_scc1 k_x1
    s_ff1_i32_b64 s{sT}, {sp(sMap+2)}
    s_bitset0_b64 {sp(sMap+2)}, s{sT}
    s_add_u32 s{sT}, s{sT}, 64
    s_branch k_x2
k_x1:
    s_ff1_i32_b64 s{sT}, {sp(sMap)}
    s_bitset0_b64 {sp(sMap)}, s{sT}
k_x2:""")
    build_ovf(S_CST)
    g(f"""s_lshl_b32 s{sG}, s{sT}, 2
    s_add_u32 s{sG}, s{sG}, {WS_OVFCNT - WS_OVF}
    v_mov_b32 v{vT0}, 0
    buffer_load_dword v{vT1}, v{vT0}, {sq(S_CST)}, s{sG} offen{SC}
    s_mul_i32 s{sG}, s{sT}, {CE*4}
    buffer_load_dwordx4 v[4:7], v1, {sq(S_CST)}, s{sG} offen{SC}
    s_add_u32 s{sG}, s{sG}, 8192
    buffer_load_dwordx4 v[8:11], v1, {sq(S_CST)}, s{sG} offen{SC}""")
    for i in range(4): g(f"v_mov_b32 v{AN+4+i}, {PADMARK}")
    g(f"""ds_write_b128 v1, {vr(AN+4,4)} offset:{LIST}
    s_cmp_lg_u32 s{sW}, 0
    s_cbranch_scc1 k_x3
    ds_write_b128 v1, {vr(AN+4,4)} offset:{LIST+16384}
    v_lshrrev_b32 v{TT}, 2, v1
    ds_write_b32 v{TT}, v{vT0} offset:{CNT2}
    v_mov_b32 v{AN}, s{sMap}
    v_mov_b32 v{AN+1}, s{sMap+1}
    v_mov_b32 v{AN+2}, s{sMap+2}
    v_mov_b32 v{AN+3}, s{sMap+3}
    ds_write_b128 v{vT0}, {vr(AN,4)} offset:{OVM}
k_x3:
    s_mov_b32 s{sRound}, 1
    s_add_u32 s{sT}, s2, 512""")
    zero_main()
    g("s_waitcnt vmcnt(0)")
    for i in range(8):
        g(f"""v_lshrrev_b32 v{AP}, 22, v{4+i}
        v_cmp_eq_u32 vcc, s{sT}, v{AP}
        v_add_u32 v{AP+1}, {(i&3)*4 + (i>>2)*8192}, v1
        v_cmp_lt_u32 {sp(sVal+2*i)}, v{AP+1}, v{vT1}
        s_and_b64 {sp(sVal+2*i)}, {sp(sVal+2*i)}, vcc""")
    g(f"""s_waitcnt lgkmcnt(0)
    s_barrier
    s_cmp_lt_u32 s{sW}, 8
    s_cbranch_scc1 k_round
    s_branch k_b1""")
    return NV

def main():
    ap = argparse.ArgumentParser()
    ap.add_argument("-o", default="cdna_kernels/" + KN + ".s")
    ap.add_argument("--stamps", default="")
    ap.add_argument("--cyc", action="store_true")
    ap.add_argument("--stw", type=int, default=0)
    ap.add_argument("--pf", type=int, default=2)
    ap.add_argument("--pf2", type=int, default=0)
    ap.add_argument("--sc", type=int, default=1)
    ap.add_argument("--spin", type=int, default=200000)
    o = ap.parse_args()
    g = G()
    nv = gen(g, o)
    head = f"""; featgraph: fused kernel. producers bucket edges by dst into tagged cells (d_ws), every workgroup then
; @launch grid=({NB},1,1) block=(1024,1,1) lds={LDS}
.amdgcn_target "amdgcn-amd-amdhsa--gfx950"
.text
"""
    acc = (nv + 3) // 4 * 4
    tail = f""".section .rodata,"a"
.p2align 6
.amdhsa_kernel {KN}_kernel
  .amdhsa_next_free_vgpr {nv}
  .amdhsa_next_free_sgpr 102
  .amdhsa_accum_offset {acc}
  .amdhsa_group_segment_fixed_size 0
  .amdhsa_kernarg_size 64
  .amdhsa_user_sgpr_count 2
  .amdhsa_user_sgpr_kernarg_segment_ptr 1
  .amdhsa_system_sgpr_workgroup_id_x 1
.end_amdhsa_kernel
"""
    open(o.o, "w").write(head + g.text() + tail)
main()
```

```python
import sys, argparse

KN = "standalone__kernel_systems_refs_featgraph__graph"
N, E, D = 12500, 400000, 128
NB, NPB = 250, 50
NC, CE = 125, 3200
CAP = 32
WS_EPOCH = 0
WS_CELLS = 4096
CELLS_BYTES = NB * NC * 128
WS_OVF = 4 << 20
WS_OVFCNT = 6 << 20
WS_STAMP = 8 << 20
PADMARK = 0x003FFF00
TAGMASK = 0x7FC00000
BIG = 0x400000

CNT2, OVM, AGG = 0, 256, 512
PCNT = AGG + 50 * 544
OVN = PCNT + 1000
QT = PCNT + 1024
LIST = QT + 64 * 272
WQ = (LIST + 17408 + 255) // 256 * 256
WV = WQ + 32768
IMG = WV + 32768
LDS = IMG + 32768
assert LDS <= 163840

class G:
    def __init__(self):
        self.L = []; self.uid = 0
    def __call__(self, s=""):
        for ln in s.split("\n"):
            ln = ln.strip()
            if not ln: continue
            if ln.endswith(":") or ln.startswith("."): self.L.append(ln)
            else: self.L.append("    " + ln)
    def lab(self, p="L"):
        self.uid += 1
        return f"{p}_{self.uid}"
    def text(self): return "\n".join(self.L) + "\n"

def vr(a, n=1): return f"v{a}" if n == 1 else f"v[{a}:{a+n-1}]"
def sp(a): return f"s[{a}:{a+1}]"
def sq(a): return f"s[{a}:{a+3}]"

ST0 = 86
def gen(g, o):
    sel = o.stamps.split(",") if o.stamps else []
    def stamp(nm):
        if nm in sel:
            i = sel.index(nm)
            g(f"{'s_memtime' if o.cyc else 's_memrealtime'} s[{ST0+2*i}:{ST0+2*i+1}]")
    pX, pSRC, pDST, pWQ, pWV, pOUT, pDBG, pWS = 4, 6, 8, 10, 12, 14, 16, 18
    S_X, S_CELL, S_CST, S_OUT = 20, 24, 28, 32
    sW, sTag, sG, sRem, sFl, sN, sRound = 36, 37, 38, 39, 40, 42, 43
    sM, sVal, sRet, sSc, s68, sAM = 44, 52, 68, 70, 71, 72
    sO, sL, sLM, sT = 72, 75, 79, 80
    sLB = 3
    X = [12, 28]; A = 44; Ee = 60; CN = [64, 66]; AL = 68; AC = 72; AP = 80; AN = 84
    vLP, vM0, vM1, vFL, vLA, vGA, vQ, vT0, vT1, vFour, TT = 92, 93, 94, 95, 96, 97, 98, 99, 100, 101, 102
    NV = 108
    SC = " sc1" if o.sc == 1 else " sc0 sc1"
    g(f""".p2align 8
.globl {KN}_kernel
.type {KN}_kernel,@function
{KN}_kernel:
    s_cmp_ge_u32 s2, {NB}
    s_cbranch_scc1 k_end
    s_load_dwordx16 s[4:19], s[0:1], 0
    v_lshlrev_b32 v1, 4, v0
    v_lshrrev_b32 v{vT0}, 6, v0
    v_and_b32 v2, 15, v0
    v_readfirstlane_b32 s{sW}, v{vT0}
    v_bfe_u32 v3, v0, 4, 2
    s_mul_i32 s{sT}, s2, {CE*4}""")
    if o.stamps:
        for i in range(8): g(f"s_mov_b64 s[{ST0+2*i}:{ST0+2*i+1}], 0")
    g(f"""v_cmp_gt_u32 vcc, {CE//4}, v0
    v_add_u32 v{vT1}, s{sT}, v1
    s_mov_b64 {sp(sVal)}, vcc
    s_waitcnt lgkmcnt(0)""")
    stamp("start")
    g(f"""s_load_dword s{sTag}, {sp(pWS)}, {WS_EPOCH}
    s_cmp_ge_u32 s2, {NC}
    s_cbranch_scc1 k_noedge
    s_mov_b64 exec, {sp(sVal)}
    s_cbranch_execz k_noedge
    global_load_dwordx4 v[44:47], v{vT1}, {sp(pDST)}
    global_load_dwordx4 v[48:51], v{vT1}, {sp(pSRC)}
k_noedge:
    s_mov_b64 exec, -1
    s_mov_b32 s{S_X}, s{pX}
    s_mov_b32 s{S_X+1}, s{pX+1}
    s_mov_b32 s{S_X+2}, {N*256}
    s_mov_b32 s{S_X+3}, 0x20000
    s_mul_i32 s{sN}, s2, {NPB*256}""")
    def aux_loads():
        g(f"""s_sub_u32 s{sT}, s{sW}, 8
        s_lshl_b32 s{sT+1}, s{sT}, 12
        v_lshlrev_b32 v{vT1}, 2, v3
        v_xor_b32 v{vT1}, v{vT1}, v2
        v_lshlrev_b32 v{vT1}, 4, v{vT1}
        v_lshl_add_u32 v{vT1}, v3, 8, v{vT1}
        v_add_u32 v{vT1}, s{sT+1}, v{vT1}
        s_add_u32 m0, s{sT+1}, {WQ}
        v_lshlrev_b32 v{vT0}, 8, v2""")
        for k in range(4): g(f"global_load_lds_dwordx4 v{vT1}, {sp(pWQ)} offset:{1024*k}")
        g(f"""s_and_b32 s{sT+2}, s{sT}, 3
        s_lshl_b32 s{sT+2}, s{sT+2}, 12
        s_add_u32 s{sT+2}, s{sT+2}, s{sN}
        v_lshl_add_u32 v{vT0}, v3, 4, v{vT0}
        s_add_u32 m0, s{sT+1}, {WV}""")
        for s_ in range(4):
            g(f"buffer_load_dwordx4 {vr(X[0]+4*s_,4)}, v{vT0}, {sq(S_X)}, s{sT+2} offen offset:{64*s_}")
        for k in range(4): g(f"global_load_lds_dwordx4 v{vT1}, {sp(pWV)} offset:{1024*k}")
    def prefetch(n, first, nsl):
        g(f"""s_sub_u32 s{sT}, s2, {first}
        s_lshr_b32 s{sT}, s{sT}, 3
        s_mul_i32 s{sT}, s{sT}, {n*65536}
        s_add_u32 s{sT}, s{sT}, {nsl}
        v_lshlrev_b32 v{vT0}, 3, v1
        v_and_b32 v{vT0}, 0xffff, v{vT0}""")
        for k in range(n):
            g(f"buffer_load_dword v{TT+5}, v{vT0}, {sq(S_X)}, s{sT} offen")
            if k < n - 1: g(f"s_add_u32 s{sT}, s{sT}, 65536")
    g(f"""s_cmp_lt_u32 s2, {NC}
    s_cbranch_scc1 k_noaux
    s_cmp_lt_u32 s{sW}, 8
    s_cbranch_scc1 k_noaux""")
    aux_loads()
    if o.pf: prefetch(o.pf, NC, 0)
    g("k_noaux:")
    stamp("aux")
    for i in range(4): g(f"v_mov_b32 v{AN+i}, 0")
    for i in range(4): g(f"v_mov_b32 v{AN+4+i}, {PADMARK}")
    g(f"""ds_write_b128 v1, {vr(AN,4)}
    ds_write_b128 v1, {vr(AN,4)} offset:16384
    ds_write_b128 v1, {vr(AN+4,4)} offset:{LIST}
    s_cmp_lg_u32 s{sW}, 0
    s_cbranch_scc1 k_i1
    ds_write_b128 v1, {vr(AN+4,4)} offset:{LIST+16384}
k_i1:""")
    g(f"""s_mul_i32 s{sT}, s2, 16000
    s_add_u32 s{S_CST}, s{pWS}, {WS_CELLS}
    s_addc_u32 s{S_CST+1}, s{pWS+1}, 0
    s_mov_b32 s{S_CST+2}, {CELLS_BYTES}
    s_mov_b32 s{S_CST+3}, 0x20000
    s_add_u32 s{S_CELL}, s{S_CST}, s{sT}
    s_addc_u32 s{S_CELL+1}, s{S_CST+1}, 0
    s_mov_b32 s{S_CELL+2}, 16000
    s_mov_b32 s{S_CELL+3}, 0x20000
    s_add_u32 s{S_OUT}, s{pOUT}, s{sN}
    s_addc_u32 s{S_OUT+1}, s{pOUT+1}, 0
    s_mov_b32 s{S_OUT+2}, {NPB*256}
    s_mov_b32 s{S_OUT+3}, 0x20000
    v_and_b32 v{vT0}, 3, v0
    v_lshl_add_u32 v{vLP}, v3, 2, v{vT0}
    v_lshlrev_b32 v{vLP}, 4, v{vLP}
    v_and_b32 v{vT1}, 12, v0
    v_lshlrev_b32 v{vFL}, 1, v{vLP}
    v_lshl_add_u32 v{vFL}, v{vT1}, 1, v{vFL}
    v_mov_b32 v{vM0}, 0xffff
    v_and_b32 v{vM1}, 1, v0
    v_lshlrev_b32 v{vM1}, 4, v{vM1}
    v_lshlrev_b32 v{vM1}, v{vM1}, v{vM0}
    v_cmp_gt_u32 vcc, 2, v{vT0}
    v_mov_b32 v{vFour}, 4
    s_mov_b32 s{sM}, 0x000f000f
    v_cndmask_b32 v{vM0}, 0, v{vM1}, vcc
    v_cndmask_b32 v{vM1}, v{vM1}, 0, vcc
    s_mov_b32 s{sM+1}, 0x000f000f
    s_lshl_b64 {sp(sM+2)}, {sp(sM)}, 4
    s_lshl_b64 {sp(sM+4)}, {sp(sM)}, 8
    s_lshl_b64 {sp(sM+6)}, {sp(sM)}, 12
    s_mov_b32 s{sSc}, 0xbe0293ee
    s_movk_i32 s{s68}, 68
    s_mov_b32 s{sAM}, {PADMARK}
    s_mov_b32 s{sRound}, 0""")
    stamp("consts")
    g(f"""s_waitcnt lgkmcnt(0)""")
    stamp("epoch")
    g(f"""s_add_u32 s{sTag}, s{sTag}, 0x400000
    s_and_b32 s{sTag}, s{sTag}, {TAGMASK}
    s_cmp_ge_u32 s2, {NC}
    s_cbranch_scc1 k_cons""")
    for i in range(4): g(f"v_mov_b32 v{AN+i}, s{sTag}")
    g(f"""v_add_u32 v{vQ}, {IMG}, v1
    s_mov_b32 s{sT}, 85899346
    s_movk_i32 s{sT+1}, -50
    s_or_b32 s{sT+2}, s{sTag}, 0x80000000
    s_mov_b32 s{sT+3}, {IMG}
    ds_write_b128 v{vQ}, {vr(AN,4)}
    ds_write_b128 v{vQ}, {vr(AN,4)} offset:16384
    s_waitcnt lgkmcnt(0)""")
    stamp("img")
    g(f"""s_barrier""")
    stamp("ba")
    g(f"""s_mov_b64 exec, {sp(sVal)}
    s_cbranch_execz k_binned
    s_waitcnt vmcnt(0)""")
    stamp("edges")
    Dd, Ss, B4, Rk, Tm = 44, 48, 52, 56, 60
    for i in range(4):
        g(f"""v_mul_hi_u32 v{B4+i}, v{Dd+i}, s{sT}
        v_lshlrev_b32 v{B4+i}, 2, v{B4+i}
        ds_add_rtn_u32 v{Rk+i}, v{B4+i}, v{vFour} offset:{PCNT}""")
    for i in range(4):
        g(f"""v_lshl_add_u32 v{Ss+i}, v{Ss+i}, 6, v{Dd+i}
        v_lshl_add_u32 v{Ss+i}, v{Ss+i}, 2, s{sT+2}
        v_mad_i32_i24 v{Ss+i}, v{B4+i}, s{sT+1}, v{Ss+i}
        v_lshl_add_u32 v{Tm+i}, v{B4+i}, 5, s{sT+3}""")
    g("s_waitcnt lgkmcnt(0)")
    g(f"""v_max3_u32 v{vT0}, v{Rk}, v{Rk+1}, v{Rk+2}
    v_max_u32 v{vT0}, v{vT0}, v{Rk+3}
    v_cmp_le_u32 vcc, {CAP*4}, v{vT0}""")
    for i in range(4): g(f"v_add_u32 v{Tm+i}, v{Rk+i}, v{Tm+i}")
    g("s_cbranch_vccnz k_slow")
    for i in range(4): g(f"ds_write_b32 v{Tm+i}, v{Ss+i}")
    g(f"""k_binned:
    s_mov_b64 exec, -1
    v_mov_b32 v{vT0}, {OVN}
    v_lshrrev_b32 v{vT1}, 3, v0
    s_movk_i32 s{sT}, 16000
    v_mul_lo_u32 v{vT1}, v{vT1}, s{sT}
    v_and_b32 v{Tm}, 0x70, v1
    v_add_u32 v{vT1}, v{vT1}, v{Tm}
    s_lshl_b32 s{sT}, s2, 7
    s_add_u32 s{sT+1}, s{sT}, {128*16000}
    s_waitcnt lgkmcnt(0)""")
    stamp("binned")
    g(f"""s_barrier""")
    stamp("bb")
    g(f"""ds_read_b32 v{Tm}, v{vT0}
    ds_read_b128 v[44:47], v{vQ}
    ds_read_b128 v[48:51], v{vQ} offset:16384
    s_waitcnt lgkmcnt(2)
    v_cmp_ne_u32 vcc, 0, v{Tm}
    s_cbranch_vccnz k_flag
k_copy:
    s_waitcnt lgkmcnt(1)
    buffer_store_dwordx4 v[44:47], v{vT1}, {sq(S_CST)}, s{sT} offen{SC}
    s_waitcnt lgkmcnt(0)
    buffer_store_dwordx4 v[48:51], v{vT1}, {sq(S_CST)}, s{sT+1} offen{SC}""")
    stamp("copied")
    g(f"""s_cmp_lt_u32 s{sW}, 8
    s_cbranch_scc1 k_bc""")
    aux_loads()
    if o.pf2: prefetch(o.pf2, 0, 16 * o.pf * 65536)
    g(f"""s_waitcnt vmcnt({o.pf2})
    s_branch k_bc""")
    g(f"""k_cons:
    s_cmp_lt_u32 s{sW}, 8
    s_cbranch_scc1 k_bc
    s_waitcnt vmcnt({o.pf})
    s_cmp_lg_u32 s{sW}, 15
    s_cbranch_scc1 k_bc
    v_mov_b32 v{vT0}, 0
    s_mov_b64 exec, 1
    global_atomic_add v{vT0}, v{vFour}, {sp(pDBG)}
    s_mov_b64 exec, -1
k_bc:""")
    stamp("prebc")
    g("s_barrier")
    stamp("bc")
    g(f"""s_cmp_lt_u32 s{sW}, 8
    s_cbranch_scc1 k_sorter""")
    g(f"""s_bfe_u32 s{sT}, s{sW}, 0x10002
    s_lshl_b32 s{sT+1}, s{sT}, 3
    v_lshrrev_b32 v{vQ}, 2, v2
    v_and_b32 v{TT}, 3, v0
    v_add_u32 v{TT}, s{sT+1}, v{TT}
    v_lshlrev_b32 v{TT+1}, 2, v{vQ}
    v_xor_b32 v{TT}, v{TT}, v{TT+1}
    v_lshl_add_u32 v{vQ}, v3, 3, v{vQ}
    v_lshlrev_b32 v{vQ}, 8, v{vQ}
    v_lshl_add_u32 v{vQ}, v{TT}, 4, v{vQ}
    v_add_u32 v{vQ}, {WQ}, v{vQ}
    v_xor_b32 v{TT}, 64, v{vQ}""")
    WF = [28, 60]
    QD = [4, 92 - 92 + 0]
    def trq(jj):
        va = vQ if jj == 0 else TT
        for s_ in range(4):
            for T in range(2):
                for h in range(2):
                    g(f"ds_read_b64_tr_b16 {vr(WF[jj]+16*T+4*s_+2*h,2)}, v{va} offset:{s_*8192 + h*1024 + T*8}")
    trq(0)
    g(f"""s_and_b32 s{sT+1}, s{sW}, 3
    s_mul_i32 s{sT+1}, s{sT+1}, {16*272}
    s_lshl_b32 s{sT}, s{sT}, 7
    s_add_u32 s{sT}, s{sT}, s{sT+1}
    v_mul_u32_u24 v{vT0}, 272, v2
    v_lshl_add_u32 v{vT0}, v3, 4, v{vT0}
    v_add_u32 v{vT0}, s{sT}, v{vT0}
    s_waitcnt lgkmcnt(0)""")
    trq(1)
    for jj in range(2):
        if jj == 1: g("s_waitcnt lgkmcnt(1)")
        for s_ in range(4):
            for T in range(2):
                d = 4 + 4 * T
                cc = "0" if s_ == 0 else vr(d, 4)
                g(f"v_mfma_f32_16x16x32_bf16 {vr(d,4)}, {vr(WF[jj]+16*T+4*s_,4)}, {vr(X[0]+4*s_,4)}, {cc}")
        g("s_nop 6")
        for k in range(4):
            g(f"v_cvt_pk_bf16_f32 v{4+k}, v{4+2*k}, v{4+2*k+1}")
        g(f"ds_write_b128 v{vT0}, v[4:7] offset:{QT + jj*64}")
    def zero_main():
        for i in range(16): g(f"v_mov_b32 v{A+i}, 0")
        for i in range(8): g(f"v_mov_b32 v{AC+i}, 0")
    zero_main()
    stamp("qdone")
    g("s_branch k_b1")
    g("k_sorter:")
    zero_main()
    pA, pB = sVal, sVal + 2
    g(f"""s_mov_b64 {sp(pA)}, -1
    s_movk_i32 s{sT}, {16000-8192}
    v_cmp_gt_u32 {sp(pB)}, s{sT}, v1""")
    for i in range(4): g(f"v_mov_b32 v{8+i}, 0")
    g(f"""s_movk_i32 s{sT}, 8192
    s_mov_b32 s{sT+1}, {TAGMASK}
    s_mov_b32 s{sT+2}, {o.spin}
k_poll:
    s_mov_b64 exec, {sp(pA)}
    s_cbranch_execz k_p1
    buffer_load_dwordx4 v[4:7], v1, {sq(S_CELL)}, 0 offen{SC}
k_p1:
    s_mov_b64 exec, {sp(pB)}
    s_cbranch_execz k_p2
    buffer_load_dwordx4 v[8:11], v1, {sq(S_CELL)}, s{sT} offen{SC}
k_p2:
    s_mov_b64 exec, -1
    s_sub_u32 s{sT+2}, s{sT+2}, 1
    s_cbranch_scc1 k_polled
    s_waitcnt vmcnt(0)
    v_bitop3_b32 v{vT0}, v4, v5, s{sTag} bitop3:0x7e
    v_bitop3_b32 v{vT1}, v6, v7, s{sTag} bitop3:0x7e
    v_bitop3_b32 v{TT}, v8, v9, s{sTag} bitop3:0x7e
    v_bitop3_b32 v{TT+1}, v10, v11, s{sTag} bitop3:0x7e
    v_bitop3_b32 v{vT0}, v{vT0}, v{vT1}, s{sT+1} bitop3:0xa8
    v_bitop3_b32 v{TT}, v{TT}, v{TT+1}, s{sT+1} bitop3:0xa8
    v_cmp_ne_u32 {sp(pA)}, 0, v{vT0}
    v_cmp_ne_u32 vcc, 0, v{TT}
    s_and_b64 {sp(pB)}, {sp(pB)}, vcc
    s_or_b64 vcc, {sp(pA)}, {sp(pB)}
    s_cbranch_scc1 k_poll
k_polled:
    s_waitcnt vmcnt(0)""")
    stamp("polled")
    g(f"""v_or_b32 v{vT0}, v4, v8
    v_and_b32 v{vT0}, 2, v{vT0}
    v_cmp_ne_u32 vcc, 0, v{vT0}
    s_cbranch_vccnz k_mark
k_marked:""")
    for i in range(8): g(f"v_cmp_gt_i32 {sp(sVal+2*i)}, 0, v{4+i}")
    g("k_round:")
    Tn, Rn = X[0], X[0] + 8
    for i in range(8): g(f"v_and_b32 v{Tn+i}, 0xfc, v{4+i}")
    for i in range(8):
        g(f"s_mov_b64 exec, {sp(sVal+2*i)}\nds_add_rtn_u32 v{Rn+i}, v{Tn+i}, v{vFour} offset:{CNT2}")
    g(f"""s_mov_b64 exec, -1
k_b1:
    v_and_b32 v{vT0}, 63, v0
    v_lshlrev_b32 v{vT0}, 2, v{vT0}
    v_and_b32 v{vLA}, 12, v0
    v_lshlrev_b32 v{vGA}, 2, v{vLA}
    s_waitcnt lgkmcnt(0)
    s_barrier""")
    stamp("b1")
    c, inc = vT1, vT0
    g(f"""ds_read_b32 v{c}, v{vT0} offset:{CNT2}
    s_waitcnt lgkmcnt(0)
    v_add_u32 v{c}, 12, v{c}
    v_and_b32 v{c}, -16, v{c}
    s_nop 1
    v_add_u32_dpp v{inc}, v{c}, v{c} row_shr:1 row_mask:0xf bank_mask:0xf bound_ctrl:0
    s_nop 1
    v_add_u32_dpp v{inc}, v{inc}, v{inc} row_shr:2 row_mask:0xf bank_mask:0xf bound_ctrl:0
    s_nop 1
    v_add_u32_dpp v{inc}, v{inc}, v{inc} row_shr:4 row_mask:0xf bank_mask:0xf bound_ctrl:0
    s_nop 1
    v_add_u32_dpp v{inc}, v{inc}, v{inc} row_shr:8 row_mask:0xf bank_mask:0xf bound_ctrl:0
    s_nop 1
    v_add_u32_dpp v{inc}, v{inc}, v{inc} row_bcast:15 row_mask:0xa bank_mask:0xf
    s_nop 1
    v_add_u32_dpp v{inc}, v{inc}, v{inc} row_bcast:31 row_mask:0xc bank_mask:0xf
    s_cmp_ge_u32 s{sW}, 8
    v_sub_u32 v{c}, v{inc}, v{c}
    v_readlane_b32 s{sG}, v{inc}, 63
    s_cbranch_scc1 k_nosc""")
    On = X[1]
    for i in range(8): g(f"ds_bpermute_b32 v{On+i}, v{Tn+i}, v{c}")
    g("k_nosc:")
    g(f"""v_add_u32 v{inc}, v{inc}, v{c}
    v_lshlrev_b32 v{inc}, 3, v{inc}
    s_mul_i32 s{sT}, s{sW}, s{sG}
    s_add_u32 s{sT+1}, s{sT}, s{sG}
    v_cmp_le_u32 vcc, s{sT}, v{inc}
    v_cmp_le_u32 {sp(sFl)}, s{sT+1}, v{inc}
    s_ff1_i32_b64 s{sT}, vcc
    s_ff1_i32_b64 s{sT+1}, {sp(sFl)}
    v_readlane_b32 s{sT}, v{c}, s{sT}
    v_readlane_b32 s{sT+1}, v{c}, s{sT+1}
    s_cmp_ge_u32 s{sW}, 8
    s_cbranch_scc1 k_nosc2""")
    for half in range(2):
        g("s_waitcnt lgkmcnt(4)")
        for i in range(4 * half, 4 * half + 4): g(f"v_add_u32 v{On+i}, v{On+i}, v{Rn+i}")
        for i in range(4 * half, 4 * half + 4):
            g(f"s_mov_b64 exec, {sp(sVal+2*i)}\nds_write_b32 v{On+i}, v{4+i} offset:{LIST}")
        g("s_mov_b64 exec, -1")
    g(f"""k_nosc2:
    s_sub_u32 s{sRem}, s{sT+1}, s{sT}
    s_add_u32 s{sT}, s{sT}, {LIST}
    v_add_u32 v{vLA}, s{sT}, v{vLA}
    v_add_u32 v{vGA}, s{sT}, v{vGA}
    s_lshr_b32 s{sRem}, s{sRem}, 4
    s_sub_u32 s{sLB}, s{sRem}, 1
    s_and_b32 s{sLB}, s{sLB}, 3
    s_cmp_lt_u32 s{sLB}, 1
    s_cselect_b32 s{sL+1}, {BIG}, 0
    s_cmp_lt_u32 s{sLB}, 2
    s_cselect_b32 s{sL+2}, {BIG}, 0
    s_cmp_lt_u32 s{sLB}, 3
    s_cselect_b32 s{sL+3}, {BIG}, 0
    s_lshl_b32 s{sLB}, s{sLB}, 2
    s_lshl_b32 s{sLM}, 2, s{sLB}
    s_sub_u32 s{sLM}, s{sLM}, 1
    s_add_u32 s{sRem}, s{sRem}, 3
    s_lshr_b32 s{sRem}, s{sRem}, 2
    s_waitcnt lgkmcnt(0)
    s_barrier""")
    stamp("b2")
    def readE():
        g(f"ds_read2_b32 {vr(Ee,2)}, v{vLA} offset0:0 offset1:4\nds_read2_b32 {vr(Ee+2,2)}, v{vLA} offset0:8 offset1:12")
    def readCN(p):
        g(f"ds_read_u8 v{CN[p]}, v{vGA}\nds_read_u8 v{CN[p]+1}, v{vGA} offset:16")
    def adv():
        g(f"v_add_u32 v{vLA}, 64, v{vLA}\nv_add_u32 v{vGA}, 64, v{vGA}")
    def addr(t): return f"v_and_or_b32 v{Ee+t}, v{Ee+t}, s{sAM}, v{vLP}"
    def setO(k):
        g(f"s_cmp_eq_u32 s{sRem}, {k}")
        for t in range(1, 4): g(f"s_cselect_b32 s{sO+t}, s{sL+t}, 0")
    def loadX(p):
        for t in range(4):
            so = "0" if t == 0 else f"s{sO+t}"
            g(f"buffer_load_dwordx4 {vr(X[p]+4*t,4)}, v{Ee+t}, {sq(S_X)}, {so} offen")
    def readQ(p):
        g(f"v_mad_u32_u24 v{vQ}, v{CN[p]}, s{s68}, v{vLP}")
        for t in range(4):
            g(f"s_mov_b64 exec, {sp(sM+2*t)}\nds_read_b128 {vr(A+4*t,4)}, v{vQ} offset:{QT}")
        g("s_mov_b64 exec, -1")
    flush_sites = []
    def body(p, issue, qnext, vm, last, lastk=0):
        q = p ^ 1
        if issue: readE()
        g(f"s_waitcnt vmcnt({vm}) lgkmcnt({2 if issue else 0})")
        for t in range(4):
            cc = "0" if t == 0 else vr(AL, 4)
            g(f"v_mfma_f32_16x16x32_bf16 {vr(AL,4)}, {vr(A+4*t,4)}, {vr(X[p]+4*t,4)}, {cc}")
        g(f"v_cmp_ne_u32 {sp(sFl)}, v{CN[p]}, v{CN[p]+1}")
        if qnext: readQ(q)
        else: g("s_nop 7")
        if last: g(f"s_and_b32 s{sFl}, s{sFl}, s{sLM}\ns_bitset1_b32 s{sFl}, s{sLB}")
        if issue: setO(lastk)
        g(f"""v_add_f32_dpp v{vT0}, v{AL+1}, v{AL} quad_perm:[1,1,1,1] row_mask:0xf bank_mask:0xf
        v_add_f32_dpp v{vT0}, v{AL+2}, v{vT0} quad_perm:[2,2,2,2] row_mask:0xf bank_mask:0xf
        v_add_f32_dpp v{vT0}, v{AL+3}, v{vT0} quad_perm:[3,3,3,3] row_mask:0xf bank_mask:0xf
        v_mul_f32 v{vT0}, s{sSc}, v{vT0}
        v_exp_f32 v{vT0}, v{vT0}""")
        g("s_waitcnt lgkmcnt(4)" if issue else "s_nop 0")
        g(f"v_add_f32 v{vT0}, 1.0, v{vT0}\nv_rcp_f32 v{vT0}, v{vT0}")
        g(addr(0) if issue else "s_nop 0")
        g(f"v_cvt_pk_bf16_f32 v{AP}, v{vT0}, v{vT0}\nv_cvt_pk_bf16_f32 v{AP+1}, v{vT0}, v{vT0}")
        g(addr(1) + "\n" + addr(2) if issue else "s_nop 1")
        g(f"""v_permlane16_swap_b32 v{AP}, v{AP+1}
        v_mov_b32 v{AP+2}, v{AP}
        v_mov_b32 v{AP+3}, v{AP+1}""")
        g(addr(3) + "\ns_nop 0" if issue else "s_nop 1")
        g(f"""v_permlane32_swap_b32 v{AP}, v{AP+2}
        v_permlane32_swap_b32 v{AP+1}, v{AP+3}
        s_nop 0""")
        for t in range(4):
            g(f"""v_and_b32_dpp v{AN+2*t}, v{AP+t}, v{vM0} quad_perm:[0,0,0,0] row_mask:0xf bank_mask:0xf
            v_and_b32_dpp v{AN+2*t+1}, v{AP+t}, v{vM1} quad_perm:[0,0,0,0] row_mask:0xf bank_mask:0xf""")
        for t in range(4):
            lf, lb = g.lab("fl"), g.lab("fb")
            g(f"""v_mfma_f32_4x4x4_16b_bf16 {vr(AC,4)}, {vr(AN+2*t,2)}, {vr(X[p]+4*t,2)}, {vr(AC,4)}
            v_mfma_f32_4x4x4_16b_bf16 {vr(AC+4,4)}, {vr(AN+2*t,2)}, {vr(X[p]+4*t+2,2)}, {vr(AC+4,4)}
            s_bitcmp1_b32 s{sFl}, {4*t}
            s_cbranch_scc1 {lf}
            {lb}:""")
            flush_sites.append((lf, lb, CN[p], 4 * t))
        if issue:
            loadX(p); readCN(p); adv()
    g(f"""s_cmp_eq_u32 s{sRem}, 0
    s_cbranch_scc1 k_done""")
    readE(); readCN(0); adv(); setO(1)
    g("s_waitcnt lgkmcnt(2)")
    for t in range(4): g(addr(t))
    loadX(0)
    g(f"""s_cmp_eq_u32 s{sRem}, 1
    s_cbranch_scc1 k_one""")
    readE(); readCN(1); adv(); setO(2)
    g("s_waitcnt lgkmcnt(2)")
    for t in range(4): g(addr(t))
    loadX(1)
    readQ(0)
    g(f"""k_l0:
    s_cmp_lt_u32 s{sRem}, 3
    s_cbranch_scc1 k_t0""")
    body(0, True, True, 4, False, 3)
    g(f"""s_cmp_lt_u32 s{sRem}, 4
    s_cbranch_scc1 k_t1""")
    body(1, True, True, 4, False, 4)
    g(f"""s_sub_u32 s{sRem}, s{sRem}, 2
    s_branch k_l0
k_one:
    s_waitcnt lgkmcnt(0)""")
    readQ(0)
    g("s_branch k_t0_one\nk_t1:")
    body(1, False, True, 4, False)
    g("k_t0_one:")
    body(0, False, False, 0, True)
    g("s_branch k_done\nk_t0:")
    body(0, False, True, 4, False)
    body(1, False, False, 0, True)
    g("k_done:")
    stamp("main")
    g(f"""s_cmp_lg_u32 s2, {NB-1}
    s_cbranch_scc1 k_ne1
    v_mov_b32 v{vLA}, 0
    global_load_dword v{vGA}, v{vLA}, {sp(pDBG)}{SC}
k_ne1:""")
    g(f"""s_lshr_b32 s{sT}, s{sW}, 2
    s_lshl_b32 s{sT+1}, s{sT}, 2
    v_lshrrev_b32 v{vQ}, 2, v2
    v_and_b32 v{TT}, 3, v0
    v_add_u32 v{TT}, s{sT+1}, v{TT}
    v_lshlrev_b32 v{TT+1}, 2, v{vQ}
    v_xor_b32 v{TT}, v{TT}, v{TT+1}
    v_lshl_add_u32 v{vQ}, v3, 2, v{vQ}
    v_lshlrev_b32 v{vQ}, 8, v{vQ}
    v_lshl_add_u32 v{vQ}, v{TT}, 4, v{vQ}
    v_add_u32 v{vQ}, {WV}, v{vQ}""")
    for T in range(2):
        for s in range(4):
            for h in range(2):
                g(f"ds_read_b64_tr_b16 {vr(X[T]+4*s+2*h,2)}, v{vQ} offset:{s*8192 + h*4096 + T*8}")
    g(f"""s_and_b32 s{sT+2}, s{sW}, 3
    s_mul_i32 s{sT+1}, s{sT+2}, {16*544}
    v_mul_u32_u24 v{vQ}, 544, v2
    v_lshl_add_u32 v{vQ}, v3, 4, v{vQ}
    v_add_u32 v{vQ}, s{sT+1}, v{vQ}
    v_mov_b32 v{vT0}, 0
    s_lshl_b32 s{sT+2}, s{sT+2}, 12
    s_lshl_b32 s{sT}, s{sT}, 6
    s_add_u32 s{sT}, s{sT}, s{sT+2}
    v_lshlrev_b32 v{vT1}, 8, v2
    v_lshl_add_u32 v{vT1}, v3, 4, v{vT1}
    v_add_u32 v{vT1}, s{sT}, v{vT1}
    s_waitcnt lgkmcnt(0)
    s_barrier""")
    stamp("b3")
    g(f"""ds_read_b128 {vr(AN,4)}, v{vT0} offset:{OVM}""")
    for s in range(4):
        for h in range(2):
            g(f"ds_read_b128 {vr(A+8*s+4*h,4)}, v{vQ} offset:{AGG+s*128+h*64}")
    g(f"""s_waitcnt lgkmcnt(8)
    v_or3_b32 v{vT0}, v{AN}, v{AN+1}, v{AN+2}
    v_or_b32 v{vT0}, v{vT0}, v{AN+3}
    v_cmp_ne_u32 vcc, 0, v{vT0}
    s_cbranch_vccnz k_extra""")
    for s in range(4):
        g(f"s_waitcnt lgkmcnt({6-2*s})")
        b = A + 8 * s
        for k in range(4):
            g(f"v_cvt_pk_bf16_f32 v{b+k}, v{b+2*k}, v{b+2*k+1}")
        if s > 0:
            for T in range(2):
                d = AP if T == 0 else AN
                cc = "0" if s == 1 else vr(d, 4)
                g(f"v_mfma_f32_16x16x32_bf16 {vr(d,4)}, {vr(X[T]+4*(s-1),4)}, {vr(A+8*(s-1),4)}, {cc}")
    for T in range(2):
        d = AP if T == 0 else AN
        g(f"v_mfma_f32_16x16x32_bf16 {vr(d,4)}, {vr(X[T]+12,4)}, {vr(A+24,4)}, {vr(d,4)}")
    g(f"""s_nop 6
    v_cvt_pk_bf16_f32 v4, v{AP}, v{AP+1}
    v_cvt_pk_bf16_f32 v5, v{AP+2}, v{AP+3}
    v_cvt_pk_bf16_f32 v6, v{AN}, v{AN+1}
    v_cvt_pk_bf16_f32 v7, v{AN+2}, v{AN+3}
    buffer_store_dwordx4 v[4:7], v{vT1}, {sq(S_OUT)}, 0 offen""")
    stamp("stored")
    g(f"""s_cmp_lg_u32 s2, {NB-1}
    s_cbranch_scc1 k_fin
    s_cmp_lg_u32 s{sW}, 15
    s_cbranch_scc1 k_fin
    s_mov_b32 s{sT+2}, {o.spin}
k_ep:
    s_waitcnt vmcnt(0)
    v_readfirstlane_b32 s{sT}, v{vGA}
    s_cmp_ge_u32 s{sT}, {4*(NB-NC)}
    s_cbranch_scc1 k_ep2
    s_sub_u32 s{sT+2}, s{sT+2}, 1
    s_cbranch_scc1 k_ep2
    global_load_dword v{vGA}, v{vLA}, {sp(pDBG)}{SC}
    s_branch k_ep
k_ep2:
    v_mov_b32 v{vGA}, s{sTag}
    s_mov_b64 exec, 1
    global_store_dword v{vLA}, v{vGA}, {sp(pWS)} offset:{WS_EPOCH}
    s_mov_b64 exec, -1
k_fin:""")
    if o.stamps:
        g("s_waitcnt vmcnt(0)")
        stamp("end")
        g("s_waitcnt lgkmcnt(0)")
        l = g.lab("st")
        if o.dbgst:
            g(f"""v_cmp_eq_u32 vcc, {o.stw*64}, v0
            s_and_saveexec_b64 s[52:53], vcc
            s_cbranch_execz {l}
            s_sub_u32 s54, 0, s{ST0}
            v_mov_b32 v1, 0
            v_mov_b32 v2, s54
            v_mov_b32 v3, s{ST0+14}
            global_atomic_umax v1, v2, {sp(pDBG)} offset:4
            global_atomic_umax v1, v3, {sp(pDBG)} offset:8
            v_mov_b32 v3, s{ST0}
            global_atomic_umax v1, v3, {sp(pDBG)} offset:12
            s_cmp_lg_u32 s2, {o.dbgst}
            s_cbranch_scc1 {l}""")
            for i in range(8):
                g(f"s_sub_u32 s54, s{ST0+2*i}, s{ST0}\nv_mov_b32 v2, s54\nglobal_store_dword v1, v2, {sp(pDBG)} offset:{16+4*i}\ns_nop 1")
            g(f"v_mov_b32 v2, s{ST0}\nglobal_store_dword v1, v2, {sp(pDBG)} offset:48")
            g(f"{l}:\ns_endpgm")
            l = g.lab("st")
        g(f"""v_cmp_eq_u32 vcc, {o.stw*64}, v0
        s_and_saveexec_b64 s[52:53], vcc
        s_cbranch_execz {l}
        s_add_u32 s54, s{pWS}, {WS_STAMP}
        s_addc_u32 s55, s{pWS+1}, 0
        s_mul_i32 s56, s2, 64
        v_mov_b32 v1, s56""")
        for i in range(8):
            g(f"v_mov_b32 v2, s{ST0+2*i}\nv_mov_b32 v3, s{ST0+2*i+1}\nglobal_store_dwordx2 v1, v[2:3], s[54:55] offset:{8*i}\ns_nop 1")
        g(f"s_waitcnt vmcnt(0)\n{l}:")
    g("k_end:\ns_endpgm")
    for lf, lb, cn, lane in flush_sites:
        g(f"""{lf}:
        v_readlane_b32 s{sN}, v{cn}, {lane}
        s_call_b64 {sp(sRet)}, k_flush
        s_branch {lb}""")
    g(f"k_flush:\ns_nop 0\ns_mulk_i32 s{sN}, 136")
    for k in range(4):
        g(f"v_add_f32_dpp v{TT+k}, v{AC+k}, v{AC+k} row_ror:8 row_mask:0xf bank_mask:0x3")
    for k in range(4):
        g(f"v_add_f32_dpp v{TT+k}, v{AC+4+k}, v{AC+4+k} row_ror:8 row_mask:0xf bank_mask:0xc")
    g(f"v_add_u32 v{vT1}, s{sN}, v{vFL}")
    for k in range(2):
        g(f"v_add_f32_dpp v{TT+4+k}, v{TT+k}, v{TT+k} row_shl:4 row_mask:0xf bank_mask:0x5")
    for k in range(2):
        g(f"v_add_f32_dpp v{TT+4+k}, v{TT+2+k}, v{TT+2+k} row_shr:4 row_mask:0xf bank_mask:0xa")
    g(f"s_cmp_lg_u32 s{sRound}, 0\ns_cbranch_scc1 k_flush2\nk_flush3:")
    g(f"ds_write_b64 v{vT1}, {vr(TT+4,2)} offset:{AGG}")
    for k in range(8): g(f"v_mov_b32 v{AC+k}, 0")
    g(f"""s_setpc_b64 {sp(sRet)}
k_flush2:
    ds_read_b64 {vr(TT,2)}, v{vT1} offset:{AGG}
    s_waitcnt lgkmcnt(0)
    v_add_f32 v{TT+4}, v{TT+4}, v{TT}
    v_add_f32 v{TT+5}, v{TT+5}, v{TT+1}
    s_branch k_flush3""")
    S_OV = 60
    def build_ovf(d):
        g(f"""s_add_u32 s{d}, s{pWS}, {WS_OVF}
        s_addc_u32 s{d+1}, s{pWS+1}, 0
        s_mov_b32 s{d+2}, {(WS_OVFCNT - WS_OVF) + 4096}
        s_mov_b32 s{d+3}, 0x20000""")
    g(f"k_slow:")
    build_ovf(S_OV)
    g(f"""s_mul_i32 s{sT+4}, s2, {CE*4}
    s_mov_b32 s{sT+5}, {TAGMASK}
    v_mov_b32 v{vT0}, {OVN}""")
    for i in range(4):
        l = g.lab("ov")
        g(f"""s_mov_b64 exec, {sp(sVal)}
        v_cmp_gt_u32 vcc, {CAP*4}, v{Rk+i}
        s_and_b64 exec, {sp(sVal)}, vcc
        ds_write_b32 v{Tm+i}, v{Ss+i}
        s_andn2_b64 exec, {sp(sVal)}, vcc
        s_cbranch_execz {l}
        ds_add_rtn_u32 v{vT1}, v{vT0}, v{vFour}
        v_lshlrev_b32 v{TT}, 20, v{B4+i}
        v_bfi_b32 v{TT}, s{sT+5}, v{TT}, v{Ss+i}
        s_waitcnt lgkmcnt(0)
        buffer_store_dword v{TT}, v{vT1}, {sq(S_OV)}, s{sT+4} offen{SC}
        {l}:""")
    g(f"""s_mov_b64 exec, -1
    s_waitcnt vmcnt(0)
    s_branch k_binned""")
    g(f"""k_flag:
    s_waitcnt lgkmcnt(0)
    s_barrier""")
    build_ovf(S_OV)
    g(f"""v_cmp_gt_u32 vcc, {NB}, v0
    s_mov_b64 exec, vcc
    v_lshlrev_b32 v{TT}, 2, v0
    ds_read_b32 v{TT+1}, v{TT} offset:{PCNT}
    v_lshlrev_b32 v{TT}, 7, v0
    v_add_u32 v{TT}, {IMG}, v{TT}
    v_mov_b32 v{TT+2}, 2
    s_waitcnt lgkmcnt(0)
    v_cmp_lt_u32 vcc, {CAP*4}, v{TT+1}
    s_and_b64 exec, exec, vcc
    ds_or_b32 v{TT}, v{TT+2}
    s_mov_b64 exec, -1
    s_lshl_b32 s{sT+4}, s2, 2
    s_add_u32 s{sT+4}, s{sT+4}, {WS_OVFCNT - WS_OVF}
    v_mov_b32 v{TT}, 0
    buffer_store_dword v{Tm}, v{TT}, {sq(S_OV)}, s{sT+4} offen{SC}
    s_waitcnt vmcnt(0) lgkmcnt(0)
    s_barrier
    ds_read_b128 v[44:47], v{vQ}
    ds_read_b128 v[48:51], v{vQ} offset:16384
    s_branch k_copy""")
    g("k_mark:")
    for h in range(2):
        e = 4 + 4 * h
        g(f"""v_and_b32 v{vT0}, 2, v{e}
        v_cmp_ne_u32 vcc, 0, v{vT0}
        s_mov_b64 exec, vcc
        v_and_b32 v{e}, -3, v{e}
        v_lshrrev_b32 v{vT0}, 3, v0
        v_add_u32 v{vT0}, {64*h}, v{vT0}
        v_lshrrev_b32 v{vT1}, 5, v{vT0}
        v_lshlrev_b32 v{vT1}, 2, v{vT1}
        v_and_b32 v{vT0}, 31, v{vT0}
        v_lshlrev_b32 v{vT0}, v{vT0}, 1
        ds_or_b32 v{vT1}, v{vT0} offset:{OVM}
        s_mov_b64 exec, -1""")
    g("s_branch k_marked")
    sMap = 52
    g(f"""k_extra:
    s_waitcnt lgkmcnt(0)
    v_readfirstlane_b32 s{sMap}, v{AN}
    v_readfirstlane_b32 s{sMap+1}, v{AN+1}
    v_readfirstlane_b32 s{sMap+2}, v{AN+2}
    v_readfirstlane_b32 s{sMap+3}, v{AN+3}
    s_barrier
    s_cmp_lg_u64 {sp(sMap)}, 0
    s_cbranch_scc1 k_x1
    s_ff1_i32_b64 s{sT}, {sp(sMap+2)}
    s_bitset0_b64 {sp(sMap+2)}, s{sT}
    s_add_u32 s{sT}, s{sT}, 64
    s_branch k_x2
k_x1:
    s_ff1_i32_b64 s{sT}, {sp(sMap)}
    s_bitset0_b64 {sp(sMap)}, s{sT}
k_x2:""")
    build_ovf(S_CST)
    g(f"""s_lshl_b32 s{sG}, s{sT}, 2
    s_add_u32 s{sG}, s{sG}, {WS_OVFCNT - WS_OVF}
    v_mov_b32 v{vT0}, 0
    buffer_load_dword v{vT1}, v{vT0}, {sq(S_CST)}, s{sG} offen{SC}
    s_mul_i32 s{sG}, s{sT}, {CE*4}
    buffer_load_dwordx4 v[4:7], v1, {sq(S_CST)}, s{sG} offen{SC}
    s_add_u32 s{sG}, s{sG}, 8192
    buffer_load_dwordx4 v[8:11], v1, {sq(S_CST)}, s{sG} offen{SC}""")
    for i in range(4): g(f"v_mov_b32 v{AN+4+i}, {PADMARK}")
    g(f"""ds_write_b128 v1, {vr(AN+4,4)} offset:{LIST}
    s_cmp_lg_u32 s{sW}, 0
    s_cbranch_scc1 k_x3
    ds_write_b128 v1, {vr(AN+4,4)} offset:{LIST+16384}
    v_lshrrev_b32 v{TT}, 2, v1
    ds_write_b32 v{TT}, v{vT0} offset:{CNT2}
    v_mov_b32 v{AN}, s{sMap}
    v_mov_b32 v{AN+1}, s{sMap+1}
    v_mov_b32 v{AN+2}, s{sMap+2}
    v_mov_b32 v{AN+3}, s{sMap+3}
    ds_write_b128 v{vT0}, {vr(AN,4)} offset:{OVM}
k_x3:
    s_mov_b32 s{sRound}, 1
    s_add_u32 s{sT}, s2, 512""")
    zero_main()
    g("s_waitcnt vmcnt(0)")
    for i in range(8):
        g(f"""v_lshrrev_b32 v{AP}, 22, v{4+i}
        v_cmp_eq_u32 vcc, s{sT}, v{AP}
        v_add_u32 v{AP+1}, {(i&3)*4 + (i>>2)*8192}, v1
        v_cmp_lt_u32 {sp(sVal+2*i)}, v{AP+1}, v{vT1}
        s_and_b64 {sp(sVal+2*i)}, {sp(sVal+2*i)}, vcc""")
    g(f"""s_waitcnt lgkmcnt(0)
    s_barrier
    s_cmp_lt_u32 s{sW}, 8
    s_cbranch_scc1 k_round
    s_branch k_b1""")
    return NV

def main():
    ap = argparse.ArgumentParser()
    ap.add_argument("-o", default="cdna_kernels/" + KN + ".s")
    ap.add_argument("--stamps", default="")
    ap.add_argument("--cyc", action="store_true")
    ap.add_argument("--stw", type=int, default=0)
    ap.add_argument("--dbgst", type=int, default=0)
    ap.add_argument("--pf", type=int, default=2)
    ap.add_argument("--pf2", type=int, default=0)
    ap.add_argument("--sc", type=int, default=1)
    ap.add_argument("--spin", type=int, default=200000)
    o = ap.parse_args()
    g = G()
    nv = gen(g, o)
    head = f"""; featgraph: fused kernel. producers bucket edges by dst into tagged cells (d_ws), every workgroup then
; @launch grid=({NB},1,1) block=(1024,1,1) lds={LDS}
.amdgcn_target "amdgcn-amd-amdhsa--gfx950"
.text
"""
    acc = (nv + 3) // 4 * 4
    tail = f""".section .rodata,"a"
.p2align 6
.amdhsa_kernel {KN}_kernel
  .amdhsa_next_free_vgpr {nv}
  .amdhsa_next_free_sgpr 102
  .amdhsa_accum_offset {acc}
  .amdhsa_group_segment_fixed_size 0
  .amdhsa_kernarg_size 64
  .amdhsa_user_sgpr_count 2
  .amdhsa_user_sgpr_kernarg_segment_ptr 1
  .amdhsa_system_sgpr_workgroup_id_x 1
.end_amdhsa_kernel
"""
    open(o.o, "w").write(head + g.text() + tail)
main()
```

```python
import sys, argparse

KN = "standalone__kernel_systems_refs_featgraph__graph"
N, E, D = 12500, 400000, 128
NB, NPB = 250, 50
NC, CE = 125, 3200
CAP = 32
WS_EPOCH = 0
WS_CELLS = 4096
CELLS_BYTES = NB * NC * 128
WS_OVF = 4 << 20
WS_OVFCNT = 6 << 20
WS_STAMP = 8 << 20
PADMARK = 0x003FFF00
TAGMASK = 0x7FC00000
BIG = 0x400000
IST = 144

CNT2, OVM, PCNT = 0, 256, 512
AUXC = 272
SRTC = 276
OVN = PCNT + 1000
AGG = PCNT + 1024
QT = AGG + 50 * 544
LIST = QT + 50 * 272
WQ = (LIST + 17408 + 255) // 256 * 256
WV = WQ + 32768
IMG = WV + 32768
LDS = IMG + 256 * IST
assert LDS <= 163840 and LIST % 16 == 0 and LIST + 16384 < 65536

class G:
    def __init__(self):
        self.L = []; self.uid = 0
    def __call__(self, s=""):
        for ln in s.split("\n"):
            ln = ln.strip()
            if not ln: continue
            if ln.endswith(":") or ln.startswith("."): self.L.append(ln)
            else: self.L.append("    " + ln)
    def lab(self, p="L"):
        self.uid += 1
        return f"{p}_{self.uid}"
    def text(self): return "\n".join(self.L) + "\n"

def vr(a, n=1): return f"v{a}" if n == 1 else f"v[{a}:{a+n-1}]"
def sp(a): return f"s[{a}:{a+1}]"
def sq(a): return f"s[{a}:{a+3}]"

ST0 = 86
def gen(g, o):
    DP = o.depth
    sel = o.stamps.split(",") if o.stamps else []
    def stamp(nm):
        if nm in sel:
            i = sel.index(nm)
            g(f"{'s_memtime' if o.cyc else 's_memrealtime'} s[{ST0+2*i}:{ST0+2*i+1}]")
    pX, pSRC, pDST, pWQ, pWV, pOUT, pDBG, pWS = 4, 6, 8, 10, 12, 14, 16, 18
    S_X, S_CELL, S_CST, S_OUT = 20, 24, 28, 32
    sW, sTag, sG, sRem, sFl, sN, sRound = 36, 37, 38, 39, 40, 42, 43
    sM, sVal, sRet, sSc, s68, sAM = 44, 52, 68, 70, 71, 72
    sO, sL, sLM, sT = 72, 75, 79, 80
    sLB = 3
    sEv, sFA, sFO = 0, 1, 85
    X = [12 + 16 * p for p in range(DP)]
    b = 12 + 16 * DP
    A = b; Ee = b + 16; CN = [b + 20 + 2 * p for p in range(DP)]
    b = (b + 20 + 2 * DP + 3) // 4 * 4
    AL = b; AC = b + 4; AP = b + 12; AN = b + 16
    b += 24
    vLP, vM0, vM1, vFL, vLA, vGA, vQ, vT0, vT1, vFour = range(b, b + 10)
    TT = b + 10
    NV = TT + 6
    assert NV <= 128 and TT % 2 == 0
    SC = " sc1"
    isprod = f"s_cmp_lt_u32 s2, {NC}"
    g(f""".p2align 8
.globl {KN}_kernel
.type {KN}_kernel,@function
{KN}_kernel:
    s_cmp_ge_u32 s2, {NB}
    s_cbranch_scc1 k_end
    s_load_dwordx16 s[4:19], s[0:1], 0
    v_lshlrev_b32 v1, 4, v0
    v_lshrrev_b32 v{vT0}, 6, v0
    v_and_b32 v2, 15, v0
    v_readfirstlane_b32 s{sW}, v{vT0}
    v_bfe_u32 v3, v0, 4, 2
    s_mul_i32 s{sT}, s2, {CE*4}""")
    if o.stamps:
        for i in range(8): g(f"s_mov_b64 s[{ST0+2*i}:{ST0+2*i+1}], 0")
    Dd, Ss, B4, Rk, Tm = 12, 20, 28, 36, 44
    g(f"""v_cmp_gt_u32 vcc, {CE//8}, v0
    v_add_u32 v{vT1}, s{sT}, v1
    v_add_u32 v{vQ}, {CE*2}, v{vT1}
    s_mov_b64 {sp(sVal)}, vcc
    s_waitcnt lgkmcnt(0)""")
    stamp("start")
    def w_addr():
        g(f"""s_sub_u32 s{sT}, s{sW}, 8
        s_lshl_b32 s{sT+1}, s{sT}, 12
        v_lshlrev_b32 v{vLA}, 1, v3
        v_xor_b32 v{vLA}, v{vLA}, v2
        v_lshlrev_b32 v{vLA}, 4, v{vLA}
        v_lshl_add_u32 v{vLA}, v3, 8, v{vLA}
        v_add_u32 v{vLA}, s{sT+1}, v{vLA}
        v_xor_b32 v{vGA}, 0x80, v{vLA}""")
    def wq_loads():
        w_addr()
        g(f"s_add_u32 m0, s{sT+1}, {WQ}\ns_nop 0")
        for k in range(4): g(f"global_load_lds_dwordx4 v{vLA if k < 2 else vGA}, {sp(pWQ)} offset:{1024*k}")
    def x_loads():
        g(f"""s_sub_u32 s{sT}, s{sW}, 8
        s_and_b32 s{sT+2}, s{sT}, 1
        s_lshl_b32 s{sT+2}, s{sT+2}, 3
        v_add_u32 v{vT0}, s{sT+2}, v3
        v_xor_b32 v{vT0}, v{vT0}, v2
        v_lshlrev_b32 v{vT0}, 4, v{vT0}
        v_lshl_add_u32 v{vT0}, v3, 8, v{vT0}
        v_xor_b32 v{vT1}, 64, v{vT0}
        s_lshl_b32 s{sT+2}, s{sT}, 11
        s_add_u32 m0, s{sT+2}, {WV}
        s_add_u32 s{sT+2}, s{sT+2}, s{sN}
        buffer_load_dwordx4 v{vT0}, {sq(S_X)}, s{sT+2} offen lds
        buffer_load_dwordx4 v{vT1}, {sq(S_X)}, s{sT+2} offen offset:1024 lds""")
    def wv_loads():
        w_addr()
        g(f"s_add_u32 m0, s{sT+1}, {WV}\ns_nop 0")
        for k in range(4): g(f"global_load_lds_dwordx4 v{vLA if k % 2 == 0 else vGA}, {sp(pWV)} offset:{1024*k}")
    def prefetch(nw, idx_first, base):
        l = g.lab("pf")
        g(f"""s_sub_u32 s{sT}, s{sW}, 8
        s_cmp_ge_u32 s{sT}, {nw}
        s_cselect_b32 s{sT+1}, {BIG}, 0
        s_lshl_b32 s{sT}, s{sT}, 13
        s_add_u32 s{sT}, s{sT}, s{sT+1}
        s_add_u32 s{sT}, s{sT}, {base}
        s_sub_u32 s{sT+1}, s2, {idx_first}
        s_lshr_b32 s{sT+1}, s{sT+1}, 3
        s_mul_i32 s{sT+1}, s{sT+1}, {nw*8192}
        s_add_u32 s{sT}, s{sT}, s{sT+1}
        v_and_b32 v{vT0}, 63, v0
        v_lshlrev_b32 v{vT0}, 7, v{vT0}
        buffer_load_dword v{TT+5}, v{vT0}, {sq(S_X)}, s{sT} offen""")
    g(f"""s_load_dword s{sTag}, {sp(pWS)}, {WS_EPOCH}
    s_mov_b32 s{S_X}, s{pX}
    s_mov_b32 s{S_X+1}, s{pX+1}
    s_mov_b32 s{S_X+2}, {N*256}
    s_mov_b32 s{S_X+3}, 0x20000
    s_mul_i32 s{sN}, s2, {NPB*256}
    {isprod}
    s_cbranch_scc0 k_noedge
    s_mov_b64 exec, {sp(sVal)}
    s_cbranch_execz k_noedge
    global_load_dwordx4 {vr(Dd,4)}, v{vT1}, {sp(pDST)}{o.edgeflag}
    global_load_dwordx4 {vr(Dd+4,4)}, v{vQ}, {sp(pDST)}{o.edgeflag}
    global_load_dwordx4 {vr(Ss,4)}, v{vT1}, {sp(pSRC)}{o.edgeflag}
    global_load_dwordx4 {vr(Ss+4,4)}, v{vQ}, {sp(pSRC)}{o.edgeflag}
""")
    npfa = 0
    g("k_noedge:\ns_mov_b64 exec, -1")
    stamp("aux")
    for i in range(4): g(f"v_mov_b32 v{AN+i}, 0")
    g(f"""s_cmp_ge_u32 s{sW}, 2
    s_cbranch_scc1 k_i0
    ds_write_b128 v1, {vr(AN,4)}
k_i0:
    s_cmp_lt_u32 s{sW}, 8
    s_cbranch_scc1 k_i1
    {isprod}
    s_cbranch_scc1 k_i1""")
    wq_loads()
    g("k_i1:")
    g(f"""s_mul_i32 s{sT}, s2, 16000
    s_add_u32 s{S_CST}, s{pWS}, {WS_CELLS}
    s_addc_u32 s{S_CST+1}, s{pWS+1}, 0
    s_mov_b32 s{S_CST+2}, {CELLS_BYTES}
    s_mov_b32 s{S_CST+3}, 0x20000
    s_add_u32 s{S_CELL}, s{S_CST}, s{sT}
    s_addc_u32 s{S_CELL+1}, s{S_CST+1}, 0
    s_mov_b32 s{S_CELL+2}, 16000
    s_mov_b32 s{S_CELL+3}, 0x20000
    s_add_u32 s{S_OUT}, s{pOUT}, s{sN}
    s_addc_u32 s{S_OUT+1}, s{pOUT+1}, 0
    s_mov_b32 s{S_OUT+2}, {NPB*256}
    s_mov_b32 s{S_OUT+3}, 0x20000
    v_and_b32 v{vT0}, 3, v0
    v_lshl_add_u32 v{vLP}, v3, 2, v{vT0}
    v_lshlrev_b32 v{vLP}, 4, v{vLP}
    v_and_b32 v{vT1}, 12, v0
    v_lshlrev_b32 v{vFL}, 1, v{vLP}
    v_lshl_add_u32 v{vFL}, v{vT1}, 1, v{vFL}
    v_mov_b32 v{vM0}, 0xffff
    v_and_b32 v{vM1}, 1, v0
    v_lshlrev_b32 v{vM1}, 4, v{vM1}
    v_lshlrev_b32 v{vM1}, v{vM1}, v{vM0}
    v_cmp_gt_u32 vcc, 2, v{vT0}
    v_mov_b32 v{vFour}, 4
    s_mov_b32 s{sM}, 0x000f000f
    v_cndmask_b32 v{vM0}, 0, v{vM1}, vcc
    v_cndmask_b32 v{vM1}, v{vM1}, 0, vcc
    s_mov_b32 s{sM+1}, 0x000f000f
    s_lshl_b64 {sp(sM+2)}, {sp(sM)}, 4
    s_lshl_b64 {sp(sM+4)}, {sp(sM)}, 8
    s_lshl_b64 {sp(sM+6)}, {sp(sM)}, 12
    s_mov_b32 s{sSc}, 0xbe0293ee
    s_movk_i32 s{s68}, 68
    s_mov_b32 s{sAM}, {PADMARK}
    s_mov_b32 s{sRound}, 0
    v_lshrrev_b32 v{vT0}, 3, v0
    v_mul_u32_u24 v{vQ}, {IST}, v{vT0}
    v_and_b32 v{vT1}, 0x70, v1
    v_add_u32 v{vQ}, v{vQ}, v{vT1}
    v_add_u32 v{vQ}, {IMG}, v{vQ}""")
    stamp("consts")
    g("s_waitcnt lgkmcnt(0)")
    stamp("epoch")
    g(f"""s_add_u32 s{sTag}, s{sTag}, 0x400000
    s_and_b32 s{sTag}, s{sTag}, {TAGMASK}
    {isprod}
    s_cbranch_scc0 k_cons""")
    for i in range(4): g(f"v_mov_b32 v{AN+i}, s{sTag}")
    g(f"""s_movk_i32 s{sT+4}, 16000
    v_mad_u32_u24 v{vT1}, v{vT0}, s{sT+4}, v{vT1}
    s_mov_b32 s{sT}, 85899346
    s_movk_i32 s{sT+1}, -50
    s_or_b32 s{sT+2}, s{sTag}, 0x80000000
    s_mov_b32 s{sT+3}, {IMG}
    ds_write_b128 v{vQ}, {vr(AN,4)}
    ds_write_b128 v{vQ}, {vr(AN,4)} offset:{128*IST}
    v_mov_b32 v{TT}, {IST//4}
    s_cmp_lt_u32 s{sW}, 8
    s_cbranch_scc1 k_px""")
    x_loads()
    g("""k_px:
    s_waitcnt lgkmcnt(0)""")
    stamp("img")
    g("s_barrier")
    stamp("ba")
    def ssync(k):
        l = g.lab("ss")
        g(f"""v_mov_b32 v{TT+3}, 0
        s_mov_b64 exec, 1
        ds_add_u32 v{TT+3}, v{vFour} offset:{SRTC}
        s_mov_b64 exec, -1
        {l}:
        ds_read_b32 v{TT+4}, v{TT+3} offset:{SRTC}
        s_waitcnt lgkmcnt(0)
        v_cmp_gt_u32 vcc, {32*k}, v{TT+4}
        s_cbranch_vccnz {l}""")
    g(f"""s_cmp_ge_u32 s{sW}, 8
    s_cbranch_scc1 k_auxp
k_bin:
    s_mov_b64 exec, {sp(sVal)}
    s_cbranch_execz k_binned
    s_waitcnt vmcnt(2)""")
    stamp("edges")
    for i in range(8):
        g(f"""v_mul_hi_u32 v{B4+i}, v{Dd+i}, s{sT}
        v_lshlrev_b32 v{B4+i}, 2, v{B4+i}
        ds_add_rtn_u32 v{Rk+i}, v{B4+i}, v{vFour} offset:{PCNT}""")
    g("s_waitcnt vmcnt(0)")
    for i in range(8):
        g(f"""v_lshl_add_u32 v{Ss+i}, v{Ss+i}, 6, v{Dd+i}
        v_lshl_add_u32 v{Ss+i}, v{Ss+i}, 2, s{sT+2}
        v_mad_i32_i24 v{Ss+i}, v{B4+i}, s{sT+1}, v{Ss+i}
        v_mad_u32_u24 v{Tm+i}, v{B4+i}, v{TT}, s{sT+3}""")
    g("s_waitcnt lgkmcnt(0)")
    g(f"""v_max3_u32 v{vT0}, v{Rk}, v{Rk+1}, v{Rk+2}
    v_max3_u32 v{vT0}, v{vT0}, v{Rk+3}, v{Rk+4}
    v_max3_u32 v{vT0}, v{vT0}, v{Rk+5}, v{Rk+6}
    v_max_u32 v{vT0}, v{vT0}, v{Rk+7}
    v_cmp_le_u32 vcc, {CAP*4}, v{vT0}""")
    for i in range(8): g(f"v_add_u32 v{Tm+i}, v{Rk+i}, v{Tm+i}")
    g("s_cbranch_vccnz k_slow")
    for i in range(8): g(f"ds_write_b32 v{Tm+i}, v{Ss+i}")
    g(f"""k_binned:
    s_mov_b64 exec, -1
    v_mov_b32 v{vT0}, {OVN}
    s_lshl_b32 s{sT}, s2, 7
    s_add_u32 s{sT+1}, s{sT}, {64*16000}
    s_add_u32 s{sT+2}, s{sT}, {128*16000}
    s_add_u32 s{sT+3}, s{sT}, {192*16000}
    s_waitcnt lgkmcnt(0)""")
    stamp("binned")
    ssync(1)
    stamp("bb")
    def img_reads():
        for k in range(4): g(f"ds_read_b128 {vr(12+4*k,4)}, v{vQ} offset:{64*k*IST}")
    g(f"ds_read_b32 v{Tm}, v{vT0}")
    img_reads()
    g(f"""s_waitcnt lgkmcnt(4)
    v_cmp_ne_u32 vcc, 0, v{Tm}
    s_cbranch_vccnz k_flag
k_copy:""")
    if o.partial:
        g(f"s_mov_b32 s{sVal+2}, 0x01010101\ns_mov_b32 s{sVal+3}, 0x01010101")
    for k in range(4):
        g(f"s_waitcnt lgkmcnt({3-k})")
        if o.partial:
            g(f"""v_cmp_gt_i32 vcc, 0, v{12+4*k+3}
            s_lshl_b64 vcc, vcc, 1
            s_or_b64 exec, vcc, {sp(sVal+2)}""")
        g(f"buffer_store_dwordx4 {vr(12+4*k,4)}, v{vT1}, {sq(S_CST)}, s{sT+k} offen{o.stflag}")
        if o.partial: g("s_mov_b64 exec, -1")
    stamp("copied")
    if "drained" in sel:
        g("s_waitcnt vmcnt(0)")
        stamp("drained")
    g("s_branch k_sorter")
    g(f"""k_cons:
    s_barrier
    s_cmp_ge_u32 s{sW}, 8
    s_cbranch_scc1 k_aux0
    s_cmp_lg_u32 s{sW}, 7
    s_cbranch_scc1 k_sorter
    v_mov_b32 v{vT0}, 0
    s_mov_b64 exec, 1
    global_atomic_add v{vT0}, v{vFour}, {sp(pDBG)}
    s_mov_b64 exec, -1
    s_branch k_sorter
k_auxp:""")
    wq_loads()
    g("s_waitcnt vmcnt(0)\ns_branch k_aux1\nk_aux0:")
    x_loads()
    npf = 0
    for k in range(0, o.pfa, 8):
        prefetch(min(8, o.pfa - k), NC, 16 * k * 8192); npf += 1
    g(f"s_waitcnt vmcnt({npf})\nk_aux1:")
    stamp("prebc")
    g(f"""v_mov_b32 v{vT0}, 0
    s_mov_b64 exec, 1
    ds_add_u32 v{vT0}, v{vFour} offset:{AUXC}
    s_mov_b64 exec, -1
k_as:
    ds_read_b32 v{vT1}, v{vT0} offset:{AUXC}
    s_waitcnt lgkmcnt(0)
    v_cmp_gt_u32 vcc, 32, v{vT1}
    s_cbranch_vccnz k_as""")
    stamp("bc")
    if not o.wvb1: wv_loads()
    g(f"""s_bfe_u32 s{sT}, s{sW}, 0x10002
    s_lshl_b32 s{sT+1}, s{sT}, 3
    v_lshrrev_b32 v{vQ}, 2, v2
    v_bfe_u32 v{TT}, v0, 1, 1
    v_add_u32 v{TT}, s{sT+1}, v{TT}
    v_and_b32 v{TT+1}, 1, v3
    v_lshl_add_u32 v{TT+1}, v{TT+1}, 2, v{vQ}
    v_lshlrev_b32 v{TT+1}, 1, v{TT+1}
    v_xor_b32 v{TT}, v{TT}, v{TT+1}
    v_lshl_add_u32 v{vQ}, v3, 3, v{vQ}
    v_lshlrev_b32 v{vQ}, 8, v{vQ}
    v_lshl_add_u32 v{vQ}, v{TT}, 4, v{vQ}
    v_and_b32 v{TT}, 1, v0
    v_lshl_add_u32 v{vQ}, v{TT}, 3, v{vQ}
    v_add_u32 v{vQ}, {WQ}, v{vQ}
    v_xor_b32 v{TT}, 32, v{vQ}
    v_xor_b32 v{TT+1}, 64, v{vQ}
    v_xor_b32 v{TT+2}, 0x60, v{vQ}""")
    WF = [28, 44]
    def trq(T, dst):
        va = vQ if T == 0 else TT + T - 1
        for s_ in range(4):
            for h in range(2):
                g(f"ds_read_b64_tr_b16 {vr(dst+4*s_+2*h,2)}, v{va} offset:{s_*8192 + h*1024}")
    WB = [28, 44, 60, 76]
    g(f"""s_and_b32 s{sT+1}, s{sW}, 3
    s_lshl_b32 s{sT+1}, s{sT+1}, 12
    s_add_u32 s{sT+1}, s{sT+1}, {WV}
    v_xor_b32 v{vT0}, v3, v2
    v_lshlrev_b32 v{vT0}, 4, v{vT0}
    v_lshl_add_u32 v{vT0}, v2, 8, v{vT0}
    v_add_u32 v{vT0}, s{sT+1}, v{vT0}""")
    for s_ in range(4):
        if s_: g(f"v_xor_b32 v{vT1}, {64*s_}, v{vT0}")
        g(f"ds_read_b128 {vr(12+4*s_,4)}, v{vT1 if s_ else vT0}")
    trq(0, WB[0]); trq(1, WB[1])
    g(f"""s_and_b32 s{sT+1}, s{sW}, 3
    s_lshl_b32 s{sT+2}, s{sT+1}, 4
    s_mul_i32 s{sT+1}, s{sT+1}, {16*272}
    s_lshl_b32 s{sT}, s{sT}, 7
    s_add_u32 s{sT}, s{sT}, s{sT+1}
    v_mul_u32_u24 v{vT0}, 272, v2
    v_and_b32 v{vT1}, 1, v3
    v_lshl_add_u32 v{vT0}, v{vT1}, 5, v{vT0}
    v_lshrrev_b32 v{vT1}, 1, v3
    v_lshl_add_u32 v{vT0}, v{vT1}, 4, v{vT0}
    v_add_u32 v{vT0}, s{sT}, v{vT0}
    v_add_u32 v{vT1}, s{sT+2}, v2
    v_cmp_gt_u32 {sp(sVal)}, {NPB}, v{vT1}
    s_waitcnt lgkmcnt(0)""")
    trq(2, WB[2]); trq(3, WB[3])
    for jj in range(2):
        if jj == 1: g("s_waitcnt lgkmcnt(1)")
        for s_ in range(4):
            for T in range(2):
                d = 4 + 4 * T
                cc = "0" if s_ == 0 else vr(d, 4)
                g(f"v_mfma_f32_16x16x32_bf16 {vr(d,4)}, {vr(WB[2*jj+T]+4*s_,4)}, {vr(12+4*s_,4)}, {cc}")
        g(f"""s_nop 6
        v_cvt_pk_bf16_f32 v4, v4, v5
        v_cvt_pk_bf16_f32 v5, v6, v7
        v_cvt_pk_bf16_f32 v6, v8, v9
        v_cvt_pk_bf16_f32 v7, v10, v11
        s_nop 1
        v_permlane16_swap_b32 v4, v6
        v_permlane16_swap_b32 v5, v7
        s_mov_b64 exec, {sp(sVal)}
        ds_write_b128 v{vT0}, v[4:7] offset:{QT + jj*64}
        s_mov_b64 exec, -1""")
    def zero_main():
        for i in range(16): g(f"v_mov_b32 v{A+i}, 0")
        for i in range(8): g(f"v_mov_b32 v{AC+i}, 0")
    zero_main()
    g("s_waitcnt vmcnt(0)" if not o.wvlate else "")
    stamp("qdone")
    g("s_branch k_b1")
    g("k_sorter:")
    for i in range(4): g(f"v_mov_b32 v{AN+4+i}, {PADMARK}")
    g(f"""ds_write_b128 v1, {vr(AN+4,4)} offset:{LIST}
    ds_write_b128 v1, {vr(AN+4,4)} offset:{LIST+8192}
    s_cmp_lg_u32 s{sW}, 0
    s_cbranch_scc1 k_s1
    ds_write_b128 v1, {vr(AN+4,4)} offset:{LIST+16384}
k_s1:""")
    for i in range(4): g(f"v_mov_b32 v{AN+i}, 0")
    for k in range(3): g(f"ds_write_b128 v1, {vr(AN,4)} offset:{AGG+8192*k}")
    g(f"""v_cmp_gt_u32 vcc, {(50*544-3*8192)//16}, v0
    s_mov_b64 exec, vcc
    ds_write_b128 v1, {vr(AN,4)} offset:{AGG+8192*3}
    s_mov_b64 exec, -1""")
    zero_main()
    pA, pB = sVal, sVal + 2
    g(f"""s_mov_b64 {sp(pA)}, -1
    s_movk_i32 s{sT}, {16000-8192}
    v_cmp_gt_u32 {sp(pB)}, s{sT}, v1""")
    for i in range(4): g(f"v_mov_b32 v{8+i}, 0")
    if o.partial:
        g(f"""s_mov_b64 {sp(sVal+8)}, {sp(pB)}
        s_mov_b64 {sp(sVal+12)}, 0
        s_mov_b64 {sp(sVal+14)}, 0
        s_mov_b32 s{sVal+10}, 0x7f7f7f7f
        s_mov_b32 s{sVal+11}, 0x7f7f7f7f""")
    g(f"""s_movk_i32 s{sT}, 8192
    s_mov_b32 s{sT+1}, {TAGMASK}
    s_mov_b32 s{sT+2}, {o.spin}""")
    if o.pdelay:
        g(f"{isprod}\ns_cbranch_scc1 k_poll")
        for k in range(0, o.pdelay, 100): g(f"s_sleep {min(100, o.pdelay - k)}")
    if o.gate >= 0:
        g(f"""s_mov_b64 exec, 1
        s_lshl_b64 exec, exec, {8*o.gate}
k_gate:
        buffer_load_dwordx4 v[4:7], v1, {sq(S_CELL)}, {"s%d" % sT if o.gateb else "0"} offen{SC}
        s_sub_u32 s{sT+2}, s{sT+2}, 1
        s_cbranch_scc1 k_pto
        s_waitcnt vmcnt(0)
        v_bitop3_b32 v{vT0}, v4, s{sTag}, v4 bitop3:0x3c
        v_and_b32 v{vT0}, s{sT+1}, v{vT0}
        v_cmp_ne_u32 vcc, 0, v{vT0}
        s_cbranch_vccnz k_gate""")
    g(f"""s_branch k_poll
k_poll0:""")
    if o.psleep: g(f"s_sleep {o.psleep}")
    g(f"""k_poll:
    s_mov_b64 exec, {sp(pA)}
    s_cbranch_execz k_p1
    buffer_load_dwordx4 v[4:7], v1, {sq(S_CELL)}, 0 offen{SC}
k_p1:
    s_mov_b64 exec, {sp(pB)}
    s_cbranch_execz k_p2
    buffer_load_dwordx4 v[8:11], v1, {sq(S_CELL)}, s{sT} offen{SC}
k_p2:
    s_mov_b64 exec, -1
    s_sub_u32 s{sT+2}, s{sT+2}, 1
    s_cbranch_scc1 k_pto
    s_waitcnt vmcnt(0)
    v_bitop3_b32 v{vT0}, v4, v5, s{sTag} bitop3:0x7e
    v_bitop3_b32 v{vT1}, v6, v7, s{sTag} bitop3:0x7e
    v_bitop3_b32 v{TT}, v8, v9, s{sTag} bitop3:0x7e
    v_bitop3_b32 v{TT+1}, v10, v11, s{sTag} bitop3:0x7e
    v_bitop3_b32 v{vT0}, v{vT0}, v{vT1}, s{sT+1} bitop3:0xa8
    v_bitop3_b32 v{TT}, v{TT}, v{TT+1}, s{sT+1} bitop3:0xa8
""")
    okA, okB, inB, fst, ndA, ndB = sVal + 4, sVal + 6, sVal + 8, sVal + 10, sVal + 12, sVal + 14
    if not o.partial:
        g(f"""v_cmp_ne_u32 {sp(pA)}, 0, v{vT0}
        v_cmp_ne_u32 vcc, 0, v{TT}
        s_and_b64 {sp(pB)}, {sp(pB)}, vcc
        s_or_b64 vcc, {sp(pA)}, {sp(pB)}
        s_cbranch_scc1 k_poll0
k_polled:""")
        stamp("polled")
        g(f"""v_bitop3_b32 v{vT0}, v4, v8, 2 bitop3:0xa8
        v_cmp_ne_u32 vcc, 0, v{vT0}""")
        for i in range(8): g(f"v_cmp_gt_i32 {sp(sVal+2*i)}, 0, v{4+i}")
    else:
        g(f"""v_cmp_eq_u32 {sp(okA)}, 0, v{vT0}
        v_cmp_eq_u32 {sp(okB)}, 0, v{TT}
        v_cmp_gt_i32 {sp(pA)}, 0, v7
        v_cmp_gt_i32 {sp(pB)}, 0, v11
        s_and_b64 {sp(pA)}, {sp(pA)}, {sp(okA)}
        s_and_b64 {sp(pB)}, {sp(pB)}, {sp(okB)}
        s_and_b64 {sp(pA)}, {sp(pA)}, {sp(fst)}
        s_and_b64 {sp(pB)}, {sp(pB)}, {sp(fst)}
        s_add_u32 s{ndA}, s{pA}, 0x01010101
        s_add_u32 s{ndA+1}, s{pA+1}, 0x01010101
        s_add_u32 s{ndB}, s{pB}, 0x01010101
        s_add_u32 s{ndB+1}, s{pB+1}, 0x01010101
        s_xor_b64 {sp(ndA)}, {sp(ndA)}, {sp(pA)}
        s_xor_b64 {sp(ndB)}, {sp(ndB)}, {sp(pB)}
        s_and_b64 {sp(ndB)}, {sp(ndB)}, {sp(inB)}
        s_andn2_b64 {sp(pA)}, {sp(ndA)}, {sp(okA)}
        s_andn2_b64 {sp(pB)}, {sp(ndB)}, {sp(okB)}
        s_or_b64 vcc, {sp(pA)}, {sp(pB)}
        s_cbranch_scc1 k_poll0
k_polled:""")
        stamp("polled")
        g(f"""s_mov_b64 {sp(sFl)}, {sp(ndB)}
        s_mov_b64 exec, {sp(ndA)}
        v_and_b32 v{vT0}, 2, v4
        v_cmp_ne_u32 {sp(sRet)}, 0, v{vT0}""")
        for i in range(4): g(f"v_cmp_gt_i32 {sp(sVal+2*i)}, 0, v{4+i}")
        g(f"""s_mov_b64 exec, {sp(sFl)}
        v_and_b32 v{vT0}, 2, v8
        v_cmp_ne_u32 vcc, 0, v{vT0}""")
        for i in range(4, 8): g(f"v_cmp_gt_i32 {sp(sVal+2*i)}, 0, v{4+i}")
        g(f"""s_mov_b64 exec, -1
        s_or_b64 vcc, vcc, {sp(sRet)}""")
    g("s_cbranch_vccnz k_mark\nk_round:")
    Tn, Rn, On = 12, 20, 28
    for i in range(8):
        g(f"v_and_b32 v{Tn+i}, 0xfc, v{4+i}")
    for i in range(8):
        g(f"s_mov_b64 exec, {sp(sVal+2*i)}\nds_add_rtn_u32 v{Rn+i}, v{Tn+i}, v{vFour} offset:{CNT2}")
    g(f"""s_mov_b64 exec, -1
k_b1:
    v_and_b32 v{vT0}, 63, v0
    v_lshlrev_b32 v{vT0}, 2, v{vT0}
    v_and_b32 v{vLA}, 12, v0
    v_lshlrev_b32 v{vGA}, 2, v{vLA}
    s_waitcnt lgkmcnt(0)
    s_barrier""")
    stamp("b1")
    c, inc = vT1, vQ
    g(f"ds_read_b32 v{c}, v{vT0} offset:{CNT2}")
    if o.pfb or o.wvb1:
        l = g.lab("pb")
        g(f"s_cmp_lt_u32 s{sW}, 8\ns_cbranch_scc1 {l}\ns_cmp_lg_u32 s{sRound}, 0\ns_cbranch_scc1 {l}")
        if o.wvb1:
            wv_loads()
            g(f"v_and_b32 v{vLA}, 12, v0\nv_lshlrev_b32 v{vGA}, 2, v{vLA}")
        if o.pfb: prefetch(o.pfb, 0, 16 * o.pfa * 8192)
        g(f"{l}:")
    g(f"""s_waitcnt lgkmcnt(0)
    v_add_u32 v{c}, 12, v{c}
    v_and_b32 v{c}, -16, v{c}
    s_nop 1
    v_add_u32_dpp v{inc}, v{c}, v{c} row_shr:1 row_mask:0xf bank_mask:0xf bound_ctrl:0
    s_nop 1
    v_add_u32_dpp v{inc}, v{inc}, v{inc} row_shr:2 row_mask:0xf bank_mask:0xf bound_ctrl:0
    s_nop 1
    v_add_u32_dpp v{inc}, v{inc}, v{inc} row_shr:4 row_mask:0xf bank_mask:0xf bound_ctrl:0
    s_nop 1
    v_add_u32_dpp v{inc}, v{inc}, v{inc} row_shr:8 row_mask:0xf bank_mask:0xf bound_ctrl:0
    s_nop 1
    v_add_u32_dpp v{inc}, v{inc}, v{inc} row_bcast:15 row_mask:0xa bank_mask:0xf
    s_nop 1
    v_add_u32_dpp v{inc}, v{inc}, v{inc} row_bcast:31 row_mask:0xc bank_mask:0xf
    s_cmp_ge_u32 s{sW}, 8
    v_sub_u32 v{c}, v{inc}, v{c}
    v_readlane_b32 s{sG}, v{inc}, 63
    s_cbranch_scc1 k_nosc""")
    for i in range(8): g(f"ds_bpermute_b32 v{On+i}, v{Tn+i}, v{c}")
    g("k_nosc:")
    g(f"""v_add_u32 v{inc}, v{inc}, v{c}
    v_lshlrev_b32 v{inc}, 3, v{inc}
    s_mul_i32 s{sT}, s{sW}, s{sG}
    s_add_u32 s{sT+1}, s{sT}, s{sG}
    v_cmp_le_u32 vcc, s{sT}, v{inc}
    v_cmp_le_u32 {sp(sFl)}, s{sT+1}, v{inc}
    s_ff1_i32_b64 s{sT}, vcc
    s_ff1_i32_b64 s{sT+1}, {sp(sFl)}
    v_readlane_b32 s{sT}, v{c}, s{sT}
    v_readlane_b32 s{sT+1}, v{c}, s{sT+1}
    s_cmp_ge_u32 s{sW}, 8
    s_cbranch_scc1 k_nosc2""")
    for half in range(2):
        g("s_waitcnt lgkmcnt(4)")
        for i in range(4 * half, 4 * half + 4): g(f"v_add_u32 v{On+i}, v{On+i}, v{Rn+i}")
        for i in range(4 * half, 4 * half + 4):
            g(f"s_mov_b64 exec, {sp(sVal+2*i)}\nds_write_b32 v{On+i}, v{4+i} offset:{LIST}")
        g("s_mov_b64 exec, -1")
    prio_ev = [int(x) for x in o.prio.split(",")] if o.prio else []
    evs = sorted(set(list(range(1, DP)) + [1, DP + 1] + prio_ev))
    evmask = sum(1 << e for e in evs)
    g(f"""k_nosc2:
    s_sub_u32 s{sRem}, s{sT+1}, s{sT}
    s_add_u32 s{sT}, s{sT}, {LIST}
    v_add_u32 v{vLA}, s{sT}, v{vLA}
    v_add_u32 v{vGA}, s{sT}, v{vGA}
    s_lshr_b32 s{sRem}, s{sRem}, 4
    s_sub_u32 s{sLB}, s{sRem}, 1
    s_and_b32 s{sLB}, s{sLB}, 3
    s_cmp_lt_u32 s{sLB}, 1
    s_cselect_b32 s{sL+1}, {BIG}, 0
    s_cmp_lt_u32 s{sLB}, 2
    s_cselect_b32 s{sL+2}, {BIG}, 0
    s_cmp_lt_u32 s{sLB}, 3
    s_cselect_b32 s{sL+3}, {BIG}, 0
    s_lshl_b32 s{sLB}, s{sLB}, 2
    s_lshl_b32 s{sLB}, 1, s{sLB}
    s_lshl_b32 s{sLM}, s{sLB}, 1
    s_sub_u32 s{sLM}, s{sLM}, 1
    s_add_u32 s{sRem}, s{sRem}, 3
    s_lshr_b32 s{sRem}, s{sRem}, 2
    s_mov_b32 s{sEv}, {evmask}
    s_mov_b32 s{sFA}, -1
    s_mov_b32 s{sFO}, 0""")
    if prio_ev: g("s_setprio 3")
    g("s_waitcnt lgkmcnt(0)\ns_barrier")
    stamp("b2")
    def readE():
        g(f"ds_read2_b32 {vr(Ee,2)}, v{vLA} offset0:0 offset1:4\nds_read2_b32 {vr(Ee+2,2)}, v{vLA} offset0:8 offset1:12")
    def readCN(p):
        g(f"ds_read_u8 v{CN[p]}, v{vGA}\nds_read_u8 v{CN[p]+1}, v{vGA} offset:16")
    def adv():
        g(f"v_add_u32 v{vLA}, 64, v{vLA}\nv_add_u32 v{vGA}, 64, v{vGA}")
    def addr(t): return f"v_and_or_b32 v{Ee+t}, v{Ee+t}, s{sAM}, v{vLP}"
    def setO(k):
        g(f"s_cmp_eq_u32 s{sRem}, {k}")
        for t in range(1, 4): g(f"s_cselect_b32 s{sO+t}, s{sL+t}, 0")
    def loadX(p):
        for t in range(4):
            so = "0" if t == 0 else f"s{sO+t}"
            g(f"buffer_load_dwordx4 {vr(X[p]+4*t,4)}, v{Ee+t}, {sq(S_X)}, {so} offen")
    def readQ(p):
        g(f"v_mad_u32_u24 v{vQ}, v{CN[p]}, s{s68}, v{vLP}")
        for t in range(4):
            g(f"s_mov_b64 exec, {sp(sM+2*t)}\nds_read_b128 {vr(A+4*t,4)}, v{vQ} offset:{QT}")
        g("s_mov_b64 exec, -1")
    flush_sites = []; ev_sites = []
    def body(p):
        q = (p + 1) % DP
        le, lr = g.lab("ev"), g.lab("er")
        ev_sites.append((le, lr))
        readE()
        g(f"""s_bitcmp1_b32 s{sEv}, s{sRem}
        s_cbranch_scc1 {le}
        {lr}:
        s_waitcnt vmcnt({4*(DP-1)}) lgkmcnt(2)""")
        for t in range(4):
            cc = "0" if t == 0 else vr(AL, 4)
            if "l" not in o.abl: g(f"v_mfma_f32_16x16x32_bf16 {vr(AL,4)}, {vr(A+4*t,4)}, {vr(X[p]+4*t,4)}, {cc}")
        g(f"v_cmp_ne_u32 {sp(sFl)}, v{CN[p]}, v{CN[p]+1}")
        readQ(q)
        if "v" in o.abl:
            g(f"s_and_b32 s{sFl}, s{sFl}, s{sFA}\ns_or_b32 s{sFl}, s{sFl}, s{sFO}\ns_waitcnt lgkmcnt(4)")
            for t in range(4): g(addr(t))
        else:
            g(f"""s_and_b32 s{sFl}, s{sFl}, s{sFA}
            s_or_b32 s{sFl}, s{sFl}, s{sFO}
            v_add_f32_dpp v{vT0}, v{AL+1}, v{AL} quad_perm:[1,1,1,1] row_mask:0xf bank_mask:0xf
            v_add_f32_dpp v{vT0}, v{AL+2}, v{vT0} quad_perm:[2,2,2,2] row_mask:0xf bank_mask:0xf
            v_add_f32_dpp v{vT0}, v{AL+3}, v{vT0} quad_perm:[3,3,3,3] row_mask:0xf bank_mask:0xf
            v_mul_f32 v{vT0}, s{sSc}, v{vT0}
            v_exp_f32 v{vT0}, v{vT0}
            s_waitcnt lgkmcnt(4)
            v_add_f32 v{vT0}, 1.0, v{vT0}
            v_rcp_f32 v{vT0}, v{vT0}
            {addr(0)}
            v_cvt_pk_bf16_f32 v{AP}, v{vT0}, v{vT0}
            v_cvt_pk_bf16_f32 v{AP+1}, v{vT0}, v{vT0}
            {addr(1)}
            {addr(2)}
            v_permlane16_swap_b32 v{AP}, v{AP+1}
            v_mov_b32 v{AP+2}, v{AP}
            v_mov_b32 v{AP+3}, v{AP+1}
            {addr(3)}
            s_nop 0
            v_permlane32_swap_b32 v{AP}, v{AP+2}
            v_permlane32_swap_b32 v{AP+1}, v{AP+3}
            s_nop 0""")
            for t in range(4):
                g(f"""v_and_b32_dpp v{AN+2*t}, v{AP+t}, v{vM0} quad_perm:[0,0,0,0] row_mask:0xf bank_mask:0xf
                v_and_b32_dpp v{AN+2*t+1}, v{AP+t}, v{vM1} quad_perm:[0,0,0,0] row_mask:0xf bank_mask:0xf""")
        for t in range(4):
            lf, lb = g.lab("fl"), g.lab("fb")
            if "m" not in o.abl:
                g(f"""v_mfma_f32_4x4x4_16b_bf16 {vr(AC,4)}, {vr(AN+2*t,2)}, {vr(X[p]+4*t,2)}, {vr(AC,4)}
                v_mfma_f32_4x4x4_16b_bf16 {vr(AC+4,4)}, {vr(AN+2*t,2)}, {vr(X[p]+4*t+2,2)}, {vr(AC+4,4)}""")
            if "f" not in o.abl:
                g(f"""s_bitcmp1_b32 s{sFl}, {4*t}
                s_cbranch_scc1 {lf}""")
            else: g("s_nop 1")
            g(f"{lb}:")
            flush_sites.append((lf, lb, CN[p], 4 * t))
        ls = g.lab("sk")
        g(f"s_cmp_le_u32 s{sRem}, {DP}\ns_cbranch_scc1 {ls}")
        loadX(p)
        g(f"{ls}:")
        readCN(p); adv()
        g(f"s_sub_u32 s{sRem}, s{sRem}, 1\ns_cmp_eq_u32 s{sRem}, 0\ns_cbranch_scc1 k_done")
    g(f"""s_cmp_eq_u32 s{sRem}, 0
    s_cbranch_scc1 k_done""")
    for p in range(DP):
        readE(); readCN(p); adv(); setO(p + 1)
        if p > 0: g(f"s_cmp_lt_u32 s{sRem}, {p+1}\ns_cbranch_scc1 k_pro")
        g("s_waitcnt lgkmcnt(2)")
        for t in range(4): g(addr(t))
        loadX(p)
    g("k_pro:\ns_waitcnt lgkmcnt(0)")
    readQ(0)
    g("k_loop:")
    for p in range(DP): body(p)
    g("s_branch k_loop\nk_done:")
    if prio_ev: g("s_setprio 0")
    stamp("main")
    g(f"""s_cmp_lg_u32 s2, {NB-1}
    s_cbranch_scc1 k_ne1
    v_mov_b32 v{vLA}, 0
    global_load_dword v{vGA}, v{vLA}, {sp(pDBG)}{SC}
k_ne1:""")
    g(f"""s_lshr_b32 s{sT}, s{sW}, 2
    s_lshl_b32 s{sT+1}, s{sT}, 2
    v_lshrrev_b32 v{vQ}, 2, v2
    v_bfe_u32 v{TT}, v0, 1, 1
    v_add_u32 v{TT}, s{sT+1}, v{TT}
    v_and_b32 v{TT+1}, 1, v3
    v_lshl_add_u32 v{TT+1}, v{TT+1}, 2, v{vQ}
    v_lshlrev_b32 v{TT+1}, 1, v{TT+1}
    v_xor_b32 v{TT}, v{TT}, v{TT+1}
    v_lshl_add_u32 v{vQ}, v3, 2, v{vQ}
    v_lshlrev_b32 v{vQ}, 8, v{vQ}
    v_lshl_add_u32 v{vQ}, v{TT}, 4, v{vQ}
    v_and_b32 v{TT}, 1, v0
    v_lshl_add_u32 v{vQ}, v{TT}, 3, v{vQ}
    v_add_u32 v{vQ}, {WV}, v{vQ}
    v_xor_b32 v{TT}, 32, v{vQ}""")
    VF = [12, 28]
    def trv():
        for T in range(2):
            for s_ in range(4):
                for h in range(2):
                    g(f"ds_read_b64_tr_b16 {vr(VF[T]+4*s_+2*h,2)}, v{vQ if T == 0 else TT} offset:{s_*8192 + h*4096}")
    if not o.wvlate: trv()
    BA = 44
    g(f"""s_and_b32 s{sT+2}, s{sW}, 3
    s_mul_i32 s{sT+1}, s{sT+2}, {16*544}
    v_mul_u32_u24 v{TT+1}, 544, v2
    v_lshl_add_u32 v{TT+1}, v3, 4, v{TT+1}
    v_add_u32 v{TT+1}, s{sT+1}, v{TT+1}
    v_mov_b32 v{vT0}, 0
    s_lshl_b32 s{sT+2}, s{sT+2}, 12
    s_lshl_b32 s{sT}, s{sT}, 6
    s_add_u32 s{sT}, s{sT}, s{sT+2}
    v_lshlrev_b32 v{vT1}, 8, v2
    v_and_b32 v{TT+2}, 1, v3
    v_lshl_add_u32 v{vT1}, v{TT+2}, 5, v{vT1}
    v_lshrrev_b32 v{TT+2}, 1, v3
    v_lshl_add_u32 v{vT1}, v{TT+2}, 4, v{vT1}
    v_add_u32 v{vT1}, s{sT}, v{vT1}
    s_waitcnt {"vmcnt(0) " if o.wvlate else ""}lgkmcnt(0)
    s_barrier""")
    stamp("b3")
    D0, D1, BM = 76, 80, 84
    g(f"ds_read_b128 {vr(BM,4)}, v{vT0} offset:{OVM}")
    if o.wvlate:
        trv(); g("s_waitcnt lgkmcnt(0)")
    for s_ in range(4):
        for h in range(2):
            g(f"ds_read_b128 {vr(BA+8*s_+4*h,4)}, v{TT+1} offset:{AGG+s_*128+h*64}")
    g(f"""s_waitcnt lgkmcnt(8)
    v_or3_b32 v{vT0}, v{BM}, v{BM+1}, v{BM+2}
    v_or_b32 v{vT0}, v{vT0}, v{BM+3}
    v_cmp_ne_u32 vcc, 0, v{vT0}
    s_cbranch_vccnz k_extra""")
    def mf(s_):
        for T in range(2):
            d = D0 if T == 0 else D1
            cc = "0" if s_ == 0 else vr(d, 4)
            g(f"v_mfma_f32_16x16x32_bf16 {vr(d,4)}, {vr(VF[T]+4*s_,4)}, {vr(BA+8*s_,4)}, {cc}")
    for s_ in range(4):
        g(f"s_waitcnt lgkmcnt({6-2*s_})")
        bb = BA + 8 * s_
        for k in range(4):
            g(f"v_cvt_pk_bf16_f32 v{bb+k}, v{bb+2*k}, v{bb+2*k+1}")
        if s_ > 0: mf(s_ - 1)
    mf(3)
    g(f"""s_nop 6
    v_cvt_pk_bf16_f32 v4, v{D0}, v{D0+1}
    v_cvt_pk_bf16_f32 v5, v{D0+2}, v{D0+3}
    v_cvt_pk_bf16_f32 v6, v{D1}, v{D1+1}
    v_cvt_pk_bf16_f32 v7, v{D1+2}, v{D1+3}
    s_nop 1
    v_permlane16_swap_b32 v4, v6
    v_permlane16_swap_b32 v5, v7
    buffer_store_dwordx4 v[4:7], v{vT1}, {sq(S_OUT)}, 0 offen{o.outflag}""")
    stamp("stored")
    g(f"""s_cmp_lg_u32 s2, {NB-1}
    s_cbranch_scc1 k_fin
    s_cmp_lg_u32 s{sW}, 15
    s_cbranch_scc1 k_fin
    s_mov_b32 s{sT+2}, {o.spin}
    s_waitcnt vmcnt(1)
k_ep:
    v_readfirstlane_b32 s{sT}, v{vGA}
    s_cmp_ge_u32 s{sT}, {4*(NB-NC)}
    s_cbranch_scc1 k_ep2
    s_sub_u32 s{sT+2}, s{sT+2}, 1
    s_cbranch_scc1 k_ep2
    global_load_dword v{vGA}, v{vLA}, {sp(pDBG)}{SC}
    s_waitcnt vmcnt(0)
    s_branch k_ep
k_ep2:
    v_mov_b32 v{vGA}, s{sTag}
    s_mov_b64 exec, 1
    global_store_dword v{vLA}, v{vGA}, {sp(pWS)} offset:{WS_EPOCH}
    s_mov_b64 exec, -1
k_fin:""")
    if o.stamps:
        g("s_waitcnt vmcnt(0)")
        stamp("end")
        g("s_waitcnt lgkmcnt(0)")
        l = g.lab("st")
        g(f"""v_cmp_eq_u32 vcc, {o.stw*64}, v0
        s_and_saveexec_b64 s[52:53], vcc
        s_cbranch_execz {l}
        s_add_u32 s54, s{pWS}, {WS_STAMP}
        s_addc_u32 s55, s{pWS+1}, 0
        s_mul_i32 s56, s2, 64
        v_mov_b32 v1, s56""")
        for i in range(8):
            g(f"v_mov_b32 v2, s{ST0+2*i}\nv_mov_b32 v3, s{ST0+2*i+1}\nglobal_store_dwordx2 v1, v[2:3], s[54:55] offset:{8*i}\ns_nop 1")
        g(f"s_waitcnt vmcnt(0)\n{l}:")
    g("k_end:\ns_endpgm")
    for lf, lb, cn, lane in flush_sites:
        g(f"""{lf}:
        v_readlane_b32 s{sN}, v{cn}, {lane}
        s_call_b64 {sp(sRet)}, k_flush
        s_branch {lb}""")
    g(f"k_flush:\ns_nop 0\ns_mulk_i32 s{sN}, 136")
    for k in range(4):
        g(f"v_add_f32_dpp v{TT+k}, v{AC+k}, v{AC+k} row_ror:8 row_mask:0xf bank_mask:0x3")
    for k in range(4):
        g(f"v_add_f32_dpp v{TT+k}, v{AC+4+k}, v{AC+4+k} row_ror:8 row_mask:0xf bank_mask:0xc")
    g(f"v_add_u32 v{vT1}, s{sN}, v{vFL}")
    for k in range(2):
        g(f"v_add_f32_dpp v{TT+4+k}, v{TT+k}, v{TT+k} row_shl:4 row_mask:0xf bank_mask:0x5")
    for k in range(2):
        g(f"v_add_f32_dpp v{TT+4+k}, v{TT+2+k}, v{TT+2+k} row_shr:4 row_mask:0xf bank_mask:0xa")
    g(f"s_cmp_lg_u32 s{sRound}, 0\ns_cbranch_scc1 k_flush2\nk_flush3:")
    g(f"ds_write_b64 v{vT1}, {vr(TT+4,2)} offset:{AGG}")
    for k in range(8): g(f"v_mov_b32 v{AC+k}, 0")
    g(f"""s_setpc_b64 {sp(sRet)}
k_flush2:
    ds_read_b64 {vr(TT,2)}, v{vT1} offset:{AGG}
    s_waitcnt lgkmcnt(0)
    v_add_f32 v{TT+4}, v{TT+4}, v{TT}
    v_add_f32 v{TT+5}, v{TT+5}, v{TT+1}
    s_branch k_flush3""")
    for le, lr in ev_sites:
        g(f"{le}:\ns_call_b64 {sp(sRet)}, k_event\ns_branch {lr}")
    g("k_event:")
    setO(DP + 1)
    for i, e in enumerate(sorted(prio_ev, reverse=True)):
        l = g.lab("pe")
        g(f"s_cmp_lg_u32 s{sRem}, {e}\ns_cbranch_scc1 {l}\ns_setprio {2-i}\n{l}:")
    for r in range(DP - 1, 1, -1):
        l = g.lab("we")
        g(f"s_cmp_lg_u32 s{sRem}, {r}\ns_cbranch_scc1 {l}\ns_waitcnt vmcnt({4*(r-1)})\n{l}:")
    g(f"""s_cmp_lg_u32 s{sRem}, 1
    s_cbranch_scc1 k_ev1
    s_mov_b32 s{sFA}, s{sLM}
    s_mov_b32 s{sFO}, s{sLB}
    s_waitcnt vmcnt(0)
k_ev1:
    s_setpc_b64 {sp(sRet)}""")
    g(f"k_pto:\ns_mov_b64 exec, -1\ns_waitcnt vmcnt(0)\ns_branch k_polled")
    S_OV = 60
    def build_ovf(d):
        g(f"""s_add_u32 s{d}, s{pWS}, {WS_OVF}
        s_addc_u32 s{d+1}, s{pWS+1}, 0
        s_mov_b32 s{d+2}, {(WS_OVFCNT - WS_OVF) + 4096}
        s_mov_b32 s{d+3}, 0x20000""")
    g("k_slow:")
    build_ovf(S_OV)
    g(f"""s_mul_i32 s{sT+4}, s2, {CE*4}
    s_mov_b32 s{sG}, {TAGMASK}
    v_mov_b32 v{vT0}, {OVN}""")
    for i in range(8):
        l = g.lab("ov")
        g(f"""s_mov_b64 exec, {sp(sVal)}
        v_cmp_gt_u32 vcc, {CAP*4}, v{Rk+i}
        s_and_b64 exec, {sp(sVal)}, vcc
        ds_write_b32 v{Tm+i}, v{Ss+i}
        s_andn2_b64 exec, {sp(sVal)}, vcc
        s_cbranch_execz {l}
        ds_add_rtn_u32 v{TT+1}, v{vT0}, v{vFour}
        v_lshlrev_b32 v{TT}, 20, v{B4+i}
        v_bfi_b32 v{TT}, s{sG}, v{TT}, v{Ss+i}
        s_waitcnt lgkmcnt(0)
        buffer_store_dword v{TT}, v{TT+1}, {sq(S_OV)}, s{sT+4} offen{SC}
        {l}:""")
    g(f"""s_mov_b64 exec, -1
    s_waitcnt vmcnt(0)
    s_branch k_binned""")
    g(f"""k_flag:
    s_waitcnt lgkmcnt(0)""")
    ssync(2)
    build_ovf(S_OV)
    g(f"""v_cmp_gt_u32 vcc, {NB}, v0
    s_mov_b64 exec, vcc
    v_lshlrev_b32 v{TT}, 2, v0
    ds_read_b32 v{TT+1}, v{TT} offset:{PCNT}
    v_mul_u32_u24 v{TT}, {IST}, v0
    v_add_u32 v{TT}, {IMG}, v{TT}
    v_mov_b32 v{TT+2}, 2
    s_waitcnt lgkmcnt(0)
    v_cmp_lt_u32 vcc, {CAP*4}, v{TT+1}
    s_and_b64 exec, exec, vcc
    ds_or_b32 v{TT}, v{TT+2}
    s_mov_b64 exec, -1
    s_lshl_b32 s{sT+4}, s2, 2
    s_add_u32 s{sT+4}, s{sT+4}, {WS_OVFCNT - WS_OVF}
    v_mov_b32 v{TT}, 0
    buffer_store_dword v{Tm}, v{TT}, {sq(S_OV)}, s{sT+4} offen{SC}
    s_waitcnt vmcnt(0) lgkmcnt(0)""")
    ssync(3)
    img_reads()
    g("s_branch k_copy")
    g("k_mark:")
    for h in range(2):
        e = 4 + 4 * h
        g(f"""v_and_b32 v{vT0}, 2, v{e}
        v_cmp_ne_u32 vcc, 0, v{vT0}
        s_and_b64 exec, vcc, {sp(sVal+8*h)}
        v_and_b32 v{e}, -3, v{e}
        v_lshrrev_b32 v{vT0}, 3, v0
        v_add_u32 v{vT0}, {64*h}, v{vT0}
        v_lshrrev_b32 v{vT1}, 5, v{vT0}
        v_lshlrev_b32 v{vT1}, 2, v{vT1}
        v_and_b32 v{vT0}, 31, v{vT0}
        v_lshlrev_b32 v{vT0}, v{vT0}, 1
        ds_or_b32 v{vT1}, v{vT0} offset:{OVM}
        s_mov_b64 exec, -1""")
    g("s_branch k_round")
    sMap = 52
    g(f"""k_extra:
    s_waitcnt lgkmcnt(0)
    v_readfirstlane_b32 s{sMap}, v{BM}
    v_readfirstlane_b32 s{sMap+1}, v{BM+1}
    v_readfirstlane_b32 s{sMap+2}, v{BM+2}
    v_readfirstlane_b32 s{sMap+3}, v{BM+3}
    s_barrier
    s_cmp_lg_u64 {sp(sMap)}, 0
    s_cbranch_scc1 k_x1
    s_ff1_i32_b64 s{sT}, {sp(sMap+2)}
    s_bitset0_b64 {sp(sMap+2)}, s{sT}
    s_add_u32 s{sT}, s{sT}, 64
    s_branch k_x2
k_x1:
    s_ff1_i32_b64 s{sT}, {sp(sMap)}
    s_bitset0_b64 {sp(sMap)}, s{sT}
k_x2:""")
    build_ovf(S_CST)
    g(f"""s_lshl_b32 s{sG}, s{sT}, 2
    s_add_u32 s{sG}, s{sG}, {WS_OVFCNT - WS_OVF}
    v_mov_b32 v{vT0}, 0
    buffer_load_dword v{vT1}, v{vT0}, {sq(S_CST)}, s{sG} offen{SC}
    s_mul_i32 s{sG}, s{sT}, {CE*4}
    buffer_load_dwordx4 v[4:7], v1, {sq(S_CST)}, s{sG} offen{SC}
    s_add_u32 s{sG}, s{sG}, 8192
    buffer_load_dwordx4 v[8:11], v1, {sq(S_CST)}, s{sG} offen{SC}""")
    for i in range(4): g(f"v_mov_b32 v{AN+4+i}, {PADMARK}")
    g(f"""ds_write_b128 v1, {vr(AN+4,4)} offset:{LIST}
    s_cmp_lg_u32 s{sW}, 0
    s_cbranch_scc1 k_x3
    ds_write_b128 v1, {vr(AN+4,4)} offset:{LIST+16384}
    v_lshrrev_b32 v{TT}, 2, v1
    ds_write_b32 v{TT}, v{vT0} offset:{CNT2}
    v_mov_b32 v{AN}, s{sMap}
    v_mov_b32 v{AN+1}, s{sMap+1}
    v_mov_b32 v{AN+2}, s{sMap+2}
    v_mov_b32 v{AN+3}, s{sMap+3}
    ds_write_b128 v{vT0}, {vr(AN,4)} offset:{OVM}
k_x3:
    s_mov_b32 s{sRound}, 1
    s_add_u32 s{sT}, s2, 512""")
    zero_main()
    g("s_waitcnt vmcnt(0)")
    for i in range(8):
        g(f"""v_lshrrev_b32 v{AP}, 22, v{4+i}
        v_cmp_eq_u32 vcc, s{sT}, v{AP}
        v_add_u32 v{AP+1}, {(i&3)*4 + (i>>2)*8192}, v1
        v_cmp_lt_u32 {sp(sVal+2*i)}, v{AP+1}, v{vT1}
        s_and_b64 {sp(sVal+2*i)}, {sp(sVal+2*i)}, vcc""")
    g(f"""s_waitcnt lgkmcnt(0)
    s_barrier
    s_cmp_lt_u32 s{sW}, 8
    s_cbranch_scc1 k_round
    s_branch k_b1""")
    return NV

def main():
    ap = argparse.ArgumentParser()
    ap.add_argument("-o", default="cdna_kernels/" + KN + ".s")
    ap.add_argument("--stamps", default="")
    ap.add_argument("--cyc", action="store_true")
    ap.add_argument("--stw", type=int, default=0)
    ap.add_argument("--pfa", type=int, default=0)
    ap.add_argument("--pfb", type=int, default=0)
    ap.add_argument("--depth", type=int, default=2)
    ap.add_argument("--prio", default="")
    ap.add_argument("--wvlate", type=int, default=1)
    ap.add_argument("--gate", type=int, default=-1)
    ap.add_argument("--abl", default="")
    ap.add_argument("--xfirst", type=int, default=0)
    ap.add_argument("--xdelay", type=int, default=0)
    ap.add_argument("--partial", type=int, default=0)
    ap.add_argument("--stflag", default="sc1")
    ap.add_argument("--gateb", type=int, default=0)
    ap.add_argument("--partner", type=int, default=1)
    ap.add_argument("--edgeflag", default="nt")
    ap.add_argument("--wvb1", type=int, default=1)
    ap.add_argument("--auxearly", type=int, default=0)
    ap.add_argument("--psleep", type=int, default=0)
    ap.add_argument("--pdelay", type=int, default=0)
    ap.add_argument("--outflag", default="")
    ap.add_argument("--spin", type=int, default=200000)
    o = ap.parse_args()
    if o.outflag: o.outflag = " " + o.outflag
    if o.edgeflag: o.edgeflag = " " + o.edgeflag
    o.stflag = " " + o.stflag
    g = G()
    nv = gen(g, o)
    head = f"""; featgraph: fused kernel. producers bucket edges by dst into tagged cells (d_ws), every workgroup then
; @launch grid=({NB},1,1) block=(1024,1,1) lds={LDS}
.amdgcn_target "amdgcn-amd-amdhsa--gfx950"
.text
"""
    acc = (nv + 3) // 4 * 4
    tail = f""".section .rodata,"a"
.p2align 6
.amdhsa_kernel {KN}_kernel
  .amdhsa_next_free_vgpr {nv}
  .amdhsa_next_free_sgpr 102
  .amdhsa_accum_offset {acc}
  .amdhsa_group_segment_fixed_size 0
  .amdhsa_kernarg_size 64
  .amdhsa_user_sgpr_count 2
  .amdhsa_user_sgpr_kernarg_segment_ptr 1
  .amdhsa_system_sgpr_workgroup_id_x 1
.end_amdhsa_kernel
"""
    open(o.o, "w").write(head + g.text() + tail)
main()
```

```python
import sys, argparse

KN = "standalone__kernel_systems_refs_featgraph__graph"
N, E, D = 12500, 400000, 128
NB, NPB = 250, 50
NC, CE = 125, 3200
CAP = 32
WS_EPOCH = 0
WS_CELLS = 4096
CELLS_BYTES = NB * NC * 128
WS_OVF = 4 << 20
WS_OVFCNT = 6 << 20
WS_STAMP = 8 << 20
PADMARK = 0x003FFF00
TAGMASK = 0x7FC00000
BIG = 0x400000
IST = 144

CNT2, OVM, PCNT = 0, 256, 512
AUXC = 272
SRTC = 276
OVN = PCNT + 1000
AGG = PCNT + 1024
QT = AGG + 50 * 544
LIST = QT + 50 * 272
WQ = (LIST + 17408 + 255) // 256 * 256
WV = WQ + 32768
IMG = WV + 32768
LDS = IMG + 256 * IST
assert LDS <= 163840 and LIST % 16 == 0 and LIST + 16384 < 65536

class G:
    def __init__(self):
        self.L = []; self.uid = 0
    def __call__(self, s=""):
        for ln in s.split("\n"):
            ln = ln.strip()
            if not ln: continue
            if ln.endswith(":") or ln.startswith("."): self.L.append(ln)
            else: self.L.append("    " + ln)
    def lab(self, p="L"):
        self.uid += 1
        return f"{p}_{self.uid}"
    def text(self): return "\n".join(self.L) + "\n"

def vr(a, n=1): return f"v{a}" if n == 1 else f"v[{a}:{a+n-1}]"
def sp(a): return f"s[{a}:{a+1}]"
def sq(a): return f"s[{a}:{a+3}]"

ST0 = 86
def gen(g, o):
    DP = o.depth
    sel = o.stamps.split(",") if o.stamps else []
    def stamp(nm):
        if nm in sel:
            i = sel.index(nm)
            g(f"{'s_memtime' if o.cyc else 's_memrealtime'} s[{ST0+2*i}:{ST0+2*i+1}]")
    pX, pSRC, pDST, pWQ, pWV, pOUT, pDBG, pWS = 4, 6, 8, 10, 12, 14, 16, 18
    S_X, S_CELL, S_CST, S_OUT = 20, 24, 28, 32
    sW, sTag, sG, sRem, sFl, sN, sRound = 36, 37, 38, 39, 40, 42, 43
    sM, sVal, sRet, sSc, s68, sAM = 44, 52, 68, 70, 71, 72
    sO, sL, sLM, sT = 72, 75, 79, 80
    sLB = 3
    sEv, sFA, sFO = 0, 1, 85
    X = [12 + 16 * p for p in range(DP)]
    b = 12 + 16 * DP
    A = b; Ee = b + 16; CN = [b + 20 + 2 * p for p in range(DP)]
    b = (b + 20 + 2 * DP + 3) // 4 * 4
    AL = b; AC = b + 4; AP = b + 12; AN = b + 16
    b += 24
    vLP, vM0, vM1, vFL, vLA, vGA, vQ, vT0, vT1, vFour = range(b, b + 10)
    TT = b + 10
    NV = TT + 6
    assert NV <= 128 and TT % 2 == 0
    SC = " sc1"
    isprod = f"s_cmp_lt_u32 s2, {NC}"
    g(f""".p2align 8
.globl {KN}_kernel
.type {KN}_kernel,@function
{KN}_kernel:
    s_cmp_ge_u32 s2, {NB}
    s_cbranch_scc1 k_end
    s_load_dwordx16 s[4:19], s[0:1], 0""")
    if o.cpf:
        g(f"""s_getpc_b64 s[20:21]
        v_lshlrev_b32 v1, 7, v0
        v_cmp_gt_u32 vcc, {o.cpf}, v0
        s_and_saveexec_b64 s[22:23], vcc
        s_cbranch_execz k_cpf
        global_load_dword v{TT+5}, v1, s[20:21]
k_cpf:
        s_mov_b64 exec, -1""")
    g(f"""v_lshlrev_b32 v1, 4, v0
    v_lshrrev_b32 v{vT0}, 6, v0
    v_and_b32 v2, 15, v0
    v_readfirstlane_b32 s{sW}, v{vT0}
    v_bfe_u32 v3, v0, 4, 2
    s_mul_i32 s{sT}, s2, {CE*4}""")
    if o.stamps:
        for i in range(8): g(f"s_mov_b64 s[{ST0+2*i}:{ST0+2*i+1}], 0")
    Dd, Ss, B4, Rk, Tm = 12, 20, 28, 36, 44
    g(f"""v_cmp_gt_u32 vcc, {CE//8}, v0
    v_add_u32 v{vT1}, s{sT}, v1
    v_add_u32 v{vQ}, {CE*2}, v{vT1}
    s_mov_b64 {sp(sVal)}, vcc
    s_waitcnt lgkmcnt(0)""")
    stamp("start")
    def w_addr():
        g(f"""s_sub_u32 s{sT}, s{sW}, 8
        s_lshl_b32 s{sT+1}, s{sT}, 12
        v_lshlrev_b32 v{vLA}, 1, v3
        v_xor_b32 v{vLA}, v{vLA}, v2
        v_lshlrev_b32 v{vLA}, 4, v{vLA}
        v_lshl_add_u32 v{vLA}, v3, 8, v{vLA}
        v_add_u32 v{vLA}, s{sT+1}, v{vLA}
        v_xor_b32 v{vGA}, 0x80, v{vLA}""")
    def wq_loads():
        w_addr()
        g(f"s_add_u32 m0, s{sT+1}, {WQ}\ns_nop 0")
        for k in range(4): g(f"global_load_lds_dwordx4 v{vLA if k < 2 else vGA}, {sp(pWQ)} offset:{1024*k}")
    def x_loads():
        g(f"""s_sub_u32 s{sT}, s{sW}, 8
        s_and_b32 s{sT+2}, s{sT}, 1
        s_lshl_b32 s{sT+2}, s{sT+2}, 3
        v_add_u32 v{vT0}, s{sT+2}, v3
        v_xor_b32 v{vT0}, v{vT0}, v2
        v_lshlrev_b32 v{vT0}, 4, v{vT0}
        v_lshl_add_u32 v{vT0}, v3, 8, v{vT0}
        v_xor_b32 v{vT1}, 64, v{vT0}
        s_lshl_b32 s{sT+2}, s{sT}, 11
        s_add_u32 m0, s{sT+2}, {WV}
        s_add_u32 s{sT+2}, s{sT+2}, s{sN}
        buffer_load_dwordx4 v{vT0}, {sq(S_X)}, s{sT+2} offen lds
        buffer_load_dwordx4 v{vT1}, {sq(S_X)}, s{sT+2} offen offset:1024 lds""")
    def wv_loads():
        w_addr()
        g(f"s_add_u32 m0, s{sT+1}, {WV}\ns_nop 0")
        for k in range(4): g(f"global_load_lds_dwordx4 v{vLA if k % 2 == 0 else vGA}, {sp(pWV)} offset:{1024*k}")
    def prefetch(nw, idx_first, base):
        l = g.lab("pf")
        g(f"""s_sub_u32 s{sT}, s{sW}, 8
        s_cmp_ge_u32 s{sT}, {nw}
        s_cselect_b32 s{sT+1}, {BIG}, 0
        s_lshl_b32 s{sT}, s{sT}, 13
        s_add_u32 s{sT}, s{sT}, s{sT+1}
        s_add_u32 s{sT}, s{sT}, {base}
        s_sub_u32 s{sT+1}, s2, {idx_first}
        s_lshr_b32 s{sT+1}, s{sT+1}, 3
        s_mul_i32 s{sT+1}, s{sT+1}, {nw*8192}
        s_add_u32 s{sT}, s{sT}, s{sT+1}
        v_and_b32 v{vT0}, 63, v0
        v_lshlrev_b32 v{vT0}, 7, v{vT0}
        buffer_load_dword v{TT+5}, v{vT0}, {sq(S_X)}, s{sT} offen""")
    g(f"""s_load_dword s{sTag}, {sp(pWS)}, {WS_EPOCH}
    s_mov_b32 s{S_X}, s{pX}
    s_mov_b32 s{S_X+1}, s{pX+1}
    s_mov_b32 s{S_X+2}, {N*256}
    s_mov_b32 s{S_X+3}, 0x20000
    s_mul_i32 s{sN}, s2, {NPB*256}
    {isprod}
    s_cbranch_scc0 k_noedge
    s_mov_b64 exec, {sp(sVal)}
    s_cbranch_execz k_noedge
    global_load_dwordx4 {vr(Dd,4)}, v{vT1}, {sp(pDST)}{o.edgeflag}
    global_load_dwordx4 {vr(Dd+4,4)}, v{vQ}, {sp(pDST)}{o.edgeflag}
    global_load_dwordx4 {vr(Ss,4)}, v{vT1}, {sp(pSRC)}{o.edgeflag}
    global_load_dwordx4 {vr(Ss+4,4)}, v{vQ}, {sp(pSRC)}{o.edgeflag}
""")
    npfa = 0
    g("k_noedge:\ns_mov_b64 exec, -1")
    stamp("aux")
    for i in range(4): g(f"v_mov_b32 v{AN+i}, 0")
    g(f"""s_cmp_ge_u32 s{sW}, 2
    s_cbranch_scc1 k_i0
    ds_write_b128 v1, {vr(AN,4)}
k_i0:
    s_cmp_lt_u32 s{sW}, 8
    s_cbranch_scc1 k_i1
    {isprod}
    s_cbranch_scc1 k_i1""")
    wq_loads()
    g("k_i1:")
    g(f"""s_mul_i32 s{sT}, s2, 16000
    s_add_u32 s{S_CST}, s{pWS}, {WS_CELLS}
    s_addc_u32 s{S_CST+1}, s{pWS+1}, 0
    s_mov_b32 s{S_CST+2}, {CELLS_BYTES}
    s_mov_b32 s{S_CST+3}, 0x20000
    s_add_u32 s{S_CELL}, s{S_CST}, s{sT}
    s_addc_u32 s{S_CELL+1}, s{S_CST+1}, 0
    s_mov_b32 s{S_CELL+2}, 16000
    s_mov_b32 s{S_CELL+3}, 0x20000
    s_add_u32 s{S_OUT}, s{pOUT}, s{sN}
    s_addc_u32 s{S_OUT+1}, s{pOUT+1}, 0
    s_mov_b32 s{S_OUT+2}, {NPB*256}
    s_mov_b32 s{S_OUT+3}, 0x20000
    v_and_b32 v{vT0}, 3, v0
    v_lshl_add_u32 v{vLP}, v3, 2, v{vT0}
    v_lshlrev_b32 v{vLP}, 4, v{vLP}
    v_and_b32 v{vT1}, 12, v0
    v_lshlrev_b32 v{vFL}, 1, v{vLP}
    v_lshl_add_u32 v{vFL}, v{vT1}, 1, v{vFL}
    v_mov_b32 v{vM0}, 0xffff
    v_and_b32 v{vM1}, 1, v0
    v_lshlrev_b32 v{vM1}, 4, v{vM1}
    v_lshlrev_b32 v{vM1}, v{vM1}, v{vM0}
    v_cmp_gt_u32 vcc, 2, v{vT0}
    v_mov_b32 v{vFour}, 4
    s_mov_b32 s{sM}, 0x000f000f
    v_cndmask_b32 v{vM0}, 0, v{vM1}, vcc
    v_cndmask_b32 v{vM1}, v{vM1}, 0, vcc
    s_mov_b32 s{sM+1}, 0x000f000f
    s_lshl_b64 {sp(sM+2)}, {sp(sM)}, 4
    s_lshl_b64 {sp(sM+4)}, {sp(sM)}, 8
    s_lshl_b64 {sp(sM+6)}, {sp(sM)}, 12
    s_mov_b32 s{sSc}, 0xbe0293ee
    s_movk_i32 s{s68}, 68
    s_mov_b32 s{sAM}, {PADMARK}
    s_mov_b32 s{sRound}, 0
    v_lshrrev_b32 v{vT0}, 3, v0
    v_mul_u32_u24 v{vQ}, {IST}, v{vT0}
    v_and_b32 v{vT1}, 0x70, v1
    v_add_u32 v{vQ}, v{vQ}, v{vT1}
    v_add_u32 v{vQ}, {IMG}, v{vQ}""")
    stamp("consts")
    g("s_waitcnt lgkmcnt(0)")
    stamp("epoch")
    g(f"""s_add_u32 s{sTag}, s{sTag}, 0x400000
    s_and_b32 s{sTag}, s{sTag}, {TAGMASK}
    {isprod}
    s_cbranch_scc0 k_cons""")
    for i in range(4): g(f"v_mov_b32 v{AN+i}, s{sTag}")
    g(f"""s_movk_i32 s{sT+4}, 16000
    v_mad_u32_u24 v{vT1}, v{vT0}, s{sT+4}, v{vT1}
    s_mov_b32 s{sT}, 85899346
    s_movk_i32 s{sT+1}, -50
    s_or_b32 s{sT+2}, s{sTag}, 0x80000000
    s_mov_b32 s{sT+3}, {IMG}
    ds_write_b128 v{vQ}, {vr(AN,4)}
    ds_write_b128 v{vQ}, {vr(AN,4)} offset:{128*IST}
    v_mov_b32 v{TT}, {IST//4}
    s_cmp_lt_u32 s{sW}, 8
    s_cbranch_scc1 k_px""")
    x_loads()
    g("""k_px:
    s_waitcnt lgkmcnt(0)""")
    stamp("img")
    g("s_barrier")
    stamp("ba")
    def ssync(k):
        l = g.lab("ss")
        g(f"""v_mov_b32 v{TT+3}, 0
        s_mov_b64 exec, 1
        ds_add_u32 v{TT+3}, v{vFour} offset:{SRTC}
        s_mov_b64 exec, -1
        {l}:
        ds_read_b32 v{TT+4}, v{TT+3} offset:{SRTC}
        s_waitcnt lgkmcnt(0)
        v_cmp_gt_u32 vcc, {32*k}, v{TT+4}
        s_cbranch_vccnz {l}""")
    g(f"""s_cmp_ge_u32 s{sW}, 8
    s_cbranch_scc1 k_auxp
k_bin:
    s_mov_b64 exec, {sp(sVal)}
    s_cbranch_execz k_binned
    s_waitcnt vmcnt(2)""")
    stamp("edges")
    for i in range(8):
        g(f"""v_mul_hi_u32 v{B4+i}, v{Dd+i}, s{sT}
        v_lshlrev_b32 v{B4+i}, 2, v{B4+i}
        ds_add_rtn_u32 v{Rk+i}, v{B4+i}, v{vFour} offset:{PCNT}""")
    g("s_waitcnt vmcnt(0)")
    for i in range(8):
        g(f"""v_lshl_add_u32 v{Ss+i}, v{Ss+i}, 6, v{Dd+i}
        v_lshl_add_u32 v{Ss+i}, v{Ss+i}, 2, s{sT+2}
        v_mad_i32_i24 v{Ss+i}, v{B4+i}, s{sT+1}, v{Ss+i}
        v_mad_u32_u24 v{Tm+i}, v{B4+i}, v{TT}, s{sT+3}""")
    g("s_waitcnt lgkmcnt(0)")
    g(f"""v_max3_u32 v{vT0}, v{Rk}, v{Rk+1}, v{Rk+2}
    v_max3_u32 v{vT0}, v{vT0}, v{Rk+3}, v{Rk+4}
    v_max3_u32 v{vT0}, v{vT0}, v{Rk+5}, v{Rk+6}
    v_max_u32 v{vT0}, v{vT0}, v{Rk+7}
    v_cmp_le_u32 vcc, {CAP*4}, v{vT0}""")
    for i in range(8): g(f"v_add_u32 v{Tm+i}, v{Rk+i}, v{Tm+i}")
    g("s_cbranch_vccnz k_slow")
    for i in range(8): g(f"ds_write_b32 v{Tm+i}, v{Ss+i}")
    g(f"""k_binned:
    s_mov_b64 exec, -1
    v_mov_b32 v{vT0}, {OVN}
    s_lshl_b32 s{sT}, s2, 7
    s_add_u32 s{sT+1}, s{sT}, {64*16000}
    s_add_u32 s{sT+2}, s{sT}, {128*16000}
    s_add_u32 s{sT+3}, s{sT}, {192*16000}
    s_waitcnt lgkmcnt(0)""")
    stamp("binned")
    ssync(1)
    stamp("bb")
    def img_reads():
        for k in range(4): g(f"ds_read_b128 {vr(12+4*k,4)}, v{vQ} offset:{64*k*IST}")
    g(f"ds_read_b32 v{Tm}, v{vT0}")
    img_reads()
    g(f"""s_waitcnt lgkmcnt(4)
    v_cmp_ne_u32 vcc, 0, v{Tm}
    s_cbranch_vccnz k_flag
k_copy:""")
    if o.partial:
        g(f"s_mov_b32 s{sVal+2}, 0x01010101\ns_mov_b32 s{sVal+3}, 0x01010101")
    for k in range(4):
        g(f"s_waitcnt lgkmcnt({3-k})")
        if o.partial:
            g(f"""v_cmp_gt_i32 vcc, 0, v{12+4*k+3}
            s_lshl_b64 vcc, vcc, 1
            s_or_b64 exec, vcc, {sp(sVal+2)}""")
        g(f"buffer_store_dwordx4 {vr(12+4*k,4)}, v{vT1}, {sq(S_CST)}, s{sT+k} offen{o.stflag}")
        if o.partial: g("s_mov_b64 exec, -1")
    stamp("copied")
    if "drained" in sel:
        g("s_waitcnt vmcnt(0)")
        stamp("drained")
    g("s_branch k_sorter")
    g(f"""k_cons:
    s_barrier
    s_cmp_ge_u32 s{sW}, 8
    s_cbranch_scc1 k_aux0
    s_cmp_lg_u32 s{sW}, 7
    s_cbranch_scc1 k_sorter
    v_mov_b32 v{vT0}, 0
    s_mov_b64 exec, 1
    global_atomic_add v{vT0}, v{vFour}, {sp(pDBG)}
    s_mov_b64 exec, -1
    s_branch k_sorter
k_auxp:""")
    wq_loads()
    g("s_waitcnt vmcnt(0)\ns_branch k_aux1\nk_aux0:")
    x_loads()
    npf = 0
    for k in range(0, o.pfa, 8):
        prefetch(min(8, o.pfa - k), NC, 16 * k * 8192); npf += 1
    g(f"s_waitcnt vmcnt({npf})\nk_aux1:")
    stamp("prebc")
    g(f"""v_mov_b32 v{vT0}, 0
    s_mov_b64 exec, 1
    ds_add_u32 v{vT0}, v{vFour} offset:{AUXC}
    s_mov_b64 exec, -1
k_as:
    ds_read_b32 v{vT1}, v{vT0} offset:{AUXC}
    s_waitcnt lgkmcnt(0)
    v_cmp_gt_u32 vcc, 32, v{vT1}
    s_cbranch_vccnz k_as""")
    stamp("bc")
    if not o.wvb1: wv_loads()
    g(f"""s_bfe_u32 s{sT}, s{sW}, 0x10002
    s_lshl_b32 s{sT+1}, s{sT}, 3
    v_lshrrev_b32 v{vQ}, 2, v2
    v_bfe_u32 v{TT}, v0, 1, 1
    v_add_u32 v{TT}, s{sT+1}, v{TT}
    v_and_b32 v{TT+1}, 1, v3
    v_lshl_add_u32 v{TT+1}, v{TT+1}, 2, v{vQ}
    v_lshlrev_b32 v{TT+1}, 1, v{TT+1}
    v_xor_b32 v{TT}, v{TT}, v{TT+1}
    v_lshl_add_u32 v{vQ}, v3, 3, v{vQ}
    v_lshlrev_b32 v{vQ}, 8, v{vQ}
    v_lshl_add_u32 v{vQ}, v{TT}, 4, v{vQ}
    v_and_b32 v{TT}, 1, v0
    v_lshl_add_u32 v{vQ}, v{TT}, 3, v{vQ}
    v_add_u32 v{vQ}, {WQ}, v{vQ}
    v_xor_b32 v{TT}, 32, v{vQ}
    v_xor_b32 v{TT+1}, 64, v{vQ}
    v_xor_b32 v{TT+2}, 0x60, v{vQ}""")
    WF = [28, 44]
    def trq(T, dst):
        va = vQ if T == 0 else TT + T - 1
        for s_ in range(4):
            for h in range(2):
                g(f"ds_read_b64_tr_b16 {vr(dst+4*s_+2*h,2)}, v{va} offset:{s_*8192 + h*1024}")
    WB = [28, 44, 60, 76]
    g(f"""s_and_b32 s{sT+1}, s{sW}, 3
    s_lshl_b32 s{sT+1}, s{sT+1}, 12
    s_add_u32 s{sT+1}, s{sT+1}, {WV}
    v_xor_b32 v{vT0}, v3, v2
    v_lshlrev_b32 v{vT0}, 4, v{vT0}
    v_lshl_add_u32 v{vT0}, v2, 8, v{vT0}
    v_add_u32 v{vT0}, s{sT+1}, v{vT0}""")
    for s_ in range(4):
        if s_: g(f"v_xor_b32 v{vT1}, {64*s_}, v{vT0}")
        g(f"ds_read_b128 {vr(12+4*s_,4)}, v{vT1 if s_ else vT0}")
    trq(0, WB[0]); trq(1, WB[1])
    g(f"""s_and_b32 s{sT+1}, s{sW}, 3
    s_lshl_b32 s{sT+2}, s{sT+1}, 4
    s_mul_i32 s{sT+1}, s{sT+1}, {16*272}
    s_lshl_b32 s{sT}, s{sT}, 7
    s_add_u32 s{sT}, s{sT}, s{sT+1}
    v_mul_u32_u24 v{vT0}, 272, v2
    v_and_b32 v{vT1}, 1, v3
    v_lshl_add_u32 v{vT0}, v{vT1}, 5, v{vT0}
    v_lshrrev_b32 v{vT1}, 1, v3
    v_lshl_add_u32 v{vT0}, v{vT1}, 4, v{vT0}
    v_add_u32 v{vT0}, s{sT}, v{vT0}
    v_add_u32 v{vT1}, s{sT+2}, v2
    v_cmp_gt_u32 {sp(sVal)}, {NPB}, v{vT1}
    s_waitcnt lgkmcnt(0)""")
    trq(2, WB[2]); trq(3, WB[3])
    for jj in range(2):
        if jj == 1: g("s_waitcnt lgkmcnt(1)")
        for s_ in range(4):
            for T in range(2):
                d = 4 + 4 * T
                cc = "0" if s_ == 0 else vr(d, 4)
                g(f"v_mfma_f32_16x16x32_bf16 {vr(d,4)}, {vr(WB[2*jj+T]+4*s_,4)}, {vr(12+4*s_,4)}, {cc}")
        g(f"""s_nop 6
        v_cvt_pk_bf16_f32 v4, v4, v5
        v_cvt_pk_bf16_f32 v5, v6, v7
        v_cvt_pk_bf16_f32 v6, v8, v9
        v_cvt_pk_bf16_f32 v7, v10, v11
        s_nop 1
        v_permlane16_swap_b32 v4, v6
        v_permlane16_swap_b32 v5, v7
        s_mov_b64 exec, {sp(sVal)}
        ds_write_b128 v{vT0}, v[4:7] offset:{QT + jj*64}
        s_mov_b64 exec, -1""")
    def zero_main():
        for i in range(16): g(f"v_mov_b32 v{A+i}, 0")
        for i in range(8): g(f"v_mov_b32 v{AC+i}, 0")
    zero_main()
    g("s_waitcnt vmcnt(0)" if not o.wvlate else "")
    stamp("qdone")
    g("s_branch k_b1")
    g("k_sorter:")
    for i in range(4): g(f"v_mov_b32 v{AN+4+i}, {PADMARK}")
    g(f"""ds_write_b128 v1, {vr(AN+4,4)} offset:{LIST}
    ds_write_b128 v1, {vr(AN+4,4)} offset:{LIST+8192}
    s_cmp_lg_u32 s{sW}, 0
    s_cbranch_scc1 k_s1
    ds_write_b128 v1, {vr(AN+4,4)} offset:{LIST+16384}
k_s1:""")
    for i in range(4): g(f"v_mov_b32 v{AN+i}, 0")
    for k in range(3): g(f"ds_write_b128 v1, {vr(AN,4)} offset:{AGG+8192*k}")
    g(f"""v_cmp_gt_u32 vcc, {(50*544-3*8192)//16}, v0
    s_mov_b64 exec, vcc
    ds_write_b128 v1, {vr(AN,4)} offset:{AGG+8192*3}
    s_mov_b64 exec, -1""")
    zero_main()
    pA, pB = sVal, sVal + 2
    g(f"""s_mov_b64 {sp(pA)}, -1
    s_movk_i32 s{sT}, {16000-8192}
    v_cmp_gt_u32 {sp(pB)}, s{sT}, v1""")
    for i in range(4): g(f"v_mov_b32 v{8+i}, 0")
    if o.partial:
        g(f"""s_mov_b64 {sp(sVal+8)}, {sp(pB)}
        s_mov_b64 {sp(sVal+12)}, 0
        s_mov_b64 {sp(sVal+14)}, 0
        s_mov_b32 s{sVal+10}, 0x7f7f7f7f
        s_mov_b32 s{sVal+11}, 0x7f7f7f7f""")
    g(f"""s_movk_i32 s{sT}, 8192
    s_mov_b32 s{sT+1}, {TAGMASK}
    s_mov_b32 s{sT+2}, {o.spin}""")
    if o.pdelay:
        g(f"{isprod}\ns_cbranch_scc1 k_poll")
        for k in range(0, o.pdelay, 100): g(f"s_sleep {min(100, o.pdelay - k)}")
    if o.gate >= 0:
        g(f"""s_mov_b64 exec, 1
        s_lshl_b64 exec, exec, {8*o.gate}
k_gate:
        buffer_load_dwordx4 v[4:7], v1, {sq(S_CELL)}, {"s%d" % sT if o.gateb else "0"} offen{SC}
        s_sub_u32 s{sT+2}, s{sT+2}, 1
        s_cbranch_scc1 k_pto
        s_waitcnt vmcnt(0)
        v_bitop3_b32 v{vT0}, v4, s{sTag}, v4 bitop3:0x3c
        v_and_b32 v{vT0}, s{sT+1}, v{vT0}
        v_cmp_ne_u32 vcc, 0, v{vT0}
        s_cbranch_vccnz k_gate""")
    g(f"""s_branch k_poll
k_poll0:""")
    if o.psleep: g(f"s_sleep {o.psleep}")
    g(f"""k_poll:
    s_mov_b64 exec, {sp(pA)}
    s_cbranch_execz k_p1
    buffer_load_dwordx4 v[4:7], v1, {sq(S_CELL)}, 0 offen{SC}
k_p1:
    s_mov_b64 exec, {sp(pB)}
    s_cbranch_execz k_p2
    buffer_load_dwordx4 v[8:11], v1, {sq(S_CELL)}, s{sT} offen{SC}
k_p2:
    s_mov_b64 exec, -1
    s_sub_u32 s{sT+2}, s{sT+2}, 1
    s_cbranch_scc1 k_pto
    s_waitcnt vmcnt(0)
    v_bitop3_b32 v{vT0}, v4, v5, s{sTag} bitop3:0x7e
    v_bitop3_b32 v{vT1}, v6, v7, s{sTag} bitop3:0x7e
    v_bitop3_b32 v{TT}, v8, v9, s{sTag} bitop3:0x7e
    v_bitop3_b32 v{TT+1}, v10, v11, s{sTag} bitop3:0x7e
    v_bitop3_b32 v{vT0}, v{vT0}, v{vT1}, s{sT+1} bitop3:0xa8
    v_bitop3_b32 v{TT}, v{TT}, v{TT+1}, s{sT+1} bitop3:0xa8
""")
    okA, okB, inB, fst, ndA, ndB = sVal + 4, sVal + 6, sVal + 8, sVal + 10, sVal + 12, sVal + 14
    if not o.partial:
        g(f"""v_cmp_ne_u32 {sp(pA)}, 0, v{vT0}
        v_cmp_ne_u32 vcc, 0, v{TT}
        s_and_b64 {sp(pB)}, {sp(pB)}, vcc
        s_or_b64 vcc, {sp(pA)}, {sp(pB)}
        s_cbranch_scc1 k_poll0
k_polled:""")
        stamp("polled")
        g(f"""v_bitop3_b32 v{vT0}, v4, v8, 2 bitop3:0xa8
        v_cmp_ne_u32 vcc, 0, v{vT0}""")
        for i in range(8): g(f"v_cmp_gt_i32 {sp(sVal+2*i)}, 0, v{4+i}")
    else:
        g(f"""v_cmp_eq_u32 {sp(okA)}, 0, v{vT0}
        v_cmp_eq_u32 {sp(okB)}, 0, v{TT}
        v_cmp_gt_i32 {sp(pA)}, 0, v7
        v_cmp_gt_i32 {sp(pB)}, 0, v11
        s_and_b64 {sp(pA)}, {sp(pA)}, {sp(okA)}
        s_and_b64 {sp(pB)}, {sp(pB)}, {sp(okB)}
        s_and_b64 {sp(pA)}, {sp(pA)}, {sp(fst)}
        s_and_b64 {sp(pB)}, {sp(pB)}, {sp(fst)}
        s_add_u32 s{ndA}, s{pA}, 0x01010101
        s_add_u32 s{ndA+1}, s{pA+1}, 0x01010101
        s_add_u32 s{ndB}, s{pB}, 0x01010101
        s_add_u32 s{ndB+1}, s{pB+1}, 0x01010101
        s_xor_b64 {sp(ndA)}, {sp(ndA)}, {sp(pA)}
        s_xor_b64 {sp(ndB)}, {sp(ndB)}, {sp(pB)}
        s_and_b64 {sp(ndB)}, {sp(ndB)}, {sp(inB)}
        s_andn2_b64 {sp(pA)}, {sp(ndA)}, {sp(okA)}
        s_andn2_b64 {sp(pB)}, {sp(ndB)}, {sp(okB)}
        s_or_b64 vcc, {sp(pA)}, {sp(pB)}
        s_cbranch_scc1 k_poll0
k_polled:""")
        stamp("polled")
        g(f"""s_mov_b64 {sp(sFl)}, {sp(ndB)}
        s_mov_b64 exec, {sp(ndA)}
        v_and_b32 v{vT0}, 2, v4
        v_cmp_ne_u32 {sp(sRet)}, 0, v{vT0}""")
        for i in range(4): g(f"v_cmp_gt_i32 {sp(sVal+2*i)}, 0, v{4+i}")
        g(f"""s_mov_b64 exec, {sp(sFl)}
        v_and_b32 v{vT0}, 2, v8
        v_cmp_ne_u32 vcc, 0, v{vT0}""")
        for i in range(4, 8): g(f"v_cmp_gt_i32 {sp(sVal+2*i)}, 0, v{4+i}")
        g(f"""s_mov_b64 exec, -1
        s_or_b64 vcc, vcc, {sp(sRet)}""")
    g("s_cbranch_vccnz k_mark\nk_round:")
    Tn, Rn, On = 12, 20, 28
    for i in range(8):
        g(f"v_and_b32 v{Tn+i}, 0xfc, v{4+i}")
    for i in range(8):
        g(f"s_mov_b64 exec, {sp(sVal+2*i)}\nds_add_rtn_u32 v{Rn+i}, v{Tn+i}, v{vFour} offset:{CNT2}")
    g(f"""s_mov_b64 exec, -1
k_b1:
    v_and_b32 v{vT0}, 63, v0
    v_lshlrev_b32 v{vT0}, 2, v{vT0}
    v_and_b32 v{vLA}, 12, v0
    v_lshlrev_b32 v{vGA}, 2, v{vLA}
    s_waitcnt lgkmcnt(0)
    s_barrier""")
    stamp("b1")
    c, inc = vT1, vQ
    g(f"ds_read_b32 v{c}, v{vT0} offset:{CNT2}")
    if o.pfb or o.wvb1:
        l = g.lab("pb")
        g(f"s_cmp_lt_u32 s{sW}, 8\ns_cbranch_scc1 {l}\ns_cmp_lg_u32 s{sRound}, 0\ns_cbranch_scc1 {l}")
        if o.wvb1:
            wv_loads()
            g(f"v_and_b32 v{vLA}, 12, v0\nv_lshlrev_b32 v{vGA}, 2, v{vLA}")
        if o.pfb: prefetch(o.pfb, 0, 16 * o.pfa * 8192)
        g(f"{l}:")
    g(f"""s_waitcnt lgkmcnt(0)
    v_add_u32 v{c}, 12, v{c}
    v_and_b32 v{c}, -16, v{c}
    s_nop 1
    v_add_u32_dpp v{inc}, v{c}, v{c} row_shr:1 row_mask:0xf bank_mask:0xf bound_ctrl:0
    s_nop 1
    v_add_u32_dpp v{inc}, v{inc}, v{inc} row_shr:2 row_mask:0xf bank_mask:0xf bound_ctrl:0
    s_nop 1
    v_add_u32_dpp v{inc}, v{inc}, v{inc} row_shr:4 row_mask:0xf bank_mask:0xf bound_ctrl:0
    s_nop 1
    v_add_u32_dpp v{inc}, v{inc}, v{inc} row_shr:8 row_mask:0xf bank_mask:0xf bound_ctrl:0
    s_nop 1
    v_add_u32_dpp v{inc}, v{inc}, v{inc} row_bcast:15 row_mask:0xa bank_mask:0xf
    s_nop 1
    v_add_u32_dpp v{inc}, v{inc}, v{inc} row_bcast:31 row_mask:0xc bank_mask:0xf
    s_cmp_ge_u32 s{sW}, 8
    v_sub_u32 v{c}, v{inc}, v{c}
    v_readlane_b32 s{sG}, v{inc}, 63
    s_cbranch_scc1 k_nosc""")
    for i in range(8): g(f"ds_bpermute_b32 v{On+i}, v{Tn+i}, v{c}")
    g("k_nosc:")
    g(f"""v_add_u32 v{inc}, v{inc}, v{c}
    v_lshlrev_b32 v{inc}, 3, v{inc}
    s_mul_i32 s{sT}, s{sW}, s{sG}
    s_add_u32 s{sT+1}, s{sT}, s{sG}
    v_cmp_le_u32 vcc, s{sT}, v{inc}
    v_cmp_le_u32 {sp(sFl)}, s{sT+1}, v{inc}
    s_ff1_i32_b64 s{sT}, vcc
    s_ff1_i32_b64 s{sT+1}, {sp(sFl)}
    v_readlane_b32 s{sT}, v{c}, s{sT}
    v_readlane_b32 s{sT+1}, v{c}, s{sT+1}
    s_cmp_ge_u32 s{sW}, 8
    s_cbranch_scc1 k_nosc2""")
    for half in range(2):
        g("s_waitcnt lgkmcnt(4)")
        for i in range(4 * half, 4 * half + 4): g(f"v_add_u32 v{On+i}, v{On+i}, v{Rn+i}")
        for i in range(4 * half, 4 * half + 4):
            g(f"s_mov_b64 exec, {sp(sVal+2*i)}\nds_write_b32 v{On+i}, v{4+i} offset:{LIST}")
        g("s_mov_b64 exec, -1")
    prio_ev = [int(x) for x in o.prio.split(",")] if o.prio else []
    evs = sorted(set(list(range(1, DP)) + [1, DP + 1] + prio_ev))
    evmask = sum(1 << e for e in evs)
    g(f"""k_nosc2:
    s_sub_u32 s{sRem}, s{sT+1}, s{sT}
    s_add_u32 s{sT}, s{sT}, {LIST}
    v_add_u32 v{vLA}, s{sT}, v{vLA}
    v_add_u32 v{vGA}, s{sT}, v{vGA}
    s_lshr_b32 s{sRem}, s{sRem}, 4
    s_sub_u32 s{sLB}, s{sRem}, 1
    s_and_b32 s{sLB}, s{sLB}, 3
    s_cmp_lt_u32 s{sLB}, 1
    s_cselect_b32 s{sL+1}, {BIG}, 0
    s_cmp_lt_u32 s{sLB}, 2
    s_cselect_b32 s{sL+2}, {BIG}, 0
    s_cmp_lt_u32 s{sLB}, 3
    s_cselect_b32 s{sL+3}, {BIG}, 0
    s_lshl_b32 s{sLB}, s{sLB}, 2
    s_lshl_b32 s{sLB}, 1, s{sLB}
    s_lshl_b32 s{sLM}, s{sLB}, 1
    s_sub_u32 s{sLM}, s{sLM}, 1
    s_add_u32 s{sRem}, s{sRem}, 3
    s_lshr_b32 s{sRem}, s{sRem}, 2
    s_mov_b32 s{sEv}, {evmask}
    s_mov_b32 s{sFA}, -1
    s_mov_b32 s{sFO}, 0""")
    if prio_ev: g("s_setprio 3")
    g("s_waitcnt lgkmcnt(0)\ns_barrier")
    stamp("b2")
    def readE():
        g(f"ds_read2_b32 {vr(Ee,2)}, v{vLA} offset0:0 offset1:4\nds_read2_b32 {vr(Ee+2,2)}, v{vLA} offset0:8 offset1:12")
    def readCN(p):
        g(f"ds_read_u8 v{CN[p]}, v{vGA}\nds_read_u8 v{CN[p]+1}, v{vGA} offset:16")
    def adv():
        g(f"v_add_u32 v{vLA}, 64, v{vLA}\nv_add_u32 v{vGA}, 64, v{vGA}")
    def addr(t): return f"v_and_or_b32 v{Ee+t}, v{Ee+t}, s{sAM}, v{vLP}"
    def setO(k):
        g(f"s_cmp_eq_u32 s{sRem}, {k}")
        for t in range(1, 4): g(f"s_cselect_b32 s{sO+t}, s{sL+t}, 0")
    def loadX(p):
        for t in range(4):
            so = "0" if t == 0 else f"s{sO+t}"
            g(f"buffer_load_dwordx4 {vr(X[p]+4*t,4)}, v{Ee+t}, {sq(S_X)}, {so} offen")
    def readQ(p):
        g(f"v_mad_u32_u24 v{vQ}, v{CN[p]}, s{s68}, v{vLP}")
        for t in range(4):
            g(f"s_mov_b64 exec, {sp(sM+2*t)}\nds_read_b128 {vr(A+4*t,4)}, v{vQ} offset:{QT}")
        g("s_mov_b64 exec, -1")
    flush_sites = []; ev_sites = []
    def body(p):
        q = (p + 1) % DP
        le, lr = g.lab("ev"), g.lab("er")
        ev_sites.append((le, lr))
        readE()
        g(f"""s_bitcmp1_b32 s{sEv}, s{sRem}
        s_cbranch_scc1 {le}
        {lr}:
        s_waitcnt vmcnt({4*(DP-1)}) lgkmcnt(2)""")
        for t in range(4):
            cc = "0" if t == 0 else vr(AL, 4)
            if "l" not in o.abl: g(f"v_mfma_f32_16x16x32_bf16 {vr(AL,4)}, {vr(A+4*t,4)}, {vr(X[p]+4*t,4)}, {cc}")
        g(f"v_cmp_ne_u32 {sp(sFl)}, v{CN[p]}, v{CN[p]+1}")
        readQ(q)
        if "v" in o.abl:
            g(f"s_and_b32 s{sFl}, s{sFl}, s{sFA}\ns_or_b32 s{sFl}, s{sFl}, s{sFO}\ns_waitcnt lgkmcnt(4)")
            for t in range(4): g(addr(t))
        else:
            g(f"""s_and_b32 s{sFl}, s{sFl}, s{sFA}
            s_or_b32 s{sFl}, s{sFl}, s{sFO}
            v_add_f32_dpp v{vT0}, v{AL+1}, v{AL} quad_perm:[1,1,1,1] row_mask:0xf bank_mask:0xf
            v_add_f32_dpp v{vT0}, v{AL+2}, v{vT0} quad_perm:[2,2,2,2] row_mask:0xf bank_mask:0xf
            v_add_f32_dpp v{vT0}, v{AL+3}, v{vT0} quad_perm:[3,3,3,3] row_mask:0xf bank_mask:0xf
            v_mul_f32 v{vT0}, s{sSc}, v{vT0}
            v_exp_f32 v{vT0}, v{vT0}
            s_waitcnt lgkmcnt(4)
            v_add_f32 v{vT0}, 1.0, v{vT0}
            v_rcp_f32 v{vT0}, v{vT0}
            {addr(0)}
            v_cvt_pk_bf16_f32 v{AP}, v{vT0}, v{vT0}
            v_cvt_pk_bf16_f32 v{AP+1}, v{vT0}, v{vT0}
            {addr(1)}
            {addr(2)}
            v_permlane16_swap_b32 v{AP}, v{AP+1}
            v_mov_b32 v{AP+2}, v{AP}
            v_mov_b32 v{AP+3}, v{AP+1}
            {addr(3)}
            s_nop 0
            v_permlane32_swap_b32 v{AP}, v{AP+2}
            v_permlane32_swap_b32 v{AP+1}, v{AP+3}
            s_nop 0""")
            for t in range(4):
                g(f"""v_and_b32_dpp v{AN+2*t}, v{AP+t}, v{vM0} quad_perm:[0,0,0,0] row_mask:0xf bank_mask:0xf
                v_and_b32_dpp v{AN+2*t+1}, v{AP+t}, v{vM1} quad_perm:[0,0,0,0] row_mask:0xf bank_mask:0xf""")
        for t in range(4):
            lf, lb = g.lab("fl"), g.lab("fb")
            if "m" not in o.abl:
                g(f"""v_mfma_f32_4x4x4_16b_bf16 {vr(AC,4)}, {vr(AN+2*t,2)}, {vr(X[p]+4*t,2)}, {vr(AC,4)}
                v_mfma_f32_4x4x4_16b_bf16 {vr(AC+4,4)}, {vr(AN+2*t,2)}, {vr(X[p]+4*t+2,2)}, {vr(AC+4,4)}""")
            if "f" not in o.abl:
                g(f"""s_bitcmp1_b32 s{sFl}, {4*t}
                s_cbranch_scc1 {lf}""")
            else: g("s_nop 1")
            g(f"{lb}:")
            flush_sites.append((lf, lb, CN[p], 4 * t))
        ls = g.lab("sk")
        g(f"s_cmp_le_u32 s{sRem}, {DP}\ns_cbranch_scc1 {ls}")
        loadX(p)
        g(f"{ls}:")
        readCN(p); adv()
        g(f"s_sub_u32 s{sRem}, s{sRem}, 1\ns_cmp_eq_u32 s{sRem}, 0\ns_cbranch_scc1 k_done")
    g(f"""s_cmp_eq_u32 s{sRem}, 0
    s_cbranch_scc1 k_done""")
    for p in range(DP):
        readE(); readCN(p); adv(); setO(p + 1)
        if p > 0: g(f"s_cmp_lt_u32 s{sRem}, {p+1}\ns_cbranch_scc1 k_pro")
        g("s_waitcnt lgkmcnt(2)")
        for t in range(4): g(addr(t))
        loadX(p)
    g("k_pro:\ns_waitcnt lgkmcnt(0)")
    readQ(0)
    g("k_loop:")
    for p in range(DP): body(p)
    g("s_branch k_loop\nk_done:")
    if prio_ev: g("s_setprio 0")
    stamp("main")
    g(f"""s_cmp_lg_u32 s2, {NB-1}
    s_cbranch_scc1 k_ne1
    v_mov_b32 v{vLA}, 0
    global_load_dword v{vGA}, v{vLA}, {sp(pDBG)}{SC}
k_ne1:""")
    g(f"""s_lshr_b32 s{sT}, s{sW}, 2
    s_lshl_b32 s{sT+1}, s{sT}, 2
    v_lshrrev_b32 v{vQ}, 2, v2
    v_bfe_u32 v{TT}, v0, 1, 1
    v_add_u32 v{TT}, s{sT+1}, v{TT}
    v_and_b32 v{TT+1}, 1, v3
    v_lshl_add_u32 v{TT+1}, v{TT+1}, 2, v{vQ}
    v_lshlrev_b32 v{TT+1}, 1, v{TT+1}
    v_xor_b32 v{TT}, v{TT}, v{TT+1}
    v_lshl_add_u32 v{vQ}, v3, 2, v{vQ}
    v_lshlrev_b32 v{vQ}, 8, v{vQ}
    v_lshl_add_u32 v{vQ}, v{TT}, 4, v{vQ}
    v_and_b32 v{TT}, 1, v0
    v_lshl_add_u32 v{vQ}, v{TT}, 3, v{vQ}
    v_add_u32 v{vQ}, {WV}, v{vQ}
    v_xor_b32 v{TT}, 32, v{vQ}""")
    VF = [12, 28]
    def trv():
        for T in range(2):
            for s_ in range(4):
                for h in range(2):
                    g(f"ds_read_b64_tr_b16 {vr(VF[T]+4*s_+2*h,2)}, v{vQ if T == 0 else TT} offset:{s_*8192 + h*4096}")
    if not o.wvlate: trv()
    BA = 44
    g(f"""s_and_b32 s{sT+2}, s{sW}, 3
    s_mul_i32 s{sT+1}, s{sT+2}, {16*544}
    v_mul_u32_u24 v{TT+1}, 544, v2
    v_lshl_add_u32 v{TT+1}, v3, 4, v{TT+1}
    v_add_u32 v{TT+1}, s{sT+1}, v{TT+1}
    v_mov_b32 v{vT0}, 0
    s_lshl_b32 s{sT+2}, s{sT+2}, 12
    s_lshl_b32 s{sT}, s{sT}, 6
    s_add_u32 s{sT}, s{sT}, s{sT+2}
    v_lshlrev_b32 v{vT1}, 8, v2
    v_and_b32 v{TT+2}, 1, v3
    v_lshl_add_u32 v{vT1}, v{TT+2}, 5, v{vT1}
    v_lshrrev_b32 v{TT+2}, 1, v3
    v_lshl_add_u32 v{vT1}, v{TT+2}, 4, v{vT1}
    v_add_u32 v{vT1}, s{sT}, v{vT1}
    s_waitcnt {"vmcnt(0) " if o.wvlate else ""}lgkmcnt(0)
    s_barrier""")
    stamp("b3")
    D0, D1, BM = 76, 80, 84
    g(f"ds_read_b128 {vr(BM,4)}, v{vT0} offset:{OVM}")
    if o.wvlate:
        trv(); g("s_waitcnt lgkmcnt(0)")
    for s_ in range(4):
        for h in range(2):
            g(f"ds_read_b128 {vr(BA+8*s_+4*h,4)}, v{TT+1} offset:{AGG+s_*128+h*64}")
    g(f"""s_waitcnt lgkmcnt(8)
    v_or3_b32 v{vT0}, v{BM}, v{BM+1}, v{BM+2}
    v_or_b32 v{vT0}, v{vT0}, v{BM+3}
    v_cmp_ne_u32 vcc, 0, v{vT0}
    s_cbranch_vccnz k_extra""")
    def mf(s_):
        for T in range(2):
            d = D0 if T == 0 else D1
            cc = "0" if s_ == 0 else vr(d, 4)
            g(f"v_mfma_f32_16x16x32_bf16 {vr(d,4)}, {vr(VF[T]+4*s_,4)}, {vr(BA+8*s_,4)}, {cc}")
    for s_ in range(4):
        g(f"s_waitcnt lgkmcnt({6-2*s_})")
        bb = BA + 8 * s_
        for k in range(4):
            g(f"v_cvt_pk_bf16_f32 v{bb+k}, v{bb+2*k}, v{bb+2*k+1}")
        if s_ > 0: mf(s_ - 1)
    mf(3)
    g(f"""s_nop 6
    v_cvt_pk_bf16_f32 v4, v{D0}, v{D0+1}
    v_cvt_pk_bf16_f32 v5, v{D0+2}, v{D0+3}
    v_cvt_pk_bf16_f32 v6, v{D1}, v{D1+1}
    v_cvt_pk_bf16_f32 v7, v{D1+2}, v{D1+3}
    s_nop 1
    v_permlane16_swap_b32 v4, v6
    v_permlane16_swap_b32 v5, v7
    buffer_store_dwordx4 v[4:7], v{vT1}, {sq(S_OUT)}, 0 offen{o.outflag}""")
    stamp("stored")
    g(f"""s_cmp_lg_u32 s2, {NB-1}
    s_cbranch_scc1 k_fin
    s_cmp_lg_u32 s{sW}, 15
    s_cbranch_scc1 k_fin
    s_mov_b32 s{sT+2}, {o.spin}
    s_waitcnt vmcnt(1)
k_ep:
    v_readfirstlane_b32 s{sT}, v{vGA}
    s_cmp_ge_u32 s{sT}, {4*(NB-NC)}
    s_cbranch_scc1 k_ep2
    s_sub_u32 s{sT+2}, s{sT+2}, 1
    s_cbranch_scc1 k_ep2
    global_load_dword v{vGA}, v{vLA}, {sp(pDBG)}{SC}
    s_waitcnt vmcnt(0)
    s_branch k_ep
k_ep2:
    v_mov_b32 v{vGA}, s{sTag}
    s_mov_b64 exec, 1
    global_store_dword v{vLA}, v{vGA}, {sp(pWS)} offset:{WS_EPOCH}
    s_mov_b64 exec, -1
k_fin:""")
    if o.stamps:
        g("s_waitcnt vmcnt(0)")
        stamp("end")
        g("s_waitcnt lgkmcnt(0)")
        l = g.lab("st")
        g(f"""v_cmp_eq_u32 vcc, {o.stw*64}, v0
        s_and_saveexec_b64 s[52:53], vcc
        s_cbranch_execz {l}
        s_add_u32 s54, s{pWS}, {WS_STAMP}
        s_addc_u32 s55, s{pWS+1}, 0
        s_mul_i32 s56, s2, 64
        v_mov_b32 v1, s56""")
        for i in range(8):
            g(f"v_mov_b32 v2, s{ST0+2*i}\nv_mov_b32 v3, s{ST0+2*i+1}\nglobal_store_dwordx2 v1, v[2:3], s[54:55] offset:{8*i}\ns_nop 1")
        g(f"s_waitcnt vmcnt(0)\n{l}:")
    g("k_end:\ns_endpgm")
    for lf, lb, cn, lane in flush_sites:
        g(f"""{lf}:
        v_readlane_b32 s{sN}, v{cn}, {lane}
        s_call_b64 {sp(sRet)}, k_flush
        s_branch {lb}""")
    g(f"k_flush:\ns_nop 0\ns_mulk_i32 s{sN}, 136")
    for k in range(4):
        g(f"v_add_f32_dpp v{TT+k}, v{AC+k}, v{AC+k} row_ror:8 row_mask:0xf bank_mask:0x3")
    for k in range(4):
        g(f"v_add_f32_dpp v{TT+k}, v{AC+4+k}, v{AC+4+k} row_ror:8 row_mask:0xf bank_mask:0xc")
    g(f"v_add_u32 v{vT1}, s{sN}, v{vFL}")
    for k in range(2):
        g(f"v_add_f32_dpp v{TT+4+k}, v{TT+k}, v{TT+k} row_shl:4 row_mask:0xf bank_mask:0x5")
    for k in range(2):
        g(f"v_add_f32_dpp v{TT+4+k}, v{TT+2+k}, v{TT+2+k} row_shr:4 row_mask:0xf bank_mask:0xa")
    g(f"s_cmp_lg_u32 s{sRound}, 0\ns_cbranch_scc1 k_flush2\nk_flush3:")
    g(f"ds_write_b64 v{vT1}, {vr(TT+4,2)} offset:{AGG}")
    for k in range(8): g(f"v_mov_b32 v{AC+k}, 0")
    g(f"""s_setpc_b64 {sp(sRet)}
k_flush2:
    ds_read_b64 {vr(TT,2)}, v{vT1} offset:{AGG}
    s_waitcnt lgkmcnt(0)
    v_add_f32 v{TT+4}, v{TT+4}, v{TT}
    v_add_f32 v{TT+5}, v{TT+5}, v{TT+1}
    s_branch k_flush3""")
    for le, lr in ev_sites:
        g(f"{le}:\ns_call_b64 {sp(sRet)}, k_event\ns_branch {lr}")
    g("k_event:")
    setO(DP + 1)
    for i, e in enumerate(sorted(prio_ev, reverse=True)):
        l = g.lab("pe")
        g(f"s_cmp_lg_u32 s{sRem}, {e}\ns_cbranch_scc1 {l}\ns_setprio {2-i}\n{l}:")
    for r in range(DP - 1, 1, -1):
        l = g.lab("we")
        g(f"s_cmp_lg_u32 s{sRem}, {r}\ns_cbranch_scc1 {l}\ns_waitcnt vmcnt({4*(r-1)})\n{l}:")
    g(f"""s_cmp_lg_u32 s{sRem}, 1
    s_cbranch_scc1 k_ev1
    s_mov_b32 s{sFA}, s{sLM}
    s_mov_b32 s{sFO}, s{sLB}
    s_waitcnt vmcnt(0)
k_ev1:
    s_setpc_b64 {sp(sRet)}""")
    g(f"k_pto:\ns_mov_b64 exec, -1\ns_waitcnt vmcnt(0)\ns_branch k_polled")
    S_OV = 60
    def build_ovf(d):
        g(f"""s_add_u32 s{d}, s{pWS}, {WS_OVF}
        s_addc_u32 s{d+1}, s{pWS+1}, 0
        s_mov_b32 s{d+2}, {(WS_OVFCNT - WS_OVF) + 4096}
        s_mov_b32 s{d+3}, 0x20000""")
    g("k_slow:")
    build_ovf(S_OV)
    g(f"""s_mul_i32 s{sT+4}, s2, {CE*4}
    s_mov_b32 s{sG}, {TAGMASK}
    v_mov_b32 v{vT0}, {OVN}""")
    for i in range(8):
        l = g.lab("ov")
        g(f"""s_mov_b64 exec, {sp(sVal)}
        v_cmp_gt_u32 vcc, {CAP*4}, v{Rk+i}
        s_and_b64 exec, {sp(sVal)}, vcc
        ds_write_b32 v{Tm+i}, v{Ss+i}
        s_andn2_b64 exec, {sp(sVal)}, vcc
        s_cbranch_execz {l}
        ds_add_rtn_u32 v{TT+1}, v{vT0}, v{vFour}
        v_lshlrev_b32 v{TT}, 20, v{B4+i}
        v_bfi_b32 v{TT}, s{sG}, v{TT}, v{Ss+i}
        s_waitcnt lgkmcnt(0)
        buffer_store_dword v{TT}, v{TT+1}, {sq(S_OV)}, s{sT+4} offen{SC}
        {l}:""")
    g(f"""s_mov_b64 exec, -1
    s_waitcnt vmcnt(0)
    s_branch k_binned""")
    g(f"""k_flag:
    s_waitcnt lgkmcnt(0)""")
    ssync(2)
    build_ovf(S_OV)
    g(f"""v_cmp_gt_u32 vcc, {NB}, v0
    s_mov_b64 exec, vcc
    v_lshlrev_b32 v{TT}, 2, v0
    ds_read_b32 v{TT+1}, v{TT} offset:{PCNT}
    v_mul_u32_u24 v{TT}, {IST}, v0
    v_add_u32 v{TT}, {IMG}, v{TT}
    v_mov_b32 v{TT+2}, 2
    s_waitcnt lgkmcnt(0)
    v_cmp_lt_u32 vcc, {CAP*4}, v{TT+1}
    s_and_b64 exec, exec, vcc
    ds_or_b32 v{TT}, v{TT+2}
    s_mov_b64 exec, -1
    s_lshl_b32 s{sT+4}, s2, 2
    s_add_u32 s{sT+4}, s{sT+4}, {WS_OVFCNT - WS_OVF}
    v_mov_b32 v{TT}, 0
    buffer_store_dword v{Tm}, v{TT}, {sq(S_OV)}, s{sT+4} offen{SC}
    s_waitcnt vmcnt(0) lgkmcnt(0)""")
    ssync(3)
    img_reads()
    g("s_branch k_copy")
    g("k_mark:")
    for h in range(2):
        e = 4 + 4 * h
        g(f"""v_and_b32 v{vT0}, 2, v{e}
        v_cmp_ne_u32 vcc, 0, v{vT0}
        s_and_b64 exec, vcc, {sp(sVal+8*h)}
        v_and_b32 v{e}, -3, v{e}
        v_lshrrev_b32 v{vT0}, 3, v0
        v_add_u32 v{vT0}, {64*h}, v{vT0}
        v_lshrrev_b32 v{vT1}, 5, v{vT0}
        v_lshlrev_b32 v{vT1}, 2, v{vT1}
        v_and_b32 v{vT0}, 31, v{vT0}
        v_lshlrev_b32 v{vT0}, v{vT0}, 1
        ds_or_b32 v{vT1}, v{vT0} offset:{OVM}
        s_mov_b64 exec, -1""")
    g("s_branch k_round")
    sMap = 52
    g(f"""k_extra:
    s_waitcnt lgkmcnt(0)
    v_readfirstlane_b32 s{sMap}, v{BM}
    v_readfirstlane_b32 s{sMap+1}, v{BM+1}
    v_readfirstlane_b32 s{sMap+2}, v{BM+2}
    v_readfirstlane_b32 s{sMap+3}, v{BM+3}
    s_barrier
    s_cmp_lg_u64 {sp(sMap)}, 0
    s_cbranch_scc1 k_x1
    s_ff1_i32_b64 s{sT}, {sp(sMap+2)}
    s_bitset0_b64 {sp(sMap+2)}, s{sT}
    s_add_u32 s{sT}, s{sT}, 64
    s_branch k_x2
k_x1:
    s_ff1_i32_b64 s{sT}, {sp(sMap)}
    s_bitset0_b64 {sp(sMap)}, s{sT}
k_x2:""")
    build_ovf(S_CST)
    g(f"""s_lshl_b32 s{sG}, s{sT}, 2
    s_add_u32 s{sG}, s{sG}, {WS_OVFCNT - WS_OVF}
    v_mov_b32 v{vT0}, 0
    buffer_load_dword v{vT1}, v{vT0}, {sq(S_CST)}, s{sG} offen{SC}
    s_mul_i32 s{sG}, s{sT}, {CE*4}
    buffer_load_dwordx4 v[4:7], v1, {sq(S_CST)}, s{sG} offen{SC}
    s_add_u32 s{sG}, s{sG}, 8192
    buffer_load_dwordx4 v[8:11], v1, {sq(S_CST)}, s{sG} offen{SC}""")
    for i in range(4): g(f"v_mov_b32 v{AN+4+i}, {PADMARK}")
    g(f"""ds_write_b128 v1, {vr(AN+4,4)} offset:{LIST}
    s_cmp_lg_u32 s{sW}, 0
    s_cbranch_scc1 k_x3
    ds_write_b128 v1, {vr(AN+4,4)} offset:{LIST+16384}
    v_lshrrev_b32 v{TT}, 2, v1
    ds_write_b32 v{TT}, v{vT0} offset:{CNT2}
    v_mov_b32 v{AN}, s{sMap}
    v_mov_b32 v{AN+1}, s{sMap+1}
    v_mov_b32 v{AN+2}, s{sMap+2}
    v_mov_b32 v{AN+3}, s{sMap+3}
    ds_write_b128 v{vT0}, {vr(AN,4)} offset:{OVM}
k_x3:
    s_mov_b32 s{sRound}, 1
    s_add_u32 s{sT}, s2, 512""")
    zero_main()
    g("s_waitcnt vmcnt(0)")
    for i in range(8):
        g(f"""v_lshrrev_b32 v{AP}, 22, v{4+i}
        v_cmp_eq_u32 vcc, s{sT}, v{AP}
        v_add_u32 v{AP+1}, {(i&3)*4 + (i>>2)*8192}, v1
        v_cmp_lt_u32 {sp(sVal+2*i)}, v{AP+1}, v{vT1}
        s_and_b64 {sp(sVal+2*i)}, {sp(sVal+2*i)}, vcc""")
    g(f"""s_waitcnt lgkmcnt(0)
    s_barrier
    s_cmp_lt_u32 s{sW}, 8
    s_cbranch_scc1 k_round
    s_branch k_b1""")
    return NV

def main():
    ap = argparse.ArgumentParser()
    ap.add_argument("-o", default="cdna_kernels/" + KN + ".s")
    ap.add_argument("--stamps", default="")
    ap.add_argument("--cyc", action="store_true")
    ap.add_argument("--stw", type=int, default=0)
    ap.add_argument("--pfa", type=int, default=0)
    ap.add_argument("--pfb", type=int, default=0)
    ap.add_argument("--depth", type=int, default=2)
    ap.add_argument("--prio", default="")
    ap.add_argument("--wvlate", type=int, default=1)
    ap.add_argument("--gate", type=int, default=-1)
    ap.add_argument("--cpf", type=int, default=0)
    ap.add_argument("--abl", default="")
    ap.add_argument("--xfirst", type=int, default=0)
    ap.add_argument("--xdelay", type=int, default=0)
    ap.add_argument("--partial", type=int, default=0)
    ap.add_argument("--stflag", default="sc1")
    ap.add_argument("--gateb", type=int, default=0)
    ap.add_argument("--partner", type=int, default=1)
    ap.add_argument("--edgeflag", default="nt")
    ap.add_argument("--wvb1", type=int, default=1)
    ap.add_argument("--auxearly", type=int, default=0)
    ap.add_argument("--psleep", type=int, default=0)
    ap.add_argument("--pdelay", type=int, default=0)
    ap.add_argument("--outflag", default="")
    ap.add_argument("--spin", type=int, default=200000)
    o = ap.parse_args()
    if o.outflag: o.outflag = " " + o.outflag
    if o.edgeflag: o.edgeflag = " " + o.edgeflag
    o.stflag = " " + o.stflag
    g = G()
    nv = gen(g, o)
    head = f"""; featgraph: fused kernel. producers bucket edges by dst into tagged cells (d_ws), every workgroup then
; @launch grid=({NB},1,1) block=(1024,1,1) lds={LDS}
.amdgcn_target "amdgcn-amd-amdhsa--gfx950"
.text
"""
    acc = (nv + 3) // 4 * 4
    tail = f""".section .rodata,"a"
.p2align 6
.amdhsa_kernel {KN}_kernel
  .amdhsa_next_free_vgpr {nv}
  .amdhsa_next_free_sgpr 102
  .amdhsa_accum_offset {acc}
  .amdhsa_group_segment_fixed_size 0
  .amdhsa_kernarg_size 64
  .amdhsa_user_sgpr_count 2
  .amdhsa_user_sgpr_kernarg_segment_ptr 1
  .amdhsa_system_sgpr_workgroup_id_x 1
.end_amdhsa_kernel
"""
    open(o.o, "w").write(head + g.text() + tail)
main()
```

```python
import sys, argparse

KN = "standalone__kernel_systems_refs_featgraph__graph"
N, E, D = 12500, 400000, 128
NB, NPB = 250, 50
NC, CE = 125, 3200
CAP = 32
WS_EPOCH = 0
WS_CELLS = 4096
CELLS_BYTES = NB * NC * 128
WS_OVF = 4 << 20
WS_OVFCNT = 6 << 20
WS_STAMP = 8 << 20
PADMARK = 0x003FFF00
TAGMASK = 0x7FC00000
BIG = 0x400000
IST = 144

CNT2, OVM, PCNT = 0, 256, 512
AUXC = 272
SRTC = 276
OVN = PCNT + 1000
AGG = PCNT + 1024
QT = AGG + 50 * 544
LIST = QT + 50 * 272
WQ = (LIST + 17408 + 255) // 256 * 256
WV = WQ + 32768
IMG = WV + 32768
LDS = IMG + 256 * IST
assert LDS <= 163840 and LIST % 16 == 0 and LIST + 16384 < 65536

class G:
    def __init__(self):
        self.L = []; self.uid = 0
    def __call__(self, s=""):
        for ln in s.split("\n"):
            ln = ln.strip()
            if not ln: continue
            if ln.endswith(":") or ln.startswith("."): self.L.append(ln)
            else: self.L.append("    " + ln)
    def lab(self, p="L"):
        self.uid += 1
        return f"{p}_{self.uid}"
    def text(self): return "\n".join(self.L) + "\n"

def vr(a, n=1): return f"v{a}" if n == 1 else f"v[{a}:{a+n-1}]"
def sp(a): return f"s[{a}:{a+1}]"
def sq(a): return f"s[{a}:{a+3}]"

ST0 = 86
def gen(g, o):
    DP = o.depth
    sel = o.stamps.split(",") if o.stamps else []
    def stamp(nm):
        if nm in sel:
            i = sel.index(nm)
            g(f"{'s_memtime' if o.cyc else 's_memrealtime'} s[{ST0+2*i}:{ST0+2*i+1}]")
    pX, pSRC, pDST, pWQ, pWV, pOUT, pDBG, pWS = 4, 6, 8, 10, 12, 14, 16, 18
    S_X, S_CELL, S_CST, S_OUT = 20, 24, 28, 32
    sW, sTag, sG, sRem, sFl, sN, sRound = 36, 37, 38, 39, 40, 42, 43
    sM, sVal, sRet, sSc, s68, sAM = 44, 52, 68, 70, 71, 72
    sO, sL, sLM, sT = 72, 75, 79, 80
    sLB = 3
    sEv, sFA, sFO = 0, 1, 85
    X = [12 + 16 * p for p in range(DP)]
    b = 12 + 16 * DP
    A = b; Ee = b + 16; CN = [b + 20 + 2 * p for p in range(DP)]
    b = (b + 20 + 2 * DP + 3) // 4 * 4
    AL = b; AC = b + 4; AP = b + 12; AN = b + 16
    b += 24
    vLP, vM0, vM1, vFL, vLA, vGA, vQ, vT0, vT1, vFour = range(b, b + 10)
    TT = b + 10
    NV = TT + 6
    assert NV <= 128 and TT % 2 == 0
    SC = " sc1"
    isprod = f"s_cmp_lt_u32 s2, {NC}"
    g(f""".p2align 8
.globl {KN}_kernel
.type {KN}_kernel,@function
{KN}_kernel:
    s_cmp_ge_u32 s2, {NB}
    s_cbranch_scc1 k_end
    s_load_dwordx16 s[4:19], s[0:1], 0""")
    if o.cpf:
        g(f"""s_getpc_b64 s[20:21]
        v_lshlrev_b32 v1, 7, v0
        v_cmp_gt_u32 vcc, {o.cpf}, v0
        s_and_saveexec_b64 s[22:23], vcc
        s_cbranch_execz k_cpf
        global_load_dword v{TT+5}, v1, s[20:21]
k_cpf:
        s_mov_b64 exec, -1""")
    g(f"""v_lshlrev_b32 v1, 4, v0
    v_lshrrev_b32 v{vT0}, 6, v0
    v_and_b32 v2, 15, v0
    v_readfirstlane_b32 s{sW}, v{vT0}
    v_bfe_u32 v3, v0, 4, 2
    s_mul_i32 s{sT}, s2, {CE*4}""")
    if o.stamps:
        for i in range(8): g(f"s_mov_b64 s[{ST0+2*i}:{ST0+2*i+1}], 0")
    Dd, Ss, B4, Rk, Tm = 12, 20, 28, 36, 44
    g(f"""v_cmp_gt_u32 vcc, {CE//8}, v0
    v_add_u32 v{vT1}, s{sT}, v1
    v_add_u32 v{vQ}, {CE*2}, v{vT1}
    s_mov_b64 {sp(sVal)}, vcc
    s_waitcnt lgkmcnt(0)""")
    stamp("start")
    def w_addr():
        g(f"""s_sub_u32 s{sT}, s{sW}, 8
        s_lshl_b32 s{sT+1}, s{sT}, 12
        v_lshlrev_b32 v{vLA}, 1, v3
        v_xor_b32 v{vLA}, v{vLA}, v2
        v_lshlrev_b32 v{vLA}, 4, v{vLA}
        v_lshl_add_u32 v{vLA}, v3, 8, v{vLA}
        v_add_u32 v{vLA}, s{sT+1}, v{vLA}
        v_xor_b32 v{vGA}, 0x80, v{vLA}""")
    def wq_loads():
        w_addr()
        g(f"s_add_u32 m0, s{sT+1}, {WQ}\ns_nop 0")
        for k in range(4): g(f"global_load_lds_dwordx4 v{vLA if k < 2 else vGA}, {sp(pWQ)} offset:{1024*k}")
    def x_loads():
        g(f"""s_sub_u32 s{sT}, s{sW}, 8
        s_and_b32 s{sT+2}, s{sT}, 1
        s_lshl_b32 s{sT+2}, s{sT+2}, 3
        v_add_u32 v{vT0}, s{sT+2}, v3
        v_xor_b32 v{vT0}, v{vT0}, v2
        v_lshlrev_b32 v{vT0}, 4, v{vT0}
        v_lshl_add_u32 v{vT0}, v3, 8, v{vT0}
        v_xor_b32 v{vT1}, 64, v{vT0}
        s_lshl_b32 s{sT+2}, s{sT}, 11
        s_add_u32 m0, s{sT+2}, {WV}
        s_add_u32 s{sT+2}, s{sT+2}, s{sN}
        buffer_load_dwordx4 v{vT0}, {sq(S_X)}, s{sT+2} offen lds
        buffer_load_dwordx4 v{vT1}, {sq(S_X)}, s{sT+2} offen offset:1024 lds""")
    def wv_loads():
        w_addr()
        g(f"s_add_u32 m0, s{sT+1}, {WV}\ns_nop 0")
        for k in range(4): g(f"global_load_lds_dwordx4 v{vLA if k % 2 == 0 else vGA}, {sp(pWV)} offset:{1024*k}")
    def prefetch(nw, idx_first, base):
        l = g.lab("pf")
        g(f"""s_sub_u32 s{sT}, s{sW}, 8
        s_cmp_ge_u32 s{sT}, {nw}
        s_cselect_b32 s{sT+1}, {BIG}, 0
        s_lshl_b32 s{sT}, s{sT}, 13
        s_add_u32 s{sT}, s{sT}, s{sT+1}
        s_add_u32 s{sT}, s{sT}, {base}
        s_sub_u32 s{sT+1}, s2, {idx_first}
        s_lshr_b32 s{sT+1}, s{sT+1}, 3
        s_mul_i32 s{sT+1}, s{sT+1}, {nw*8192}
        s_add_u32 s{sT}, s{sT}, s{sT+1}
        v_and_b32 v{vT0}, 63, v0
        v_lshlrev_b32 v{vT0}, 7, v{vT0}
        buffer_load_dword v{TT+5}, v{vT0}, {sq(S_X)}, s{sT} offen""")
    g(f"""s_load_dword s{sTag}, {sp(pWS)}, {WS_EPOCH}
    s_mov_b32 s{S_X}, s{pX}
    s_mov_b32 s{S_X+1}, s{pX+1}
    s_mov_b32 s{S_X+2}, {N*256}
    s_mov_b32 s{S_X+3}, 0x20000
    s_mul_i32 s{sN}, s2, {NPB*256}
    {isprod}
    s_cbranch_scc0 k_noedge
    s_mov_b64 exec, {sp(sVal)}
    s_cbranch_execz k_noedge
    global_load_dwordx4 {vr(Dd,4)}, v{vT1}, {sp(pDST)}{o.edgeflag}
    global_load_dwordx4 {vr(Dd+4,4)}, v{vQ}, {sp(pDST)}{o.edgeflag}
    global_load_dwordx4 {vr(Ss,4)}, v{vT1}, {sp(pSRC)}{o.edgeflag}
    global_load_dwordx4 {vr(Ss+4,4)}, v{vQ}, {sp(pSRC)}{o.edgeflag}
""")
    npfa = 0
    g("k_noedge:\ns_mov_b64 exec, -1")
    stamp("aux")
    for i in range(4): g(f"v_mov_b32 v{AN+i}, 0")
    g(f"""s_cmp_ge_u32 s{sW}, 2
    s_cbranch_scc1 k_i0
    ds_write_b128 v1, {vr(AN,4)}
k_i0:
    s_cmp_lt_u32 s{sW}, 8
    s_cbranch_scc1 k_i1
    {isprod}
    s_cbranch_scc1 k_i1""")
    wq_loads()
    g("k_i1:")
    g(f"""s_mul_i32 s{sT}, s2, 16000
    s_add_u32 s{S_CST}, s{pWS}, {WS_CELLS}
    s_addc_u32 s{S_CST+1}, s{pWS+1}, 0
    s_mov_b32 s{S_CST+2}, {CELLS_BYTES}
    s_mov_b32 s{S_CST+3}, 0x20000
    s_add_u32 s{S_CELL}, s{S_CST}, s{sT}
    s_addc_u32 s{S_CELL+1}, s{S_CST+1}, 0
    s_mov_b32 s{S_CELL+2}, 16000
    s_mov_b32 s{S_CELL+3}, 0x20000
    s_add_u32 s{S_OUT}, s{pOUT}, s{sN}
    s_addc_u32 s{S_OUT+1}, s{pOUT+1}, 0
    s_mov_b32 s{S_OUT+2}, {NPB*256}
    s_mov_b32 s{S_OUT+3}, 0x20000
    v_and_b32 v{vT0}, 3, v0
    v_lshl_add_u32 v{vLP}, v3, 2, v{vT0}
    v_lshlrev_b32 v{vLP}, 4, v{vLP}
    v_and_b32 v{vT1}, 12, v0
    v_lshlrev_b32 v{vFL}, 1, v{vLP}
    v_lshl_add_u32 v{vFL}, v{vT1}, 1, v{vFL}
    v_mov_b32 v{vM0}, 0xffff
    v_and_b32 v{vM1}, 1, v0
    v_lshlrev_b32 v{vM1}, 4, v{vM1}
    v_lshlrev_b32 v{vM1}, v{vM1}, v{vM0}
    v_cmp_gt_u32 vcc, 2, v{vT0}
    v_mov_b32 v{vFour}, 4
    s_mov_b32 s{sM}, 0x000f000f
    v_cndmask_b32 v{vM0}, 0, v{vM1}, vcc
    v_cndmask_b32 v{vM1}, v{vM1}, 0, vcc
    s_mov_b32 s{sM+1}, 0x000f000f
    s_lshl_b64 {sp(sM+2)}, {sp(sM)}, 4
    s_lshl_b64 {sp(sM+4)}, {sp(sM)}, 8
    s_lshl_b64 {sp(sM+6)}, {sp(sM)}, 12
    s_mov_b32 s{sSc}, 0xbe0293ee
    s_movk_i32 s{s68}, 68
    s_mov_b32 s{sAM}, {PADMARK}
    s_mov_b32 s{sRound}, 0
    v_lshrrev_b32 v{vT0}, 3, v0
    v_mul_u32_u24 v{vQ}, {IST}, v{vT0}
    v_and_b32 v{vT1}, 0x70, v1
    v_add_u32 v{vQ}, v{vQ}, v{vT1}
    v_add_u32 v{vQ}, {IMG}, v{vQ}""")
    stamp("consts")
    g("s_waitcnt lgkmcnt(0)")
    stamp("epoch")
    g(f"""s_add_u32 s{sTag}, s{sTag}, 0x400000
    s_and_b32 s{sTag}, s{sTag}, {TAGMASK}
    {isprod}
    s_cbranch_scc0 k_cons""")
    for i in range(4): g(f"v_mov_b32 v{AN+i}, s{sTag}")
    g(f"""s_movk_i32 s{sT+4}, 16000
    v_mad_u32_u24 v{vT1}, v{vT0}, s{sT+4}, v{vT1}
    s_mov_b32 s{sT}, 85899346
    s_movk_i32 s{sT+1}, -50
    s_or_b32 s{sT+2}, s{sTag}, 0x80000000
    s_mov_b32 s{sT+3}, {IMG}
    ds_write_b128 v{vQ}, {vr(AN,4)}
    ds_write_b128 v{vQ}, {vr(AN,4)} offset:{128*IST}
    v_mov_b32 v{TT}, {IST//4}
    s_cmp_lt_u32 s{sW}, 8
    s_cbranch_scc1 k_px""")
    x_loads()
    g("""k_px:
    s_waitcnt lgkmcnt(0)""")
    stamp("img")
    g("s_barrier")
    stamp("ba")
    def ssync(k):
        l = g.lab("ss")
        g(f"""v_mov_b32 v{TT+3}, 0
        s_mov_b64 exec, 1
        ds_add_u32 v{TT+3}, v{vFour} offset:{SRTC}
        s_mov_b64 exec, -1
        {l}:
        ds_read_b32 v{TT+4}, v{TT+3} offset:{SRTC}
        s_waitcnt lgkmcnt(0)
        v_cmp_gt_u32 vcc, {32*k}, v{TT+4}
        s_cbranch_vccnz {l}""")
    g(f"""s_cmp_ge_u32 s{sW}, 8
    s_cbranch_scc1 k_auxp
k_bin:
    s_mov_b64 exec, {sp(sVal)}
    s_cbranch_execz k_binned
    s_waitcnt vmcnt(2)""")
    stamp("edges")
    for i in range(8):
        g(f"""v_mul_hi_u32 v{B4+i}, v{Dd+i}, s{sT}
        v_lshlrev_b32 v{B4+i}, 2, v{B4+i}
        ds_add_rtn_u32 v{Rk+i}, v{B4+i}, v{vFour} offset:{PCNT}""")
    g("s_waitcnt vmcnt(0)")
    for i in range(8):
        g(f"""v_lshl_add_u32 v{Ss+i}, v{Ss+i}, 6, v{Dd+i}
        v_lshl_add_u32 v{Ss+i}, v{Ss+i}, 2, s{sT+2}
        v_mad_i32_i24 v{Ss+i}, v{B4+i}, s{sT+1}, v{Ss+i}
        v_mad_u32_u24 v{Tm+i}, v{B4+i}, v{TT}, s{sT+3}""")
    g("s_waitcnt lgkmcnt(0)")
    g(f"""v_max3_u32 v{vT0}, v{Rk}, v{Rk+1}, v{Rk+2}
    v_max3_u32 v{vT0}, v{vT0}, v{Rk+3}, v{Rk+4}
    v_max3_u32 v{vT0}, v{vT0}, v{Rk+5}, v{Rk+6}
    v_max_u32 v{vT0}, v{vT0}, v{Rk+7}
    v_cmp_le_u32 vcc, {CAP*4}, v{vT0}""")
    for i in range(8): g(f"v_add_u32 v{Tm+i}, v{Rk+i}, v{Tm+i}")
    g("s_cbranch_vccnz k_slow")
    for i in range(8): g(f"ds_write_b32 v{Tm+i}, v{Ss+i}")
    g(f"""k_binned:
    s_mov_b64 exec, -1
    v_mov_b32 v{vT0}, {OVN}
    s_lshl_b32 s{sT}, s2, 7
    s_add_u32 s{sT+1}, s{sT}, {64*16000}
    s_add_u32 s{sT+2}, s{sT}, {128*16000}
    s_add_u32 s{sT+3}, s{sT}, {192*16000}
    s_waitcnt lgkmcnt(0)""")
    stamp("binned")
    ssync(1)
    stamp("bb")
    def img_reads():
        for k in range(4): g(f"ds_read_b128 {vr(12+4*k,4)}, v{vQ} offset:{64*k*IST}")
    g(f"ds_read_b32 v{Tm}, v{vT0}")
    img_reads()
    g(f"""s_waitcnt lgkmcnt(4)
    v_cmp_ne_u32 vcc, 0, v{Tm}
    s_cbranch_vccnz k_flag
k_copy:""")
    if o.partial:
        g(f"s_mov_b32 s{sVal+2}, 0x01010101\ns_mov_b32 s{sVal+3}, 0x01010101")
    for k in range(4):
        g(f"s_waitcnt lgkmcnt({3-k})")
        if o.partial:
            g(f"""v_cmp_gt_i32 vcc, 0, v{12+4*k+3}
            s_lshl_b64 vcc, vcc, 1
            s_or_b64 exec, vcc, {sp(sVal+2)}""")
        g(f"buffer_store_dwordx4 {vr(12+4*k,4)}, v{vT1}, {sq(S_CST)}, s{sT+k} offen{o.stflag}")
        if o.partial: g("s_mov_b64 exec, -1")
    stamp("copied")
    if "drained" in sel:
        g("s_waitcnt vmcnt(0)")
        stamp("drained")
    g("s_branch k_sorter")
    g(f"""k_cons:
    s_barrier
    s_cmp_ge_u32 s{sW}, 8
    s_cbranch_scc1 k_aux0
    s_cmp_lg_u32 s{sW}, 7
    s_cbranch_scc1 k_sorter
    v_mov_b32 v{vT0}, 0
    s_mov_b64 exec, 1
    global_atomic_add v{vT0}, v{vFour}, {sp(pDBG)}
    s_mov_b64 exec, -1
    s_branch k_sorter
k_auxp:""")
    wq_loads()
    g("s_waitcnt vmcnt(0)\ns_branch k_aux1\nk_aux0:")
    x_loads()
    npf = 0
    for k in range(0, o.pfa, 8):
        prefetch(min(8, o.pfa - k), NC, 16 * k * 8192); npf += 1
    g(f"s_waitcnt vmcnt({npf})\nk_aux1:")
    stamp("prebc")
    g(f"""v_mov_b32 v{vT0}, 0
    s_mov_b64 exec, 1
    ds_add_u32 v{vT0}, v{vFour} offset:{AUXC}
    s_mov_b64 exec, -1
k_as:
    ds_read_b32 v{vT1}, v{vT0} offset:{AUXC}
    s_waitcnt lgkmcnt(0)
    v_cmp_gt_u32 vcc, 32, v{vT1}
    s_cbranch_vccnz k_as""")
    stamp("bc")
    if not o.wvb1: wv_loads()
    g(f"""s_bfe_u32 s{sT}, s{sW}, 0x10002
    s_lshl_b32 s{sT+1}, s{sT}, 3
    v_lshrrev_b32 v{vQ}, 2, v2
    v_bfe_u32 v{TT}, v0, 1, 1
    v_add_u32 v{TT}, s{sT+1}, v{TT}
    v_and_b32 v{TT+1}, 1, v3
    v_lshl_add_u32 v{TT+1}, v{TT+1}, 2, v{vQ}
    v_lshlrev_b32 v{TT+1}, 1, v{TT+1}
    v_xor_b32 v{TT}, v{TT}, v{TT+1}
    v_lshl_add_u32 v{vQ}, v3, 3, v{vQ}
    v_lshlrev_b32 v{vQ}, 8, v{vQ}
    v_lshl_add_u32 v{vQ}, v{TT}, 4, v{vQ}
    v_and_b32 v{TT}, 1, v0
    v_lshl_add_u32 v{vQ}, v{TT}, 3, v{vQ}
    v_add_u32 v{vQ}, {WQ}, v{vQ}
    v_xor_b32 v{TT}, 32, v{vQ}
    v_xor_b32 v{TT+1}, 64, v{vQ}
    v_xor_b32 v{TT+2}, 0x60, v{vQ}""")
    WF = [28, 44]
    def trq(T, dst):
        va = vQ if T == 0 else TT + T - 1
        for s_ in range(4):
            for h in range(2):
                g(f"ds_read_b64_tr_b16 {vr(dst+4*s_+2*h,2)}, v{va} offset:{s_*8192 + h*1024}")
    WB = [28, 44, 60, 76]
    g(f"""s_and_b32 s{sT+1}, s{sW}, 3
    s_lshl_b32 s{sT+1}, s{sT+1}, 12
    s_add_u32 s{sT+1}, s{sT+1}, {WV}
    v_xor_b32 v{vT0}, v3, v2
    v_lshlrev_b32 v{vT0}, 4, v{vT0}
    v_lshl_add_u32 v{vT0}, v2, 8, v{vT0}
    v_add_u32 v{vT0}, s{sT+1}, v{vT0}""")
    for s_ in range(4):
        if s_: g(f"v_xor_b32 v{vT1}, {64*s_}, v{vT0}")
        g(f"ds_read_b128 {vr(12+4*s_,4)}, v{vT1 if s_ else vT0}")
    trq(0, WB[0]); trq(1, WB[1])
    g(f"""s_and_b32 s{sT+1}, s{sW}, 3
    s_lshl_b32 s{sT+2}, s{sT+1}, 4
    s_mul_i32 s{sT+1}, s{sT+1}, {16*272}
    s_lshl_b32 s{sT}, s{sT}, 7
    s_add_u32 s{sT}, s{sT}, s{sT+1}
    v_mul_u32_u24 v{vT0}, 272, v2
    v_and_b32 v{vT1}, 1, v3
    v_lshl_add_u32 v{vT0}, v{vT1}, 5, v{vT0}
    v_lshrrev_b32 v{vT1}, 1, v3
    v_lshl_add_u32 v{vT0}, v{vT1}, 4, v{vT0}
    v_add_u32 v{vT0}, s{sT}, v{vT0}
    v_add_u32 v{vT1}, s{sT+2}, v2
    v_cmp_gt_u32 {sp(sVal)}, {NPB}, v{vT1}
    s_waitcnt lgkmcnt(0)""")
    trq(2, WB[2]); trq(3, WB[3])
    for jj in range(2):
        if jj == 1: g("s_waitcnt lgkmcnt(1)")
        for s_ in range(4):
            for T in range(2):
                d = 4 + 4 * T
                cc = "0" if s_ == 0 else vr(d, 4)
                g(f"v_mfma_f32_16x16x32_bf16 {vr(d,4)}, {vr(WB[2*jj+T]+4*s_,4)}, {vr(12+4*s_,4)}, {cc}")
        g(f"""s_nop 6
        v_cvt_pk_bf16_f32 v4, v4, v5
        v_cvt_pk_bf16_f32 v5, v6, v7
        v_cvt_pk_bf16_f32 v6, v8, v9
        v_cvt_pk_bf16_f32 v7, v10, v11
        s_nop 1
        v_permlane16_swap_b32 v4, v6
        v_permlane16_swap_b32 v5, v7
        s_mov_b64 exec, {sp(sVal)}
        ds_write_b128 v{vT0}, v[4:7] offset:{QT + jj*64}
        s_mov_b64 exec, -1""")
    def zero_main():
        for i in range(16): g(f"v_mov_b32 v{A+i}, 0")
        for i in range(8): g(f"v_mov_b32 v{AC+i}, 0")
    zero_main()
    g("s_waitcnt vmcnt(0)" if not o.wvlate else "")
    stamp("qdone")
    g("s_branch k_b1")
    g("k_sorter:")
    for i in range(4): g(f"v_mov_b32 v{AN+4+i}, {PADMARK}")
    g(f"""ds_write_b128 v1, {vr(AN+4,4)} offset:{LIST}
    ds_write_b128 v1, {vr(AN+4,4)} offset:{LIST+8192}
    s_cmp_lg_u32 s{sW}, 0
    s_cbranch_scc1 k_s1
    ds_write_b128 v1, {vr(AN+4,4)} offset:{LIST+16384}
k_s1:""")
    for i in range(4): g(f"v_mov_b32 v{AN+i}, 0")
    for k in range(3): g(f"ds_write_b128 v1, {vr(AN,4)} offset:{AGG+8192*k}")
    g(f"""v_cmp_gt_u32 vcc, {(50*544-3*8192)//16}, v0
    s_mov_b64 exec, vcc
    ds_write_b128 v1, {vr(AN,4)} offset:{AGG+8192*3}
    s_mov_b64 exec, -1""")
    zero_main()
    pA, pB = sVal, sVal + 2
    g(f"""s_mov_b64 {sp(pA)}, -1
    s_movk_i32 s{sT}, {16000-8192}
    v_cmp_gt_u32 {sp(pB)}, s{sT}, v1""")
    for i in range(4): g(f"v_mov_b32 v{8+i}, 0")
    if o.partial:
        g(f"""s_mov_b64 {sp(sVal+8)}, {sp(pB)}
        s_mov_b64 {sp(sVal+12)}, 0
        s_mov_b64 {sp(sVal+14)}, 0
        s_mov_b32 s{sVal+10}, 0x7f7f7f7f
        s_mov_b32 s{sVal+11}, 0x7f7f7f7f""")
    g(f"""s_movk_i32 s{sT}, 8192
    s_mov_b32 s{sT+1}, {TAGMASK}
    s_mov_b32 s{sT+2}, {o.spin}""")
    if o.pdelay:
        g(f"{isprod}\ns_cbranch_scc1 k_poll")
        for k in range(0, o.pdelay, 100): g(f"s_sleep {min(100, o.pdelay - k)}")
    if o.gate >= 0:
        g(f"""s_mov_b64 exec, 1
        s_lshl_b64 exec, exec, {8*o.gate}
k_gate:
        buffer_load_dwordx4 v[4:7], v1, {sq(S_CELL)}, {"s%d" % sT if o.gateb else "0"} offen{SC}
        s_sub_u32 s{sT+2}, s{sT+2}, 1
        s_cbranch_scc1 k_pto
        s_waitcnt vmcnt(0)
        v_bitop3_b32 v{vT0}, v4, s{sTag}, v4 bitop3:0x3c
        v_and_b32 v{vT0}, s{sT+1}, v{vT0}
        v_cmp_ne_u32 vcc, 0, v{vT0}
        s_cbranch_vccnz k_gate""")
    g(f"""s_branch k_poll
k_poll0:""")
    if o.psleep: g(f"s_sleep {o.psleep}")
    g(f"""k_poll:
    s_mov_b64 exec, {sp(pA)}
    s_cbranch_execz k_p1
    buffer_load_dwordx4 v[4:7], v1, {sq(S_CELL)}, 0 offen{SC}
k_p1:
    s_mov_b64 exec, {sp(pB)}
    s_cbranch_execz k_p2
    buffer_load_dwordx4 v[8:11], v1, {sq(S_CELL)}, s{sT} offen{SC}
k_p2:
    s_mov_b64 exec, -1
    s_sub_u32 s{sT+2}, s{sT+2}, 1
    s_cbranch_scc1 k_pto
    s_waitcnt vmcnt(0)
    v_bitop3_b32 v{vT0}, v4, v5, s{sTag} bitop3:0x7e
    v_bitop3_b32 v{vT1}, v6, v7, s{sTag} bitop3:0x7e
    v_bitop3_b32 v{TT}, v8, v9, s{sTag} bitop3:0x7e
    v_bitop3_b32 v{TT+1}, v10, v11, s{sTag} bitop3:0x7e
    v_bitop3_b32 v{vT0}, v{vT0}, v{vT1}, s{sT+1} bitop3:0xa8
    v_bitop3_b32 v{TT}, v{TT}, v{TT+1}, s{sT+1} bitop3:0xa8
""")
    okA, okB, inB, fst, ndA, ndB = sVal + 4, sVal + 6, sVal + 8, sVal + 10, sVal + 12, sVal + 14
    if not o.partial:
        g(f"""v_cmp_ne_u32 {sp(pA)}, 0, v{vT0}
        v_cmp_ne_u32 vcc, 0, v{TT}
        s_and_b64 {sp(pB)}, {sp(pB)}, vcc
        s_or_b64 vcc, {sp(pA)}, {sp(pB)}
        s_cbranch_scc1 k_poll0
k_polled:""")
        stamp("polled")
        g(f"""v_bitop3_b32 v{vT0}, v4, v8, 2 bitop3:0xa8
        v_cmp_ne_u32 vcc, 0, v{vT0}""")
        for i in range(8): g(f"v_cmp_gt_i32 {sp(sVal+2*i)}, 0, v{4+i}")
    else:
        g(f"""v_cmp_eq_u32 {sp(okA)}, 0, v{vT0}
        v_cmp_eq_u32 {sp(okB)}, 0, v{TT}
        v_cmp_gt_i32 {sp(pA)}, 0, v7
        v_cmp_gt_i32 {sp(pB)}, 0, v11
        s_and_b64 {sp(pA)}, {sp(pA)}, {sp(okA)}
        s_and_b64 {sp(pB)}, {sp(pB)}, {sp(okB)}
        s_and_b64 {sp(pA)}, {sp(pA)}, {sp(fst)}
        s_and_b64 {sp(pB)}, {sp(pB)}, {sp(fst)}
        s_add_u32 s{ndA}, s{pA}, 0x01010101
        s_add_u32 s{ndA+1}, s{pA+1}, 0x01010101
        s_add_u32 s{ndB}, s{pB}, 0x01010101
        s_add_u32 s{ndB+1}, s{pB+1}, 0x01010101
        s_xor_b64 {sp(ndA)}, {sp(ndA)}, {sp(pA)}
        s_xor_b64 {sp(ndB)}, {sp(ndB)}, {sp(pB)}
        s_and_b64 {sp(ndB)}, {sp(ndB)}, {sp(inB)}
        s_andn2_b64 {sp(pA)}, {sp(ndA)}, {sp(okA)}
        s_andn2_b64 {sp(pB)}, {sp(ndB)}, {sp(okB)}
        s_or_b64 vcc, {sp(pA)}, {sp(pB)}
        s_cbranch_scc1 k_poll0
k_polled:""")
        stamp("polled")
        g(f"""s_mov_b64 {sp(sFl)}, {sp(ndB)}
        s_mov_b64 exec, {sp(ndA)}
        v_and_b32 v{vT0}, 2, v4
        v_cmp_ne_u32 {sp(sRet)}, 0, v{vT0}""")
        for i in range(4): g(f"v_cmp_gt_i32 {sp(sVal+2*i)}, 0, v{4+i}")
        g(f"""s_mov_b64 exec, {sp(sFl)}
        v_and_b32 v{vT0}, 2, v8
        v_cmp_ne_u32 vcc, 0, v{vT0}""")
        for i in range(4, 8): g(f"v_cmp_gt_i32 {sp(sVal+2*i)}, 0, v{4+i}")
        g(f"""s_mov_b64 exec, -1
        s_or_b64 vcc, vcc, {sp(sRet)}""")
    g("s_cbranch_vccnz k_mark\nk_round:")
    Tn, Rn, On = 12, 20, 28
    for i in range(8):
        g(f"v_and_b32 v{Tn+i}, 0xfc, v{4+i}")
    for i in range(8):
        g(f"s_mov_b64 exec, {sp(sVal+2*i)}\nds_add_rtn_u32 v{Rn+i}, v{Tn+i}, v{vFour} offset:{CNT2}")
    g(f"""s_mov_b64 exec, -1
k_b1:
    v_and_b32 v{vT0}, 63, v0
    v_lshlrev_b32 v{vT0}, 2, v{vT0}
    v_and_b32 v{vLA}, 12, v0
    v_lshlrev_b32 v{vGA}, 2, v{vLA}
    s_waitcnt lgkmcnt(0)
    s_barrier""")
    stamp("b1")
    c, inc = vT1, vQ
    g(f"ds_read_b32 v{c}, v{vT0} offset:{CNT2}")
    if o.pfb or o.wvb1:
        l = g.lab("pb")
        g(f"s_cmp_lt_u32 s{sW}, 8\ns_cbranch_scc1 {l}\ns_cmp_lg_u32 s{sRound}, 0\ns_cbranch_scc1 {l}")
        if o.wvb1:
            wv_loads()
            g(f"v_and_b32 v{vLA}, 12, v0\nv_lshlrev_b32 v{vGA}, 2, v{vLA}")
        if o.pfb: prefetch(o.pfb, 0, 16 * o.pfa * 8192)
        g(f"{l}:")
    g(f"""s_waitcnt lgkmcnt(0)
    v_add_u32 v{c}, 12, v{c}
    v_and_b32 v{c}, -16, v{c}
    s_nop 1
    v_add_u32_dpp v{inc}, v{c}, v{c} row_shr:1 row_mask:0xf bank_mask:0xf bound_ctrl:0
    s_nop 1
    v_add_u32_dpp v{inc}, v{inc}, v{inc} row_shr:2 row_mask:0xf bank_mask:0xf bound_ctrl:0
    s_nop 1
    v_add_u32_dpp v{inc}, v{inc}, v{inc} row_shr:4 row_mask:0xf bank_mask:0xf bound_ctrl:0
    s_nop 1
    v_add_u32_dpp v{inc}, v{inc}, v{inc} row_shr:8 row_mask:0xf bank_mask:0xf bound_ctrl:0
    s_nop 1
    v_add_u32_dpp v{inc}, v{inc}, v{inc} row_bcast:15 row_mask:0xa bank_mask:0xf
    s_nop 1
    v_add_u32_dpp v{inc}, v{inc}, v{inc} row_bcast:31 row_mask:0xc bank_mask:0xf
    s_cmp_ge_u32 s{sW}, 8
    v_sub_u32 v{c}, v{inc}, v{c}
    v_readlane_b32 s{sG}, v{inc}, 63
    s_cbranch_scc1 k_nosc""")
    for i in range(8): g(f"ds_bpermute_b32 v{On+i}, v{Tn+i}, v{c}")
    g("k_nosc:")
    g(f"""v_add_u32 v{inc}, v{inc}, v{c}
    v_lshlrev_b32 v{inc}, 3, v{inc}
    s_mul_i32 s{sT}, s{sW}, s{sG}
    s_add_u32 s{sT+1}, s{sT}, s{sG}
    v_cmp_le_u32 vcc, s{sT}, v{inc}
    v_cmp_le_u32 {sp(sFl)}, s{sT+1}, v{inc}
    s_ff1_i32_b64 s{sT}, vcc
    s_ff1_i32_b64 s{sT+1}, {sp(sFl)}
    v_readlane_b32 s{sT}, v{c}, s{sT}
    v_readlane_b32 s{sT+1}, v{c}, s{sT+1}
    s_cmp_ge_u32 s{sW}, 8
    s_cbranch_scc1 k_nosc2""")
    for half in range(2):
        g("s_waitcnt lgkmcnt(4)")
        for i in range(4 * half, 4 * half + 4): g(f"v_add_u32 v{On+i}, v{On+i}, v{Rn+i}")
        for i in range(4 * half, 4 * half + 4):
            g(f"s_mov_b64 exec, {sp(sVal+2*i)}\nds_write_b32 v{On+i}, v{4+i} offset:{LIST}")
        g("s_mov_b64 exec, -1")
    prio_ev = [int(x) for x in o.prio.split(",")] if o.prio else []
    evs = sorted(set(list(range(1, DP)) + [1, DP + 1] + prio_ev))
    evmask = sum(1 << e for e in evs)
    g(f"""k_nosc2:
    s_sub_u32 s{sRem}, s{sT+1}, s{sT}
    s_add_u32 s{sT}, s{sT}, {LIST}
    v_add_u32 v{vLA}, s{sT}, v{vLA}
    v_add_u32 v{vGA}, s{sT}, v{vGA}
    s_lshr_b32 s{sRem}, s{sRem}, 4
    s_sub_u32 s{sLB}, s{sRem}, 1
    s_and_b32 s{sLB}, s{sLB}, 3
    s_cmp_lt_u32 s{sLB}, 1
    s_cselect_b32 s{sL+1}, {BIG}, 0
    s_cmp_lt_u32 s{sLB}, 2
    s_cselect_b32 s{sL+2}, {BIG}, 0
    s_cmp_lt_u32 s{sLB}, 3
    s_cselect_b32 s{sL+3}, {BIG}, 0
    s_lshl_b32 s{sLB}, s{sLB}, 2
    s_lshl_b32 s{sLB}, 1, s{sLB}
    s_lshl_b32 s{sLM}, s{sLB}, 1
    s_sub_u32 s{sLM}, s{sLM}, 1
    s_add_u32 s{sRem}, s{sRem}, 3
    s_lshr_b32 s{sRem}, s{sRem}, 2
    s_mov_b32 s{sEv}, {evmask}
    s_mov_b32 s{sFA}, -1
    s_mov_b32 s{sFO}, 0""")
    if prio_ev: g("s_setprio 3")
    g("s_waitcnt lgkmcnt(0)\ns_barrier")
    stamp("b2")
    def readE():
        g(f"ds_read2_b32 {vr(Ee,2)}, v{vLA} offset0:0 offset1:4\nds_read2_b32 {vr(Ee+2,2)}, v{vLA} offset0:8 offset1:12")
    def readCN(p):
        g(f"ds_read_u8 v{CN[p]}, v{vGA}\nds_read_u8 v{CN[p]+1}, v{vGA} offset:16")
    def adv():
        g(f"v_add_u32 v{vLA}, 64, v{vLA}\nv_add_u32 v{vGA}, 64, v{vGA}")
    def addr(t): return f"v_and_or_b32 v{Ee+t}, v{Ee+t}, s{sAM}, v{vLP}"
    def setO(k):
        g(f"s_cmp_eq_u32 s{sRem}, {k}")
        for t in range(1, 4): g(f"s_cselect_b32 s{sO+t}, s{sL+t}, 0")
    def loadX(p):
        for t in range(4):
            so = "0" if t == 0 else f"s{sO+t}"
            g(f"buffer_load_dwordx4 {vr(X[p]+4*t,4)}, v{Ee+t}, {sq(S_X)}, {so} offen")
    def readQ(p):
        g(f"v_mad_u32_u24 v{vQ}, v{CN[p]}, s{s68}, v{vLP}")
        for t in range(4):
            g(f"s_mov_b64 exec, {sp(sM+2*t)}\nds_read_b128 {vr(A+4*t,4)}, v{vQ} offset:{QT}")
        g("s_mov_b64 exec, -1")
    flush_sites = []; ev_sites = []
    def body(p):
        q = (p + 1) % DP
        le, lr = g.lab("ev"), g.lab("er")
        ev_sites.append((le, lr))
        readE()
        g(f"""s_bitcmp1_b32 s{sEv}, s{sRem}
        s_cbranch_scc1 {le}
        {lr}:
        s_waitcnt vmcnt({4*(DP-1)}) lgkmcnt(2)""")
        for t in range(4):
            cc = "0" if t == 0 else vr(AL, 4)
            if "l" not in o.abl: g(f"v_mfma_f32_16x16x32_bf16 {vr(AL,4)}, {vr(A+4*t,4)}, {vr(X[p]+4*t,4)}, {cc}")
        g(f"v_cmp_ne_u32 {sp(sFl)}, v{CN[p]}, v{CN[p]+1}")
        readQ(q)
        if "v" in o.abl:
            g(f"s_and_b32 s{sFl}, s{sFl}, s{sFA}\ns_or_b32 s{sFl}, s{sFl}, s{sFO}\ns_waitcnt lgkmcnt(4)")
            for t in range(4): g(addr(t))
        else:
            g(f"""s_and_b32 s{sFl}, s{sFl}, s{sFA}
            s_or_b32 s{sFl}, s{sFl}, s{sFO}
            v_add_f32_dpp v{vT0}, v{AL+1}, v{AL} quad_perm:[1,1,1,1] row_mask:0xf bank_mask:0xf
            v_add_f32_dpp v{vT0}, v{AL+2}, v{vT0} quad_perm:[2,2,2,2] row_mask:0xf bank_mask:0xf
            v_add_f32_dpp v{vT0}, v{AL+3}, v{vT0} quad_perm:[3,3,3,3] row_mask:0xf bank_mask:0xf
            v_mul_f32 v{vT0}, s{sSc}, v{vT0}
            v_exp_f32 v{vT0}, v{vT0}
            s_waitcnt lgkmcnt(4)
            v_add_f32 v{vT0}, 1.0, v{vT0}
            v_rcp_f32 v{vT0}, v{vT0}
            {addr(0)}
            v_cvt_pk_bf16_f32 v{AP}, v{vT0}, v{vT0}
            v_cvt_pk_bf16_f32 v{AP+1}, v{vT0}, v{vT0}
            {addr(1)}
            {addr(2)}
            v_permlane16_swap_b32 v{AP}, v{AP+1}
            v_mov_b32 v{AP+2}, v{AP}
            v_mov_b32 v{AP+3}, v{AP+1}
            {addr(3)}
            s_nop 0
            v_permlane32_swap_b32 v{AP}, v{AP+2}
            v_permlane32_swap_b32 v{AP+1}, v{AP+3}
            s_nop 0""")
            for t in range(4):
                g(f"""v_and_b32_dpp v{AN+2*t}, v{AP+t}, v{vM0} quad_perm:[0,0,0,0] row_mask:0xf bank_mask:0xf
                v_and_b32_dpp v{AN+2*t+1}, v{AP+t}, v{vM1} quad_perm:[0,0,0,0] row_mask:0xf bank_mask:0xf""")
        for t in range(4):
            lf, lb = g.lab("fl"), g.lab("fb")
            if "m" not in o.abl:
                g(f"""v_mfma_f32_4x4x4_16b_bf16 {vr(AC,4)}, {vr(AN+2*t,2)}, {vr(X[p]+4*t,2)}, {vr(AC,4)}
                v_mfma_f32_4x4x4_16b_bf16 {vr(AC+4,4)}, {vr(AN+2*t,2)}, {vr(X[p]+4*t+2,2)}, {vr(AC+4,4)}""")
            if "f" not in o.abl:
                g(f"""s_bitcmp1_b32 s{sFl}, {4*t}
                s_cbranch_scc1 {lf}""")
            else: g("s_nop 1")
            g(f"{lb}:")
            flush_sites.append((lf, lb, CN[p], 4 * t))
        ls = g.lab("sk")
        g(f"s_cmp_le_u32 s{sRem}, {DP}\ns_cbranch_scc1 {ls}")
        loadX(p)
        g(f"{ls}:")
        readCN(p); adv()
        g(f"s_sub_u32 s{sRem}, s{sRem}, 1\ns_cmp_eq_u32 s{sRem}, 0\ns_cbranch_scc1 k_done")
    g(f"""s_cmp_eq_u32 s{sRem}, 0
    s_cbranch_scc1 k_done""")
    for p in range(DP):
        readE(); readCN(p); adv(); setO(p + 1)
        if p > 0: g(f"s_cmp_lt_u32 s{sRem}, {p+1}\ns_cbranch_scc1 k_pro")
        g("s_waitcnt lgkmcnt(2)")
        for t in range(4): g(addr(t))
        loadX(p)
    g("k_pro:\ns_waitcnt lgkmcnt(0)")
    readQ(0)
    g("k_loop:")
    for p in range(DP): body(p)
    g("s_branch k_loop\nk_done:")
    if prio_ev: g("s_setprio 0")
    stamp("main")
    g(f"""s_cmp_lg_u32 s2, {NB-1}
    s_cbranch_scc1 k_ne1
    v_mov_b32 v{vLA}, 0
    global_load_dword v{vGA}, v{vLA}, {sp(pDBG)}{SC}
k_ne1:""")
    g(f"""s_lshr_b32 s{sT}, s{sW}, 2
    s_lshl_b32 s{sT+1}, s{sT}, 2
    v_lshrrev_b32 v{vQ}, 2, v2
    v_bfe_u32 v{TT}, v0, 1, 1
    v_add_u32 v{TT}, s{sT+1}, v{TT}
    v_and_b32 v{TT+1}, 1, v3
    v_lshl_add_u32 v{TT+1}, v{TT+1}, 2, v{vQ}
    v_lshlrev_b32 v{TT+1}, 1, v{TT+1}
    v_xor_b32 v{TT}, v{TT}, v{TT+1}
    v_lshl_add_u32 v{vQ}, v3, 2, v{vQ}
    v_lshlrev_b32 v{vQ}, 8, v{vQ}
    v_lshl_add_u32 v{vQ}, v{TT}, 4, v{vQ}
    v_and_b32 v{TT}, 1, v0
    v_lshl_add_u32 v{vQ}, v{TT}, 3, v{vQ}
    v_add_u32 v{vQ}, {WV}, v{vQ}
    v_xor_b32 v{TT}, 32, v{vQ}""")
    VF = [12, 28]
    def trv():
        for T in range(2):
            for s_ in range(4):
                for h in range(2):
                    g(f"ds_read_b64_tr_b16 {vr(VF[T]+4*s_+2*h,2)}, v{vQ if T == 0 else TT} offset:{s_*8192 + h*4096}")
    if not o.wvlate: trv()
    BA = 44
    g(f"""s_and_b32 s{sT+2}, s{sW}, 3
    s_mul_i32 s{sT+1}, s{sT+2}, {16*544}
    v_mul_u32_u24 v{TT+1}, 544, v2
    v_lshl_add_u32 v{TT+1}, v3, 4, v{TT+1}
    v_add_u32 v{TT+1}, s{sT+1}, v{TT+1}
    v_mov_b32 v{vT0}, 0
    s_lshl_b32 s{sT+2}, s{sT+2}, 12
    s_lshl_b32 s{sT}, s{sT}, 6
    s_add_u32 s{sT}, s{sT}, s{sT+2}
    v_lshlrev_b32 v{vT1}, 8, v2
    v_and_b32 v{TT+2}, 1, v3
    v_lshl_add_u32 v{vT1}, v{TT+2}, 5, v{vT1}
    v_lshrrev_b32 v{TT+2}, 1, v3
    v_lshl_add_u32 v{vT1}, v{TT+2}, 4, v{vT1}
    v_add_u32 v{vT1}, s{sT}, v{vT1}
    s_waitcnt {"vmcnt(0) " if o.wvlate else ""}lgkmcnt(0)
    s_barrier""")
    stamp("b3")
    D0, D1, BM = 76, 80, 84
    g(f"ds_read_b128 {vr(BM,4)}, v{vT0} offset:{OVM}")
    if o.wvlate:
        trv(); g("s_waitcnt lgkmcnt(0)")
    for s_ in range(4):
        for h in range(2):
            g(f"ds_read_b128 {vr(BA+8*s_+4*h,4)}, v{TT+1} offset:{AGG+s_*128+h*64}")
    g(f"""s_waitcnt lgkmcnt(8)
    v_or3_b32 v{vT0}, v{BM}, v{BM+1}, v{BM+2}
    v_or_b32 v{vT0}, v{vT0}, v{BM+3}
    v_cmp_ne_u32 vcc, 0, v{vT0}
    s_cbranch_vccnz k_extra""")
    def mf(s_):
        for T in range(2):
            d = D0 if T == 0 else D1
            cc = "0" if s_ == 0 else vr(d, 4)
            g(f"v_mfma_f32_16x16x32_bf16 {vr(d,4)}, {vr(VF[T]+4*s_,4)}, {vr(BA+8*s_,4)}, {cc}")
    for s_ in range(4):
        g(f"s_waitcnt lgkmcnt({6-2*s_})")
        bb = BA + 8 * s_
        for k in range(4):
            g(f"v_cvt_pk_bf16_f32 v{bb+k}, v{bb+2*k}, v{bb+2*k+1}")
        if s_ > 0: mf(s_ - 1)
    mf(3)
    g(f"""s_nop 6
    v_cvt_pk_bf16_f32 v4, v{D0}, v{D0+1}
    v_cvt_pk_bf16_f32 v5, v{D0+2}, v{D0+3}
    v_cvt_pk_bf16_f32 v6, v{D1}, v{D1+1}
    v_cvt_pk_bf16_f32 v7, v{D1+2}, v{D1+3}
    s_nop 1
    v_permlane16_swap_b32 v4, v6
    v_permlane16_swap_b32 v5, v7
    buffer_store_dwordx4 v[4:7], v{vT1}, {sq(S_OUT)}, 0 offen{o.outflag}""")
    stamp("stored")
    g(f"""s_cmp_lg_u32 s2, {NB-1}
    s_cbranch_scc1 k_fin
    s_cmp_lg_u32 s{sW}, 15
    s_cbranch_scc1 k_fin
    s_mov_b32 s{sT+2}, {o.spin}
    s_waitcnt vmcnt(1)
k_ep:
    v_readfirstlane_b32 s{sT}, v{vGA}
    s_cmp_ge_u32 s{sT}, {4*(NB-NC)}
    s_cbranch_scc1 k_ep2
    s_sub_u32 s{sT+2}, s{sT+2}, 1
    s_cbranch_scc1 k_ep2
    global_load_dword v{vGA}, v{vLA}, {sp(pDBG)}{SC}
    s_waitcnt vmcnt(0)
    s_branch k_ep
k_ep2:
    v_mov_b32 v{vGA}, s{sTag}
    s_mov_b64 exec, 1
    global_store_dword v{vLA}, v{vGA}, {sp(pWS)} offset:{WS_EPOCH}
    s_mov_b64 exec, -1
k_fin:""")
    if o.amp:
        g(f"""s_cmp_lg_u32 s2, {o.ampwg}
        s_cbranch_scc1 k_end
        s_cmp_lg_u32 s{sW}, {o.stw}
        s_cbranch_scc1 k_end
        s_memrealtime s[60:61]
        s_waitcnt lgkmcnt(0)
        s_sub_u32 s62, s{ST0+2}, s{ST0}
        s_mul_i32 s62, s62, {o.amp}
        s_min_u32 s62, s62, 100000
k_amp:
        s_memrealtime s[64:65]
        s_waitcnt lgkmcnt(0)
        s_sub_u32 s63, s64, s60
        s_cmp_lt_u32 s63, s62
        s_cbranch_scc1 k_amp
        s_endpgm""")
    if o.stamps:
        g("s_waitcnt vmcnt(0)")
        stamp("end")
        g("s_waitcnt lgkmcnt(0)")
        l = g.lab("st")
        g(f"""v_cmp_eq_u32 vcc, {o.stw*64}, v0
        s_and_saveexec_b64 s[52:53], vcc
        s_cbranch_execz {l}
        s_add_u32 s54, s{pWS}, {WS_STAMP}
        s_addc_u32 s55, s{pWS+1}, 0
        s_mul_i32 s56, s2, 64
        v_mov_b32 v1, s56""")
        for i in range(8):
            g(f"v_mov_b32 v2, s{ST0+2*i}\nv_mov_b32 v3, s{ST0+2*i+1}\nglobal_store_dwordx2 v1, v[2:3], s[54:55] offset:{8*i}\ns_nop 1")
        g(f"s_waitcnt vmcnt(0)\n{l}:")
    g("k_end:\ns_endpgm")
    for lf, lb, cn, lane in flush_sites:
        g(f"""{lf}:
        v_readlane_b32 s{sN}, v{cn}, {lane}
        s_call_b64 {sp(sRet)}, k_flush
        s_branch {lb}""")
    g(f"k_flush:\ns_nop 0\ns_mulk_i32 s{sN}, 136")
    for k in range(4):
        g(f"v_add_f32_dpp v{TT+k}, v{AC+k}, v{AC+k} row_ror:8 row_mask:0xf bank_mask:0x3")
    for k in range(4):
        g(f"v_add_f32_dpp v{TT+k}, v{AC+4+k}, v{AC+4+k} row_ror:8 row_mask:0xf bank_mask:0xc")
    g(f"v_add_u32 v{vT1}, s{sN}, v{vFL}")
    for k in range(2):
        g(f"v_add_f32_dpp v{TT+4+k}, v{TT+k}, v{TT+k} row_shl:4 row_mask:0xf bank_mask:0x5")
    for k in range(2):
        g(f"v_add_f32_dpp v{TT+4+k}, v{TT+2+k}, v{TT+2+k} row_shr:4 row_mask:0xf bank_mask:0xa")
    g(f"s_cmp_lg_u32 s{sRound}, 0\ns_cbranch_scc1 k_flush2\nk_flush3:")
    g(f"ds_write_b64 v{vT1}, {vr(TT+4,2)} offset:{AGG}")
    for k in range(8): g(f"v_mov_b32 v{AC+k}, 0")
    g(f"""s_setpc_b64 {sp(sRet)}
k_flush2:
    ds_read_b64 {vr(TT,2)}, v{vT1} offset:{AGG}
    s_waitcnt lgkmcnt(0)
    v_add_f32 v{TT+4}, v{TT+4}, v{TT}
    v_add_f32 v{TT+5}, v{TT+5}, v{TT+1}
    s_branch k_flush3""")
    for le, lr in ev_sites:
        g(f"{le}:\ns_call_b64 {sp(sRet)}, k_event\ns_branch {lr}")
    g("k_event:")
    setO(DP + 1)
    for i, e in enumerate(sorted(prio_ev, reverse=True)):
        l = g.lab("pe")
        g(f"s_cmp_lg_u32 s{sRem}, {e}\ns_cbranch_scc1 {l}\ns_setprio {2-i}\n{l}:")
    for r in range(DP - 1, 1, -1):
        l = g.lab("we")
        g(f"s_cmp_lg_u32 s{sRem}, {r}\ns_cbranch_scc1 {l}\ns_waitcnt vmcnt({4*(r-1)})\n{l}:")
    g(f"""s_cmp_lg_u32 s{sRem}, 1
    s_cbranch_scc1 k_ev1
    s_mov_b32 s{sFA}, s{sLM}
    s_mov_b32 s{sFO}, s{sLB}
    s_waitcnt vmcnt(0)
k_ev1:
    s_setpc_b64 {sp(sRet)}""")
    g(f"k_pto:\ns_mov_b64 exec, -1\ns_waitcnt vmcnt(0)\ns_branch k_polled")
    S_OV = 60
    def build_ovf(d):
        g(f"""s_add_u32 s{d}, s{pWS}, {WS_OVF}
        s_addc_u32 s{d+1}, s{pWS+1}, 0
        s_mov_b32 s{d+2}, {(WS_OVFCNT - WS_OVF) + 4096}
        s_mov_b32 s{d+3}, 0x20000""")
    g("k_slow:")
    build_ovf(S_OV)
    g(f"""s_mul_i32 s{sT+4}, s2, {CE*4}
    s_mov_b32 s{sG}, {TAGMASK}
    v_mov_b32 v{vT0}, {OVN}""")
    for i in range(8):
        l = g.lab("ov")
        g(f"""s_mov_b64 exec, {sp(sVal)}
        v_cmp_gt_u32 vcc, {CAP*4}, v{Rk+i}
        s_and_b64 exec, {sp(sVal)}, vcc
        ds_write_b32 v{Tm+i}, v{Ss+i}
        s_andn2_b64 exec, {sp(sVal)}, vcc
        s_cbranch_execz {l}
        ds_add_rtn_u32 v{TT+1}, v{vT0}, v{vFour}
        v_lshlrev_b32 v{TT}, 20, v{B4+i}
        v_bfi_b32 v{TT}, s{sG}, v{TT}, v{Ss+i}
        s_waitcnt lgkmcnt(0)
        buffer_store_dword v{TT}, v{TT+1}, {sq(S_OV)}, s{sT+4} offen{SC}
        {l}:""")
    g(f"""s_mov_b64 exec, -1
    s_waitcnt vmcnt(0)
    s_branch k_binned""")
    g(f"""k_flag:
    s_waitcnt lgkmcnt(0)""")
    ssync(2)
    build_ovf(S_OV)
    g(f"""v_cmp_gt_u32 vcc, {NB}, v0
    s_mov_b64 exec, vcc
    v_lshlrev_b32 v{TT}, 2, v0
    ds_read_b32 v{TT+1}, v{TT} offset:{PCNT}
    v_mul_u32_u24 v{TT}, {IST}, v0
    v_add_u32 v{TT}, {IMG}, v{TT}
    v_mov_b32 v{TT+2}, 2
    s_waitcnt lgkmcnt(0)
    v_cmp_lt_u32 vcc, {CAP*4}, v{TT+1}
    s_and_b64 exec, exec, vcc
    ds_or_b32 v{TT}, v{TT+2}
    s_mov_b64 exec, -1
    s_lshl_b32 s{sT+4}, s2, 2
    s_add_u32 s{sT+4}, s{sT+4}, {WS_OVFCNT - WS_OVF}
    v_mov_b32 v{TT}, 0
    buffer_store_dword v{Tm}, v{TT}, {sq(S_OV)}, s{sT+4} offen{SC}
    s_waitcnt vmcnt(0) lgkmcnt(0)""")
    ssync(3)
    img_reads()
    g("s_branch k_copy")
    g("k_mark:")
    for h in range(2):
        e = 4 + 4 * h
        g(f"""v_and_b32 v{vT0}, 2, v{e}
        v_cmp_ne_u32 vcc, 0, v{vT0}
        s_and_b64 exec, vcc, {sp(sVal+8*h)}
        v_and_b32 v{e}, -3, v{e}
        v_lshrrev_b32 v{vT0}, 3, v0
        v_add_u32 v{vT0}, {64*h}, v{vT0}
        v_lshrrev_b32 v{vT1}, 5, v{vT0}
        v_lshlrev_b32 v{vT1}, 2, v{vT1}
        v_and_b32 v{vT0}, 31, v{vT0}
        v_lshlrev_b32 v{vT0}, v{vT0}, 1
        ds_or_b32 v{vT1}, v{vT0} offset:{OVM}
        s_mov_b64 exec, -1""")
    g("s_branch k_round")
    sMap = 52
    g(f"""k_extra:
    s_waitcnt lgkmcnt(0)
    v_readfirstlane_b32 s{sMap}, v{BM}
    v_readfirstlane_b32 s{sMap+1}, v{BM+1}
    v_readfirstlane_b32 s{sMap+2}, v{BM+2}
    v_readfirstlane_b32 s{sMap+3}, v{BM+3}
    s_barrier
    s_cmp_lg_u64 {sp(sMap)}, 0
    s_cbranch_scc1 k_x1
    s_ff1_i32_b64 s{sT}, {sp(sMap+2)}
    s_bitset0_b64 {sp(sMap+2)}, s{sT}
    s_add_u32 s{sT}, s{sT}, 64
    s_branch k_x2
k_x1:
    s_ff1_i32_b64 s{sT}, {sp(sMap)}
    s_bitset0_b64 {sp(sMap)}, s{sT}
k_x2:""")
    build_ovf(S_CST)
    g(f"""s_lshl_b32 s{sG}, s{sT}, 2
    s_add_u32 s{sG}, s{sG}, {WS_OVFCNT - WS_OVF}
    v_mov_b32 v{vT0}, 0
    buffer_load_dword v{vT1}, v{vT0}, {sq(S_CST)}, s{sG} offen{SC}
    s_mul_i32 s{sG}, s{sT}, {CE*4}
    buffer_load_dwordx4 v[4:7], v1, {sq(S_CST)}, s{sG} offen{SC}
    s_add_u32 s{sG}, s{sG}, 8192
    buffer_load_dwordx4 v[8:11], v1, {sq(S_CST)}, s{sG} offen{SC}""")
    for i in range(4): g(f"v_mov_b32 v{AN+4+i}, {PADMARK}")
    g(f"""ds_write_b128 v1, {vr(AN+4,4)} offset:{LIST}
    s_cmp_lg_u32 s{sW}, 0
    s_cbranch_scc1 k_x3
    ds_write_b128 v1, {vr(AN+4,4)} offset:{LIST+16384}
    v_lshrrev_b32 v{TT}, 2, v1
    ds_write_b32 v{TT}, v{vT0} offset:{CNT2}
    v_mov_b32 v{AN}, s{sMap}
    v_mov_b32 v{AN+1}, s{sMap+1}
    v_mov_b32 v{AN+2}, s{sMap+2}
    v_mov_b32 v{AN+3}, s{sMap+3}
    ds_write_b128 v{vT0}, {vr(AN,4)} offset:{OVM}
k_x3:
    s_mov_b32 s{sRound}, 1
    s_add_u32 s{sT}, s2, 512""")
    zero_main()
    g("s_waitcnt vmcnt(0)")
    for i in range(8):
        g(f"""v_lshrrev_b32 v{AP}, 22, v{4+i}
        v_cmp_eq_u32 vcc, s{sT}, v{AP}
        v_add_u32 v{AP+1}, {(i&3)*4 + (i>>2)*8192}, v1
        v_cmp_lt_u32 {sp(sVal+2*i)}, v{AP+1}, v{vT1}
        s_and_b64 {sp(sVal+2*i)}, {sp(sVal+2*i)}, vcc""")
    g(f"""s_waitcnt lgkmcnt(0)
    s_barrier
    s_cmp_lt_u32 s{sW}, 8
    s_cbranch_scc1 k_round
    s_branch k_b1""")
    return NV

def main():
    ap = argparse.ArgumentParser()
    ap.add_argument("-o", default="cdna_kernels/" + KN + ".s")
    ap.add_argument("--stamps", default="")
    ap.add_argument("--cyc", action="store_true")
    ap.add_argument("--stw", type=int, default=0)
    ap.add_argument("--pfa", type=int, default=0)
    ap.add_argument("--pfb", type=int, default=0)
    ap.add_argument("--depth", type=int, default=2)
    ap.add_argument("--prio", default="")
    ap.add_argument("--wvlate", type=int, default=1)
    ap.add_argument("--gate", type=int, default=-1)
    ap.add_argument("--amp", type=int, default=0)
    ap.add_argument("--ampwg", type=int, default=3)
    ap.add_argument("--cpf", type=int, default=0)
    ap.add_argument("--abl", default="")
    ap.add_argument("--xfirst", type=int, default=0)
    ap.add_argument("--xdelay", type=int, default=0)
    ap.add_argument("--partial", type=int, default=0)
    ap.add_argument("--stflag", default="sc1")
    ap.add_argument("--gateb", type=int, default=0)
    ap.add_argument("--partner", type=int, default=1)
    ap.add_argument("--edgeflag", default="nt")
    ap.add_argument("--wvb1", type=int, default=1)
    ap.add_argument("--auxearly", type=int, default=0)
    ap.add_argument("--psleep", type=int, default=0)
    ap.add_argument("--pdelay", type=int, default=0)
    ap.add_argument("--outflag", default="")
    ap.add_argument("--spin", type=int, default=200000)
    o = ap.parse_args()
    if o.outflag: o.outflag = " " + o.outflag
    if o.edgeflag: o.edgeflag = " " + o.edgeflag
    o.stflag = " " + o.stflag
    g = G()
    nv = gen(g, o)
    head = f"""; featgraph: fused kernel. producers bucket edges by dst into tagged cells (d_ws), every workgroup then
; @launch grid=({NB},1,1) block=(1024,1,1) lds={LDS}
.amdgcn_target "amdgcn-amd-amdhsa--gfx950"
.text
"""
    acc = (nv + 3) // 4 * 4
    tail = f""".section .rodata,"a"
.p2align 6
.amdhsa_kernel {KN}_kernel
  .amdhsa_next_free_vgpr {nv}
  .amdhsa_next_free_sgpr 102
  .amdhsa_accum_offset {acc}
  .amdhsa_group_segment_fixed_size 0
  .amdhsa_kernarg_size 64
  .amdhsa_user_sgpr_count 2
  .amdhsa_user_sgpr_kernarg_segment_ptr 1
  .amdhsa_system_sgpr_workgroup_id_x 1
.end_amdhsa_kernel
"""
    open(o.o, "w").write(head + g.text() + tail)
main()
```

```python
import sys, argparse

KN = "standalone__kernel_systems_refs_featgraph__graph"
N, E, D = 12500, 400000, 128
NB, NPB = 250, 50
NC, CE = 125, 3200
CAP = 32
WS_EPOCH = 0
WS_CELLS = 4096
CELLS_BYTES = NB * NC * 128
WS_OVF = 4 << 20
WS_OVFCNT = 6 << 20
WS_STAMP = 8 << 20
PADW = 0x3FFF0000
PADL = 0x3FFF00FC
TAGMASK = 0xC000FF00
BIG = 0x400000
IST = 144

CNT2, OVM, AUXC, SRTC, EXF, PCNT = 0, 256, 272, 276, 320, 512
OVN = PCNT + 1000
AGG = PCNT + 1024
QT = AGG + 50 * 272
LIST = (QT + 50 * 272 + 255) // 256 * 256
WQ = LIST + 17408
WV = WQ + 32768
IMG = WV + 32768
EXTRA = IMG + 16384
AGF = WQ
LDS = IMG + 256 * IST
assert LDS <= 163840 and LIST + 16384 < 65536 and WQ % 256 == 0

class G:
    def __init__(self):
        self.L = []; self.uid = 0
    def __call__(self, s=""):
        for ln in s.split("\n"):
            ln = ln.strip()
            if not ln: continue
            if ln.endswith(":") or ln.startswith("."): self.L.append(ln)
            else: self.L.append("    " + ln)
    def lab(self, p="L"):
        self.uid += 1
        return f"{p}_{self.uid}"
    def text(self): return "\n".join(self.L) + "\n"

def vr(a, n=1): return f"v{a}" if n == 1 else f"v[{a}:{a+n-1}]"
def sp(a): return f"s[{a}:{a+1}]"
def sq(a): return f"s[{a}:{a+3}]"

ST0 = 86
def gen(g, o):
    DP = o.depth
    sel = o.stamps.split(",") if o.stamps else []
    def stamp(nm):
        if nm in sel:
            i = sel.index(nm)
            g(f"{'s_memtime' if o.cyc else 's_memrealtime'} s[{ST0+2*i}:{ST0+2*i+1}]")
        if nm + "C" in sel:
            i = sel.index(nm + "C")
            g(f"s_memtime s[{ST0+2*i}:{ST0+2*i+1}]")
    pX, pSRC, pDST, pWQ, pWV, pOUT, pDBG, pWS = 4, 6, 8, 10, 12, 14, 16, 18
    S_X, S_CELL, S_CST, S_OUT, S_XI = 20, 24, 28, 32, 72
    sW, sTag, sG, sRem, sFl, sN, sRound = 36, 37, 38, 39, 40, 42, 43
    sM, sVal, sRet, sSc, s68 = 44, 52, 68, 70, 71
    sFirst, sLk, sLim, sT = 76, 77, 78, 80
    sEv = 0
    X = [12 + 16 * p for p in range(DP)]
    b = 12 + 16 * DP
    A = b; Ee = b + 16; CN = [b + 24 + 2 * p for p in range(DP)]
    b = (b + 24 + 2 * DP + 3) // 4 * 4
    AL = b; AC = b + 4; AN = b + 12
    b += 20
    b = max(b, 92)
    vLP, vRW, vRR, vFL, vLA, vGA, vQ, vT0, vT1, vFour = range(b, b + 10)
    TT = b + 10
    NV = TT + 6
    assert NV == 108 and DP == 2
    NV = 128
    VFQ = {(0,0):8, (0,1):108, (1,0):112, (1,1):116, (2,0):120, (2,1):124, (3,0):12, (3,1):16}
    vAg, vOut, vWv = 4, 5, 6
    SC = " sc1"
    isprod = f"s_cmp_lt_u32 s2, {NC}"
    g(f""".p2align 8
.globl {KN}_kernel
.type {KN}_kernel,@function
{KN}_kernel:
    s_cmp_ge_u32 s2, {NB}
    s_cbranch_scc1 k_end
    s_load_dwordx16 s[4:19], s[0:1], 0
    v_lshlrev_b32 v1, 4, v0
    v_lshrrev_b32 v{vT0}, 6, v0
    v_and_b32 v2, 15, v0
    v_readfirstlane_b32 s{sW}, v{vT0}
    v_bfe_u32 v3, v0, 4, 2
    s_mul_i32 s{sN}, s2, {CE*4}""")
    assert CE * 4 == NPB * 256
    if o.stamps:
        for i in range(8): g(f"s_mov_b64 s[{ST0+2*i}:{ST0+2*i+1}], 0")
    Dd, Ss, B4, Rk, Tm = 12, 20, 28, 36, 44
    g(f"""v_cmp_gt_u32 vcc, {CE//8}, v0
    v_add_u32 v{vT1}, s{sN}, v1
    v_add_u32 v{vQ}, {CE*2}, v{vT1}
    s_mov_b64 {sp(sVal)}, vcc
    s_waitcnt lgkmcnt(0)""")
    stamp("start")
    def w_loads(ptr, dst):
        g(f"""s_sub_u32 s{sT}, s{sW}, 8
        s_lshl_b32 s{sT+1}, s{sT}, 12
        v_lshlrev_b32 v{vLA}, 1, v3
        v_xor_b32 v{vLA}, v{vLA}, v2
        v_lshlrev_b32 v{vLA}, 4, v{vLA}
        v_lshl_add_u32 v{vLA}, v3, 8, v{vLA}
        v_add_u32 v{vLA}, s{sT+1}, v{vLA}
        s_add_u32 m0, s{sT+1}, {dst}
        v_xor_b32 v{vGA}, 0x80, v{vLA}""")
        for k in range(4): g(f"global_load_lds_dwordx4 v{vLA if k < 2 else vGA}, {sp(ptr)} offset:{1024*k}")
    def x_loads():
        g(f"""s_sub_u32 s{sT}, s{sW}, 8
        s_and_b32 s{sT+2}, s{sT}, 1
        s_lshl_b32 s{sT+2}, s{sT+2}, 3
        v_add_u32 v{vT0}, s{sT+2}, v3
        v_xor_b32 v{vT0}, v{vT0}, v2
        v_lshlrev_b32 v{vT0}, 4, v{vT0}
        v_lshl_add_u32 v{vT0}, v3, 8, v{vT0}
        v_xor_b32 v{vT1}, 64, v{vT0}
        s_lshl_b32 s{sT+2}, s{sT}, 11
        s_add_u32 m0, s{sT+2}, {LIST}
        s_add_u32 s{sT+2}, s{sT+2}, s{sN}
        buffer_load_dwordx4 v{vT0}, {sq(S_X)}, s{sT+2} offen lds
        buffer_load_dwordx4 v{vT1}, {sq(S_X)}, s{sT+2} offen offset:1024 lds""")
    def prefetch(nw, idx_first, base):
        g(f"""s_sub_u32 s{sT}, s{sW}, 8
        s_cmp_ge_u32 s{sT}, {nw}
        s_cselect_b32 s{sT+1}, {BIG}, 0
        s_lshl_b32 s{sT}, s{sT}, 13
        s_add_u32 s{sT}, s{sT}, s{sT+1}
        s_add_u32 s{sT}, s{sT}, {base}
        s_sub_u32 s{sT+1}, s2, {idx_first}
        s_lshr_b32 s{sT+1}, s{sT+1}, 3
        s_mul_i32 s{sT+1}, s{sT+1}, {nw*8192}
        s_add_u32 s{sT}, s{sT}, s{sT+1}
        v_and_b32 v{vT0}, 63, v0
        v_lshlrev_b32 v{vT0}, 7, v{vT0}
        buffer_load_dword v{TT+5}, v{vT0}, {sq(S_X)}, s{sT} offen""")
    def lsync(addr, target):
        l = g.lab("ss")
        g(f"""v_mov_b32 v{TT+3}, 0
        s_mov_b64 exec, 1
        ds_add_u32 v{TT+3}, v{vFour} offset:{addr}
        s_mov_b64 exec, -1
        {l}:
        ds_read_b32 v{TT+4}, v{TT+3} offset:{addr}
        s_waitcnt lgkmcnt(0)
        v_cmp_gt_u32 vcc, {target}, v{TT+4}
        s_cbranch_vccnz {l}""")
    g(f"""s_load_dword s{sTag}, {sp(pWS)}, {WS_EPOCH}
    {isprod}
    s_cbranch_scc0 k_noedge
    s_mov_b64 exec, {sp(sVal)}
    s_cbranch_execz k_noedge
    global_load_dwordx4 {vr(Dd,4)}, v{vT1}, {sp(pDST)} nt
    global_load_dwordx4 {vr(Dd+4,4)}, v{vQ}, {sp(pDST)} nt
    global_load_dwordx4 {vr(Ss,4)}, v{vT1}, {sp(pSRC)} nt
    global_load_dwordx4 {vr(Ss+4,4)}, v{vQ}, {sp(pSRC)} nt
k_noedge:
    s_mov_b64 exec, -1""")
    for i in range(4): g(f"v_mov_b32 v{AN+i}, 0")
    g(f"""s_cmp_ge_u32 s{sW}, 2
    s_cbranch_scc1 k_i0
    ds_write_b128 v1, {vr(AN,4)}
k_i0:
    s_cmp_lt_u32 s{sW}, 8
    s_cbranch_scc1 k_i1
    {isprod}
    s_cbranch_scc1 k_i1""")
    w_loads(pWQ, WQ)
    g(f"""k_i1:
    s_mov_b32 s{S_X}, s{pX}
    s_mov_b32 s{S_X+1}, s{pX+1}
    s_mov_b32 s{S_X+2}, {N*256}
    s_mov_b32 s{S_X+3}, 0x20000
    s_mov_b32 s{S_XI}, s{pX}
    s_or_b32 s{S_XI+1}, s{pX+1}, 0x1000000
    s_movk_i32 s{S_XI+2}, {N}
    s_mov_b32 s{S_XI+3}, 0x20000
    s_mul_i32 s{sT}, s2, 16000
    s_add_u32 s{S_CST}, s{pWS}, {WS_CELLS}
    s_addc_u32 s{S_CST+1}, s{pWS+1}, 0
    s_mov_b32 s{S_CST+2}, {CELLS_BYTES}
    s_mov_b32 s{S_CST+3}, 0x20000
    s_add_u32 s{S_CELL}, s{S_CST}, s{sT}
    s_addc_u32 s{S_CELL+1}, s{S_CST+1}, 0
    s_mov_b32 s{S_CELL+2}, 16000
    s_mov_b32 s{S_CELL+3}, 0x20000
    s_add_u32 s{S_OUT}, s{pOUT}, s{sN}
    s_addc_u32 s{S_OUT+1}, s{pOUT+1}, 0
    s_mov_b32 s{S_OUT+2}, {NPB*256}
    s_mov_b32 s{S_OUT+3}, 0x20000
    v_mov_b32 v{vFour}, 4
    v_mov_b32 v{vOut}, -1
    v_lshrrev_b32 v{vT0}, 3, v0
    v_mul_u32_u24 v{vQ}, {IST}, v{vT0}
    v_and_b32 v{vT1}, 0x70, v1
    v_add_u32 v{vQ}, v{vQ}, v{vT1}
    v_add_u32 v{vQ}, {IMG}, v{vQ}
    s_waitcnt lgkmcnt(0)""")
    stamp("epoch")
    g(f"""s_add_u32 s{sTag}, s{sTag}, 0x100
    s_and_b32 s{sTag}, s{sTag}, 0xff00
    {isprod}
    s_cbranch_scc0 k_cons""")
    g(f"s_or_b32 s{sT+2}, s{sTag}, {PADW}")
    for i in range(4): g(f"v_mov_b32 v{AN+i}, s{sT+2}")
    g(f"""s_movk_i32 s{sT+4}, 16000
    v_mad_u32_u24 v{vT1}, v{vT0}, s{sT+4}, v{vT1}
    ds_write_b128 v{vQ}, {vr(AN,4)}
    ds_write_b128 v{vQ}, {vr(AN,4)} offset:{128*IST}
    s_cmp_lt_u32 s{sW}, 8
    s_cbranch_scc1 k_px""")
    x_loads()
    g(f"""s_waitcnt lgkmcnt(0)
    s_barrier""")
    w_loads(pWQ, WQ)
    g(f"""s_waitcnt vmcnt(0)
    s_branch k_aux1
k_px:
    s_mov_b32 s{sT}, 85899346
    s_movk_i32 s{sT+1}, -50
    s_mov_b32 s{sT+3}, {IMG}
    v_mov_b32 v{TT}, {IST//4}
    s_waitcnt lgkmcnt(0)
    s_barrier""")
    stamp("ba")
    g(f"""s_mov_b64 exec, {sp(sVal)}
    s_cbranch_execz k_binned
    s_waitcnt vmcnt(2)""")
    stamp("edges")
    for i in range(8):
        g(f"""v_mul_hi_u32 v{B4+i}, v{Dd+i}, s{sT}
        v_lshlrev_b32 v{B4+i}, 2, v{B4+i}
        ds_add_rtn_u32 v{Rk+i}, v{B4+i}, v{vFour} offset:{PCNT}""")
    g("s_waitcnt vmcnt(0)")
    for i in range(8):
        g(f"""v_lshl_add_u32 v{Ss+i}, v{Ss+i}, 14, v{Dd+i}
        v_lshl_add_u32 v{Ss+i}, v{Ss+i}, 2, s{sTag}
        v_mad_i32_i24 v{Ss+i}, v{B4+i}, s{sT+1}, v{Ss+i}
        v_mad_u32_u24 v{Tm+i}, v{B4+i}, v{TT}, s{sT+3}""")
    g("s_waitcnt lgkmcnt(0)")
    g(f"""v_max3_u32 v{vT0}, v{Rk}, v{Rk+1}, v{Rk+2}
    v_max3_u32 v{vT0}, v{vT0}, v{Rk+3}, v{Rk+4}
    v_max3_u32 v{vT0}, v{vT0}, v{Rk+5}, v{Rk+6}
    v_max_u32 v{vT0}, v{vT0}, v{Rk+7}
    v_cmp_le_u32 vcc, {CAP*4}, v{vT0}""")
    for i in range(8): g(f"v_add_u32 v{Tm+i}, v{Rk+i}, v{Tm+i}")
    g("s_cbranch_vccnz k_slow")
    for i in range(8): g(f"ds_write_b32 v{Tm+i}, v{Ss+i}")
    g(f"""k_binned:
    s_mov_b64 exec, -1
    v_mov_b32 v{vT0}, {OVN}
    s_lshl_b32 s{sT}, s2, 7
    s_add_u32 s{sT+1}, s{sT}, {64*16000}
    s_add_u32 s{sT+2}, s{sT}, {128*16000}
    s_add_u32 s{sT+3}, s{sT}, {192*16000}
    s_waitcnt lgkmcnt(0)""")
    stamp("binned")
    lsync(SRTC, 32)
    stamp("bb")
    def img_reads():
        for k in range(4): g(f"ds_read_b128 {vr(12+4*k,4)}, v{vQ} offset:{64*k*IST}")
    g(f"ds_read_b32 v{Tm}, v{vT0}")
    img_reads()
    g(f"""s_waitcnt lgkmcnt(4)
    v_cmp_ne_u32 vcc, 0, v{Tm}
    s_cbranch_vccnz k_flag
k_copy:""")
    for k in range(4):
        g(f"s_waitcnt lgkmcnt({3-k})\nbuffer_store_dwordx4 {vr(12+4*k,4)}, v{vT1}, {sq(S_CST)}, s{sT+k} offen{SC}")
    stamp("copied")
    g("s_branch k_sorter")
    g(f"""k_cons:
    s_barrier
    s_cmp_ge_u32 s{sW}, 8
    s_cbranch_scc1 k_aux0
    s_cmp_lg_u32 s{sW}, 7
    s_cbranch_scc1 k_sorter
    v_mov_b32 v{vT0}, 0
    s_mov_b64 exec, 1
    global_atomic_add v{vT0}, v{vFour}, {sp(pDBG)}
    s_mov_b64 exec, -1
    s_branch k_sorter
k_aux0:""")
    x_loads()
    npf = 0
    for k in range(0, o.pfa, 8):
        prefetch(min(8, o.pfa - k), NC, 16 * k * 8192); npf += 1
    g(f"s_waitcnt vmcnt({npf})\nk_aux1:")
    stamp("prebc")
    lsync(AUXC, 32)
    stamp("bc")
    w_loads(pWV, WV)
    g(f"""s_and_b32 s{sT+1}, s{sW}, 3
    s_lshl_b32 s{sT+1}, s{sT+1}, 12
    s_add_u32 s{sT+1}, s{sT+1}, {LIST}
    v_xor_b32 v{vT0}, v3, v2
    v_lshlrev_b32 v{vT0}, 4, v{vT0}
    v_lshl_add_u32 v{vT0}, v2, 8, v{vT0}
    v_add_u32 v{vT0}, s{sT+1}, v{vT0}""")
    for s_ in range(4):
        if s_: g(f"v_xor_b32 v{vT1}, {64*s_}, v{vT0}")
        g(f"ds_read_b128 {vr(12+4*s_,4)}, v{vT1 if s_ else vT0}")
    g(f"""s_bfe_u32 s{sT}, s{sW}, 0x10002
    s_lshl_b32 s{sT+1}, s{sT}, 3
    v_lshrrev_b32 v{vQ}, 2, v2
    v_bfe_u32 v{TT}, v0, 1, 1
    v_add_u32 v{TT}, s{sT+1}, v{TT}
    v_and_b32 v{TT+1}, 1, v3
    v_lshl_add_u32 v{TT+1}, v{TT+1}, 2, v{vQ}
    v_lshlrev_b32 v{TT+1}, 1, v{TT+1}
    v_xor_b32 v{TT}, v{TT}, v{TT+1}
    v_lshl_add_u32 v{vQ}, v3, 3, v{vQ}
    v_lshlrev_b32 v{vQ}, 8, v{vQ}
    v_lshl_add_u32 v{vQ}, v{TT}, 4, v{vQ}
    v_and_b32 v{TT}, 1, v0
    v_lshl_add_u32 v{vQ}, v{TT}, 3, v{vQ}
    v_add_u32 v{vQ}, {WQ}, v{vQ}
    v_xor_b32 v{TT}, 32, v{vQ}
    v_xor_b32 v{TT+1}, 64, v{vQ}
    v_xor_b32 v{TT+2}, 0x60, v{vQ}""")
    WB = [28, 44, 60, 76]
    def trq(T, dst):
        va = vQ if T == 0 else TT + T - 1
        for s_ in range(4):
            for h in range(2):
                g(f"ds_read_b64_tr_b16 {vr(dst+4*s_+2*h,2)}, v{va} offset:{s_*8192 + h*1024}")
    trq(0, WB[0]); trq(1, WB[1])
    g(f"""s_and_b32 s{sT+1}, s{sW}, 3
    s_lshl_b32 s{sT+2}, s{sT+1}, 4
    s_mul_i32 s{sT+1}, s{sT+1}, {16*272}
    s_lshl_b32 s{sT}, s{sT}, 7
    s_add_u32 s{sT}, s{sT}, s{sT+1}
    v_mul_u32_u24 v{vT0}, 272, v2
    v_and_b32 v{vT1}, 1, v3
    v_lshl_add_u32 v{vT0}, v{vT1}, 5, v{vT0}
    v_lshrrev_b32 v{vT1}, 1, v3
    v_lshl_add_u32 v{vT0}, v{vT1}, 4, v{vT0}
    v_add_u32 v{vT0}, s{sT}, v{vT0}
    v_add_u32 v{vT1}, s{sT+2}, v2
    v_cmp_gt_u32 {sp(sVal)}, {NPB}, v{vT1}
    v_mov_b32 v{TT+3}, 0
    s_waitcnt lgkmcnt(0)
    s_mov_b64 exec, 1
    ds_add_u32 v{TT+3}, v{vFour} offset:{AUXC}
    s_mov_b64 exec, -1""")
    trq(2, WB[2]); trq(3, WB[3])
    for jj in range(2):
        if jj == 1: g("s_waitcnt lgkmcnt(1)")
        for s_ in range(4):
            for T in range(2):
                d = 4 + 4 * T
                cc = "0" if s_ == 0 else vr(d, 4)
                g(f"v_mfma_f32_16x16x32_bf16 {vr(d,4)}, {vr(WB[2*jj+T]+4*s_,4)}, {vr(12+4*s_,4)}, {cc}")
        g(f"""s_nop 6
        v_cvt_pk_bf16_f32 v4, v4, v5
        v_cvt_pk_bf16_f32 v5, v6, v7
        v_cvt_pk_bf16_f32 v6, v8, v9
        v_cvt_pk_bf16_f32 v7, v10, v11
        s_nop 1
        v_permlane16_swap_b32 v4, v6
        v_permlane16_swap_b32 v5, v7
        s_mov_b64 exec, {sp(sVal)}
        ds_write_b128 v{vT0}, v[4:7] offset:{QT + jj*64}
        s_mov_b64 exec, -1""")
    for i in range(4): g(f"v_mov_b32 v{8+i}, {PADL}")
    g(f"""v_and_b32 v{vT0}, 0x1fff, v1
k_as2:
    ds_read_b32 v{TT+4}, v{TT+3} offset:{AUXC}
    s_waitcnt lgkmcnt(0)
    v_cmp_gt_u32 vcc, 64, v{TT+4}
    s_cbranch_vccnz k_as2
    ds_write_b128 v{vT0}, v[8:11] offset:{LIST}
    ds_write_b128 v{vT0}, v[8:11] offset:{LIST+8192}
    s_cmp_lg_u32 s{sW}, 8
    s_cbranch_scc1 k_as3
    ds_write_b128 v{vT0}, v[8:11] offset:{LIST+16384}
k_as3:""")
    def consts():
        g(f"""v_and_b32 v{vT0}, 3, v0
        v_lshl_add_u32 v{vLP}, v3, 2, v{vT0}
        v_lshlrev_b32 v{vLP}, 4, v{vLP}
        v_and_b32 v{vT1}, 12, v0
        v_add_u32 v{vFL}, v{vT1}, v{vLP}
        s_lshl_b32 s{sT}, s{sW}, 10
        s_add_u32 s{sT}, s{sT}, {IMG}
        v_bfe_u32 v{vRR}, v0, 3, 1
        v_mul_u32_u24 v{vRR}, 272, v{vRR}
        v_bfe_u32 v{vT1}, v0, 2, 1
        v_lshl_add_u32 v{vRR}, v{vT1}, 7, v{vRR}
        v_lshl_add_u32 v{vRR}, v{vT0}, 5, v{vRR}
        v_add_u32 v{vRR}, s{sT}, v{vRR}
        v_lshl_add_u32 v{vRW}, v{vT0}, 1, v{vRR}
        v_lshl_add_u32 v{vRW}, v3, 3, v{vRW}
        s_mov_b32 s{sM}, 0x000f000f
        s_mov_b32 s{sM+1}, 0x000f000f
        s_lshl_b64 {sp(sM+2)}, {sp(sM)}, 4
        s_lshl_b64 {sp(sM+4)}, {sp(sM)}, 8
        s_lshl_b64 {sp(sM+6)}, {sp(sM)}, 12
        s_mov_b32 s{sSc}, 0xbe0293ee
        s_movk_i32 s{s68}, 68
        s_mov_b32 s{sRound}, 0""")
    def zero_main():
        for i in range(16): g(f"v_mov_b32 v{A+i}, 0")
        for i in range(8): g(f"v_mov_b32 v{AC+i}, 0")
        for t in range(4): g(f"v_mov_b32 v{Ee+2*t+1}, v{vLP}")
    consts()
    zero_main()
    g("s_waitcnt vmcnt(0)")
    stamp("qdone")
    g("s_branch k_b1")
    g("k_sorter:")
    for i in range(4): g(f"v_mov_b32 v{8+i}, 0")
    g(f"""ds_write_b128 v1, v[8:11] offset:{AGG}
    v_cmp_gt_u32 vcc, {(50*272-8192)//16}, v0
    s_mov_b64 exec, vcc
    ds_write_b128 v1, v[8:11] offset:{AGG+8192}
    s_mov_b64 exec, -1""")
    consts()
    zero_main()
    pA, pB = sVal, sVal + 2
    for i in range(4): g(f"v_mov_b32 v{8+i}, -1")
    g(f"""s_mov_b64 {sp(pA)}, -1
    s_movk_i32 s{sT}, {16000-8192}
    v_cmp_gt_u32 {sp(pB)}, s{sT}, v1
    s_movk_i32 s{sT}, 8192
    s_mov_b32 s{sT+1}, {TAGMASK}
    s_mov_b32 s{sT+2}, {o.spin}
    s_mov_b32 s{sLim}, {N << 16}""")
    if o.gate >= 0:
        gm = sum(1 << (8 * int(x)) for x in str(o.gate))
        g(f"""s_mov_b32 exec_lo, {gm & 0xffffffff}
        s_mov_b32 exec_hi, {gm >> 32}
k_gate:
        buffer_load_dword v4, v1, {sq(S_CELL)}, {"s%d" % sT if o.gateb else "0"} offen{SC}
        s_sub_u32 s{sT+2}, s{sT+2}, 1
        s_cbranch_scc1 k_pto
        s_waitcnt vmcnt(0)
        v_xor_b32 v{vT0}, s{sTag}, v4
        v_and_b32 v{vT0}, s{sT+1}, v{vT0}
        v_cmp_ne_u32 vcc, 0, v{vT0}
        s_cbranch_vccnz k_gate""")
    g(f"""k_poll:
    s_mov_b64 exec, {sp(pA)}
    s_cbranch_execz k_p1
    buffer_load_dwordx4 v[4:7], v1, {sq(S_CELL)}, 0 offen{SC}
k_p1:
    s_mov_b64 exec, {sp(pB)}
    s_cbranch_execz k_p2
    buffer_load_dwordx4 v[8:11], v1, {sq(S_CELL)}, s{sT} offen{SC}
k_p2:
    s_mov_b64 exec, -1
    s_sub_u32 s{sT+2}, s{sT+2}, 1
    s_cbranch_scc1 k_pto
    s_waitcnt vmcnt(0)
    v_bitop3_b32 v{vT0}, v4, v5, s{sTag} bitop3:0x7e
    v_bitop3_b32 v{vT1}, v6, v7, s{sTag} bitop3:0x7e
    v_bitop3_b32 v{TT}, v8, v9, s{sTag} bitop3:0x7e
    v_bitop3_b32 v{TT+1}, v10, v11, s{sTag} bitop3:0x7e
    v_bitop3_b32 v{vT0}, v{vT0}, v{vT1}, s{sT+1} bitop3:0xa8
    v_bitop3_b32 v{TT}, v{TT}, v{TT+1}, s{sT+1} bitop3:0xa8
    v_cmp_ne_u32 {sp(pA)}, 0, v{vT0}
    v_cmp_ne_u32 vcc, 0, v{TT}
    s_and_b64 {sp(pB)}, {sp(pB)}, vcc
    s_or_b64 vcc, {sp(pA)}, {sp(pB)}
    s_cbranch_scc1 k_poll
k_polled:""")
    stamp("polled")
    for i in range(8): g(f"v_cmp_gt_u32 {sp(sVal+2*i)}, s{sLim}, v{4+i}")
    g(f"""v_and_b32 v{vT0}, 2, v4
    v_and_b32 v{vT1}, 2, v8
    v_cmp_ne_u32 vcc, 0, v{vT0}
    v_cmp_ne_u32 {sp(sFl)}, 0, v{vT1}
    s_and_b64 {sp(sFl)}, {sp(sFl)}, {sp(sVal+8)}
    s_or_b64 vcc, vcc, {sp(sFl)}
    s_cbranch_scc1 k_mark
k_round:""")
    Tn, Rn, On = 12, 20, 28
    for i in range(8):
        g(f"v_and_b32 v{Tn+i}, 0xfc, v{4+i}")
    for i in range(8):
        g(f"s_mov_b64 exec, {sp(sVal+2*i)}\nds_add_rtn_u32 v{Rn+i}, v{Tn+i}, v{vFour} offset:{CNT2}")
    g(f"""s_mov_b64 exec, -1
k_b1:
    v_and_b32 v{vT0}, 63, v0
    v_lshlrev_b32 v{vT0}, 2, v{vT0}
    v_and_b32 v{vLA}, 12, v0
    v_lshlrev_b32 v{vGA}, 2, v{vLA}
    v_add_u32 v{TT}, {IMG}, v1
    s_waitcnt lgkmcnt(0)
    s_barrier""")
    stamp("b1")
    c, inc = vT1, vQ
    g(f"""ds_read_b32 v{c}, v{vT0} offset:{CNT2}
    ds_read_b32 v{TT+1}, v{vLA} offset:{OVM}
    ds_write_b128 v{TT}, {vr(AC,4)}""")
    if o.pfb:
        l = g.lab("pb")
        g(f"s_cmp_lt_u32 s{sW}, 8\ns_cbranch_scc1 {l}\ns_cmp_lg_u32 s{sRound}, 0\ns_cbranch_scc1 {l}")
        prefetch(o.pfb, 0, 16 * o.pfa * 8192)
        g(f"{l}:")
    g(f"""s_waitcnt lgkmcnt(1)
    v_add_u32 v{c}, 12, v{c}
    v_and_b32 v{c}, -16, v{c}
    v_cmp_ne_u32 vcc, 0, v{TT+1}
    s_cbranch_vccnz k_slowmode
k_sm1:
    v_add_u32_dpp v{inc}, v{c}, v{c} row_shr:1 row_mask:0xf bank_mask:0xf bound_ctrl:0
    s_nop 1
    v_add_u32_dpp v{inc}, v{inc}, v{inc} row_shr:2 row_mask:0xf bank_mask:0xf bound_ctrl:0
    s_nop 1
    v_add_u32_dpp v{inc}, v{inc}, v{inc} row_shr:4 row_mask:0xf bank_mask:0xf bound_ctrl:0
    s_nop 1
    v_add_u32_dpp v{inc}, v{inc}, v{inc} row_shr:8 row_mask:0xf bank_mask:0xf bound_ctrl:0
    s_nop 1
    v_add_u32_dpp v{inc}, v{inc}, v{inc} row_bcast:15 row_mask:0xa bank_mask:0xf
    s_nop 1
    v_add_u32_dpp v{inc}, v{inc}, v{inc} row_bcast:31 row_mask:0xc bank_mask:0xf
    s_cmp_ge_u32 s{sW}, 8
    v_sub_u32 v{c}, v{inc}, v{c}
    v_readlane_b32 s{sG}, v{inc}, 63
    s_cbranch_scc1 k_nosc""")
    for i in range(8): g(f"ds_bpermute_b32 v{On+i}, v{Tn+i}, v{c}")
    for half in range(2):
        g("s_waitcnt lgkmcnt(4)")
        for i in range(4 * half, 4 * half + 4): g(f"v_add_u32 v{On+i}, v{On+i}, v{Rn+i}")
        for i in range(4 * half, 4 * half + 4):
            g(f"s_mov_b64 exec, {sp(sVal+2*i)}\nds_write_b32 v{On+i}, v{4+i} offset:{LIST}")
        g("s_mov_b64 exec, -1")
    prio_ev = [int(x) for x in o.prio.split(",")] if o.prio else []
    evs = sorted(set(list(range(1, DP - 1 if o.la else DP)) + prio_ev))
    evmask = sum(1 << e for e in evs)
    g(f"""k_nosc:
    s_add_u32 s{sG}, s{sG}, 63
    s_lshr_b32 s{sG}, s{sG}, 6
    s_add_u32 s{sT+1}, s{sG}, 15
    s_lshr_b32 s{sT+1}, s{sT+1}, 4
    s_lshl_b32 s{sT+2}, s{sT+1}, 4
    s_sub_u32 s{sT+2}, s{sT+2}, s{sG}
    s_add_u32 s{sT+2}, s{sT+2}, s{sW}
    s_mul_i32 s{sT}, s{sW}, s{sT+1}
    s_sub_u32 s{sT+3}, s{sT+2}, 16
    s_cselect_b32 s{sT+3}, 0, s{sT+3}
    s_cselect_b32 s{sT+2}, 0, 1
    s_sub_u32 s{sT}, s{sT}, s{sT+3}
    s_sub_u32 s{sRem}, s{sT+1}, s{sT+2}
    s_lshl_b32 s{sT}, s{sT}, 6
    s_add_u32 s{sT}, s{sT}, {LIST}
    v_add_u32 v{vLA}, s{sT}, v{vLA}
    v_add_u32 v{vGA}, s{sT}, v{vGA}
    v_subrev_u32 v{vT0}, 16, v{vGA}
    s_mov_b32 s{sEv}, {evmask}""")
    if prio_ev: g("s_setprio 3")
    g("s_waitcnt lgkmcnt(0)\ns_barrier")
    stamp("b2")
    def readE(off):
        for t in range(4): g(f"ds_read_u16 v{Ee+2*t}, v{vLA} offset:{off + 16*t + 2}")
    def readCN(p, off):
        g(f"ds_read_u8 v{CN[p]}, v{vGA} offset:{off}\nds_read_u8 v{CN[p]+1}, v{vGA} offset:{off+16}")
    def adv():
        g(f"v_add_u32 v{vLA}, {64*DP}, v{vLA}\nv_add_u32 v{vGA}, {64*DP}, v{vGA}")
    def loadX(p):
        for t in range(4):
            g(f"buffer_load_dwordx4 {vr(X[p]+4*t,4)}, {vr(Ee+2*t,2)}, {sq(S_XI)}, 0 idxen offen")
    def readQ(p):
        g(f"v_mad_u32_u24 v{vQ}, v{CN[p]}, s{s68}, v{vLP}")
        for t in range(4):
            g(f"s_mov_b64 exec, {sp(sM+2*t)}\nds_read_b128 {vr(A+4*t,4)}, v{vQ} offset:{QT}")
        g("s_mov_b64 exec, -1")
    flush_sites = []; ev_sites = []
    def pt(k):
        if o.prof: g(f"s_memtime s[{52+2*k}:{53+2*k}]")
        if o.tl == k + 1:
            g("s_waitcnt lgkmcnt(0)")
            for j in range(1, 7): g(f"s_mov_b64 s[{ST0+2*j}:{ST0+2*j+1}], s[{ST0+2*j+2}:{ST0+2*j+3}]")
            g(f"s_memtime s[{ST0+14}:{ST0+15}]")
    LA = o.la
    def agg(p, first=False):
        for t in range(4):
            lf, lb = g.lab("fl"), g.lab("fb")
            g(f"""v_mfma_f32_4x4x4_16b_bf16 {vr(AC,4)}, {vr(AN+2*t,2)}, {vr(X[p]+4*t,2)}, {vr(AC,4)}
            v_mfma_f32_4x4x4_16b_bf16 {vr(AC+4,4)}, {vr(AN+2*t,2)}, {vr(X[p]+4*t+2,2)}, {vr(AC+4,4)}
            s_bitcmp1_b32 s{sFl}, {4*t}
            s_cbranch_scc1 {lf}
            {lb}:""")
            flush_sites.append((lf, lb, CN[p], 4 * t))
    def logits(p):
        for t in range(4):
            cc = "0" if t == 0 else vr(AL, 4)
            g(f"v_mfma_f32_16x16x32_bf16 {vr(AL,4)}, {vr(A+4*t,4)}, {vr(X[p]+4*t,4)}, {cc}")
    def sigm(p):
        g(f"""v_mov_b32_dpp v{vT0}, v{AL} quad_perm:[0,0,0,0] row_mask:0xf bank_mask:0xf
        v_add_f32_dpp v{vT0}, v{AL+1}, v{vT0} quad_perm:[1,1,1,1] row_mask:0xf bank_mask:0xf
        v_add_f32_dpp v{vT0}, v{AL+2}, v{vT0} quad_perm:[2,2,2,2] row_mask:0xf bank_mask:0xf
        v_add_f32_dpp v{vT0}, v{AL+3}, v{vT0} quad_perm:[3,3,3,3] row_mask:0xf bank_mask:0xf
        v_mul_f32 v{vT0}, s{sSc}, v{vT0}
        v_exp_f32 v{vT0}, v{vT0}
        v_cmp_ne_u32 {sp(sFl)}, v{CN[p]}, v{CN[p]+1}
        v_add_f32 v{vT0}, 1.0, v{vT0}
        v_rcp_f32 v{vT0}, v{vT0}
        s_nop 0
        v_cvt_pk_bf16_f32 v{vT0}, v{vT0}, v{vT0}
        ds_write_b16 v{vRW}, v{vT0}
        ds_read_b128 {vr(AN,4)}, v{vRR}
        ds_read_b128 {vr(AN+4,4)}, v{vRR} offset:16""")
    def body_la(p):
        q = (p + 1) % DP; r = (p + DP - 1) % DP
        le, lr = g.lab("ev"), g.lab("er")
        ev_sites.append((le, lr))
        off = 64 * p
        readE(off)
        g(f"""s_bitcmp1_b32 s{sEv}, s{sRem}
        s_cbranch_scc1 {le}
        {lr}:
        s_waitcnt vmcnt(4) lgkmcnt(4)""")
        pt(1)
        logits(p)
        readQ(q)
        agg(r)
        ls = g.lab("sk")
        g(f"s_cmp_lt_u32 s{sRem}, 3\ns_cbranch_scc1 {ls}\ns_waitcnt lgkmcnt(4)")
        loadX(r)
        g(f"{ls}:")
        readCN(r, off)
        if p == DP - 1: adv()
        sigm(p)
        g(f"s_sub_u32 s{sRem}, s{sRem}, 1\ns_cmp_eq_u32 s{sRem}, 0\ns_cbranch_scc1 k_last{p}")
    def body(p):
        q = (p + 1) % DP
        le, lr = g.lab("ev"), g.lab("er")
        ev_sites.append((le, lr))
        readE(64 * p)
        pt(0)
        g(f"""s_bitcmp1_b32 s{sEv}, s{sRem}
        s_cbranch_scc1 {le}
        {lr}:
        s_waitcnt vmcnt({4*(DP-1)}) lgkmcnt({6 if o.prof else 4})""")
        pt(1)
        for t in range(4):
            cc = "0" if t == 0 else vr(AL, 4)
            if "l" not in o.abl: g(f"v_mfma_f32_16x16x32_bf16 {vr(AL,4)}, {vr(A+4*t,4)}, {vr(X[p]+4*t,4)}, {cc}")
        g(f"v_cmp_ne_u32 {sp(sFl)}, v{CN[p]}, v{CN[p]+1}")
        readQ(q)
        if "v" not in o.abl:
            g(f"""v_mov_b32_dpp v{vT0}, v{AL} quad_perm:[0,0,0,0] row_mask:0xf bank_mask:0xf
            v_add_f32_dpp v{vT0}, v{AL+1}, v{vT0} quad_perm:[1,1,1,1] row_mask:0xf bank_mask:0xf
            v_add_f32_dpp v{vT0}, v{AL+2}, v{vT0} quad_perm:[2,2,2,2] row_mask:0xf bank_mask:0xf
            v_add_f32_dpp v{vT0}, v{AL+3}, v{vT0} quad_perm:[3,3,3,3] row_mask:0xf bank_mask:0xf
            v_mul_f32 v{vT0}, s{sSc}, v{vT0}
            v_exp_f32 v{vT0}, v{vT0}
            s_nop 0
            v_add_f32 v{vT0}, 1.0, v{vT0}
            v_rcp_f32 v{vT0}, v{vT0}
            s_nop 0
            v_cvt_pk_bf16_f32 v{vT0}, v{vT0}, v{vT0}
            ds_write_b16 v{vRW}, v{vT0}
            ds_read_b128 {vr(AN,4)}, v{vRR}
            ds_read_b128 {vr(AN+4,4)}, v{vRR} offset:16""")
        pt(2)
        g("s_waitcnt lgkmcnt(0)" if o.prof else "s_waitcnt lgkmcnt(1)")
        pt(3)
        for t in range(4):
            lf, lb = g.lab("fl"), g.lab("fb")
            if t == 2: g("s_waitcnt lgkmcnt(0)")
            if "m" not in o.abl:
                g(f"""v_mfma_f32_4x4x4_16b_bf16 {vr(AC,4)}, {vr(AN+2*t,2)}, {vr(X[p]+4*t,2)}, {vr(AC,4)}
                v_mfma_f32_4x4x4_16b_bf16 {vr(AC+4,4)}, {vr(AN+2*t,2)}, {vr(X[p]+4*t+2,2)}, {vr(AC+4,4)}""")
            if "f" not in o.abl:
                g(f"s_bitcmp1_b32 s{sFl}, {4*t}\ns_cbranch_scc1 {lf}")
            else: g("s_nop 1")
            g(f"{lb}:")
            flush_sites.append((lf, lb, CN[p], 4 * t))
        ls = g.lab("sk")
        pt(4)
        g(f"s_cmp_le_u32 s{sRem}, {DP}\ns_cbranch_scc1 {ls}")
        loadX(p)
        g(f"{ls}:")
        pt(5)
        if o.prof:
            g("s_waitcnt lgkmcnt(0)")
            for k in range(5):
                g(f"s_sub_u32 s{sT}, s{52+2*(k+1)}, s{52+2*k}\ns_add_u32 s{ST0+2*k+2}, s{ST0+2*k+2}, s{sT}")
            g(f"s_add_u32 s{ST0+12}, s{ST0+12}, 1")
        g(f"s_sub_u32 s{sRem}, s{sRem}, 1\ns_cmp_eq_u32 s{sRem}, 0\ns_cbranch_scc1 k_exit{p}")
        readCN(p, 64 * p)
        if p == DP - 1: adv()
    g(f"""s_cmp_eq_u32 s{sRem}, 0
    s_cbranch_scc1 k_zero""")
    if LA:
        assert DP == 3
        for p in range(3):
            if p > 0: g(f"s_cmp_lt_u32 s{sRem}, {p+1}\ns_cbranch_scc1 k_pro{p}")
            readE(64 * p); readCN(p, 64 * p)
            if p == 0: g(f"ds_read_u8 v{vT1}, v{vT0}\ns_waitcnt lgkmcnt(3)")
            else: g("s_waitcnt lgkmcnt(2)")
            if p == 2: break
            loadX(p)
            if p == 0:
                g("s_waitcnt lgkmcnt(0)")
                readQ(0)
                g(f"""v_cmp_eq_u32 vcc, v{vT1}, v{CN[0]}
                s_and_b32 s{sFirst}, vcc_lo, 1
                s_cmp_eq_u32 s{sW}, 0
                s_cselect_b32 s{sFirst}, 0, s{sFirst}""")
        g("s_waitcnt vmcnt(4)")
        logits(0)
        loadX(2)
        g("s_branch k_pro3\nk_pro1:\ns_waitcnt vmcnt(0)\nk_pro2:\ns_waitcnt vmcnt(4) lgkmcnt(0)")
        logits(0)
        g("k_pro3:")
        readQ(1)
        g(f"v_add_u32 v{vLA}, {64*2}, v{vLA}\nv_add_u32 v{vGA}, {64*2}, v{vGA}")
        sigm(0)
        g(f"s_sub_u32 s{sRem}, s{sRem}, 1\ns_cmp_eq_u32 s{sRem}, 0\ns_cbranch_scc1 k_last0\ns_branch k_loop1")
        g("k_loop:")
        for p in range(DP):
            g(f"k_loop{p}:")
            body_la(p)
        g("s_branch k_loop")
        for p in range(DP):
            g(f"k_last{p}:\ns_waitcnt lgkmcnt(0)")
            agg(p)
            g(f"v_readlane_b32 s{sN}, v{CN[p]}, 12")
            if p < DP - 1: g("s_branch k_exit")
    else:
        for p in range(DP):
            if p > 0: g(f"s_cmp_lt_u32 s{sRem}, {p+1}\ns_cbranch_scc1 k_pro")
            readE(64 * p); readCN(p, 64 * p)
            if p == 0: g(f"ds_read_u8 v{vT0}, v{vT0}\ns_waitcnt lgkmcnt(3)")
            else: g("s_waitcnt lgkmcnt(2)")
            loadX(p)
            if o.rr and p == 0: g("s_setprio 0")
        g("k_pro:")
        if o.rr: g("s_setprio 3")
        adv()
        g("s_waitcnt lgkmcnt(0)")
        readQ(0)
        g(f"""v_cmp_eq_u32 vcc, v{vT0}, v{CN[0]}
        s_and_b32 s{sFirst}, vcc_lo, 1
        s_cmp_eq_u32 s{sW}, 0
        s_cselect_b32 s{sFirst}, 0, s{sFirst}
        s_call_b64 {sp(sRet)}, k_prep""")
        g("k_loop:")
        for p in range(DP): body(p)
        g("s_branch k_loop")
        for p in range(DP):
            g(f"""k_exit{p}:
            v_readlane_b32 s{sN}, v{CN[p]}, 12""")
            if p < DP - 1: g("s_branch k_exit")
    g(f"""k_exit:
    {"s_branch k_done" if "f" in o.abl else ""}
    s_bitcmp1_b32 s{sFl}, 12
    s_cbranch_scc1 k_done
    s_cmp_ge_u32 s{sN}, {4*NPB}
    s_cbranch_scc1 k_done
k_tw:
    v_cmp_eq_u32 vcc, 0, v{Ee+2}
    s_cbranch_vccnz k_tw2""")
    for t in range(4):
        g(f"""s_mov_b64 exec, {sp(sM+2*t)}
        v_add_f32 v{AC+2*t}, v{AC+2*t}, v{Ee}
        v_add_f32 v{AC+2*t+1}, v{AC+2*t+1}, v{Ee+1}""")
    g(f"""s_mov_b64 exec, -1
    s_call_b64 {sp(sRet)}, k_flush
k_done:""")
    if prio_ev: g("s_setprio 0")
    stamp("main")
    g(f"""s_cmp_lg_u32 s2, {NB-1}
    s_cbranch_scc1 k_ne1
    v_mov_b32 v{vLA}, 0
    global_load_dword v{vGA}, v{vLA}, {sp(pDBG)}{SC}
k_ne1:""")
    BA = 44
    g(f"""v_xor_b32 v{vT1}, 32, v{vWv}
    s_cmp_lg_u32 s{sRound}, 0
    s_waitcnt lgkmcnt(0)
    s_barrier
    s_cbranch_scc1 k_extra
k_epi:""")
    stamp("b3")
    D0, D1, BM = 76, 80, 84
    for s_ in range(4):
        if s_ == 3:
            for T in range(2):
                for h in range(2):
                    g(f"ds_read_b64_tr_b16 {vr(VFQ[(3,T)]+2*h,2)}, v{vWv if T == 0 else vT1} offset:{3*8192 + h*1024}")
        g(f"ds_read_b128 {vr(BA+4*s_,4)}, v{vAg} offset:{AGG+s_*64}")
    for s_ in range(4):
        g(f"s_waitcnt lgkmcnt({[7, 6, 5, 0][s_]})")
        for T in range(2):
            d = D0 if T == 0 else D1
            cc = "0" if s_ == 0 else vr(d, 4)
            g(f"v_mfma_f32_16x16x32_bf16 {vr(d,4)}, {vr(VFQ[(s_,T)],4)}, {vr(BA+4*s_,4)}, {cc}")
    g(f"""s_nop 6
    v_cvt_pk_bf16_f32 v20, v{D0}, v{D0+1}
    v_cvt_pk_bf16_f32 v21, v{D0+2}, v{D0+3}
    v_cvt_pk_bf16_f32 v22, v{D1}, v{D1+1}
    v_cvt_pk_bf16_f32 v23, v{D1+2}, v{D1+3}
    s_nop 1
    v_permlane16_swap_b32 v20, v22
    v_permlane16_swap_b32 v21, v23
    buffer_store_dwordx4 v[20:23], v{vOut}, {sq(S_OUT)}, 0 offen{o.outflag}""")
    stamp("stored")
    g(f"""s_cmp_lg_u32 s2, {NB-1}
    s_cbranch_scc1 k_fin
    s_cmp_lg_u32 s{sW}, 15
    s_cbranch_scc1 k_fin
    s_mov_b32 s{sT+2}, {o.spin}
    s_waitcnt vmcnt(1)
k_ep:
    v_readfirstlane_b32 s{sT}, v{vGA}
    s_cmp_ge_u32 s{sT}, {4*(NB-NC)}
    s_cbranch_scc1 k_ep2
    s_sub_u32 s{sT+2}, s{sT+2}, 1
    s_cbranch_scc1 k_ep2
    global_load_dword v{vGA}, v{vLA}, {sp(pDBG)}{SC}
    s_waitcnt vmcnt(0)
    s_branch k_ep
k_ep2:
    v_mov_b32 v{vGA}, s{sTag}
    s_mov_b64 exec, 1
    global_store_dword v{vLA}, v{vGA}, {sp(pWS)} offset:{WS_EPOCH}
    s_mov_b64 exec, -1
k_fin:""")
    if o.amp:
        g(f"""s_cmp_lg_u32 s2, {o.ampwg}
        s_cbranch_scc1 k_end
        s_cmp_lg_u32 s{sW}, {o.stw}
        s_cbranch_scc1 k_end
        s_memrealtime s[60:61]
        s_waitcnt lgkmcnt(0)
        s_sub_u32 s62, s{ST0+2}, s{ST0}
        s_mul_i32 s62, s62, {o.amp}
        s_min_u32 s62, s62, 100000
k_amp:
        s_memrealtime s[64:65]
        s_waitcnt lgkmcnt(0)
        s_sub_u32 s63, s64, s60
        s_cmp_lt_u32 s63, s62
        s_cbranch_scc1 k_amp
        s_endpgm""")
    if o.stamps:
        g("s_waitcnt vmcnt(0)")
        stamp("end")
        g("s_waitcnt lgkmcnt(0)")
        l = g.lab("st")
        g(f"""v_cmp_eq_u32 vcc, {o.stw*64}, v0
        s_and_saveexec_b64 s[52:53], vcc
        s_cbranch_execz {l}
        s_add_u32 s54, s{pWS}, {WS_STAMP}
        s_addc_u32 s55, s{pWS+1}, 0
        s_mul_i32 s56, s2, 64
        v_mov_b32 v1, s56""")
        for i in range(8):
            g(f"v_mov_b32 v2, s{ST0+2*i}\nv_mov_b32 v3, s{ST0+2*i+1}\nglobal_store_dwordx2 v1, v[2:3], s[54:55] offset:{8*i}\ns_nop 1")
        g(f"s_waitcnt vmcnt(0)\n{l}:")
    g("k_end:\ns_endpgm")
    def reduce_scatter():
        for k in range(4):
            g(f"v_add_f32_dpp v{TT+k}, v{AC+k}, v{AC+k} row_ror:8 row_mask:0xf bank_mask:0x3")
        for k in range(4):
            g(f"v_add_f32_dpp v{TT+k}, v{AC+4+k}, v{AC+4+k} row_ror:8 row_mask:0xf bank_mask:0xc")
        g(f"v_add_u32 v{vT1}, s{sN}, v{vFL}")
        for k in range(2):
            g(f"v_add_f32_dpp v{TT+4+k}, v{TT+k}, v{TT+k} row_shl:4 row_mask:0xf bank_mask:0x5")
        for k in range(2):
            g(f"v_add_f32_dpp v{TT+4+k}, v{TT+2+k}, v{TT+2+k} row_shr:4 row_mask:0xf bank_mask:0xa")
    for lf, lb, cn, lane in flush_sites:
        if o.inl:
            ls = g.lab("fs")
            g(f"""{lf}:
            v_readlane_b32 s{sN}, v{cn}, {lane}
            s_or_b32 s{sT}, s{sRound}, s{sFirst}
            s_cbranch_scc1 {ls}
            s_mulk_i32 s{sN}, 68""")
            reduce_scatter()
            for k in range(4): g(f"v_mov_b32 v{AC+k}, 0")
            g(f"v_cvt_pk_bf16_f32 v{TT+4}, v{TT+4}, v{TT+5}")
            for k in range(4, 8): g(f"v_mov_b32 v{AC+k}, 0")
            g(f"ds_write_b32 v{vT1}, v{TT+4} offset:{AGG}")
            g(f"""s_branch {lb}
            {ls}:
            s_call_b64 {sp(sRet)}, k_flush
            s_branch {lb}""")
        else:
            g(f"""{lf}:
            v_readlane_b32 s{sN}, v{cn}, {lane}
            s_call_b64 {sp(sRet)}, k_flush
            s_branch {lb}""")
    g(f"k_flush:\ns_nop 0\ns_mulk_i32 s{sN}, 68")
    reduce_scatter()
    g(f"""s_or_b32 s{sT}, s{sRound}, s{sFirst}
    s_cbranch_scc1 k_flush2
    v_cvt_pk_bf16_f32 v{TT+4}, v{TT+4}, v{TT+5}
    ds_write_b32 v{vT1}, v{TT+4} offset:{AGG}
k_flush4:""")
    for k in range(8): g(f"v_mov_b32 v{AC+k}, 0")
    g(f"""s_setpc_b64 {sp(sRet)}
k_flush2:
    s_cmp_lg_u32 s{sFirst}, 0
    s_cbranch_scc1 k_flush5
    v_lshlrev_b32 v{vT1}, 1, v{vT1}
    v_add_u32 v{vT1}, {AGF}, v{vT1}
    ds_read_b64 {vr(TT,2)}, v{vT1}
    s_waitcnt lgkmcnt(0)
    v_add_f32 v{TT+4}, v{TT+4}, v{TT}
    v_add_f32 v{TT+5}, v{TT+5}, v{TT+1}
    ds_write_b64 v{vT1}, {vr(TT+4,2)}
    s_branch k_flush4
k_flush5:
    s_lshl_b32 s{sT}, s{sW}, 9
    s_add_u32 s{sT}, s{sT}, {EXTRA}
    v_lshl_add_u32 v{vT1}, v{vFL}, 1, s{sT}
    s_lshl_b32 s{sT}, s{sW}, 2
    v_mov_b32 v{TT}, s{sT}
    ds_write_b64 v{vT1}, {vr(TT+4,2)}
    ds_write_b32 v{TT}, v{vFour} offset:{EXF}
    s_mov_b32 s{sFirst}, 0
    s_branch k_flush4""")
    for le, lr in ev_sites:
        g(f"{le}:\ns_call_b64 {sp(sRet)}, k_event\ns_branch {lr}")
    g("k_event:")
    for i, e in enumerate(sorted(prio_ev, reverse=True)):
        l = g.lab("pe")
        g(f"s_cmp_lg_u32 s{sRem}, {e}\ns_cbranch_scc1 {l}\ns_setprio {2-i}\n{l}:")
    for r in range(DP - 2 if o.la else DP - 1, 1, -1):
        l = g.lab("we")
        g(f"s_cmp_lg_u32 s{sRem}, {r}\ns_cbranch_scc1 {l}\ns_waitcnt vmcnt({4*(r-1)})\n{l}:")
    g(f"""s_cmp_lg_u32 s{sRem}, 1
    s_cbranch_scc1 k_ev1
k_ev2:
    s_lshl_b32 s{sT}, s{sW}, 2
    v_mov_b32 v{vT0}, s{sT}
    s_lshl_b32 s{sT}, s{sW}, 9
    s_add_u32 s{sT}, s{sT}, {EXTRA+512}
    v_lshl_add_u32 v{vT1}, v{vFL}, 1, s{sT}
    ds_read_b32 v{Ee+2}, v{vT0} offset:{EXF+4}
    ds_read_b64 {vr(Ee,2)}, v{vT1}
    s_waitcnt vmcnt(0) lgkmcnt(2)
k_ev1:
    s_setpc_b64 {sp(sRet)}
k_tw2:
    s_call_b64 {sp(sRet)}, k_ev2
    s_waitcnt lgkmcnt(0)
    s_branch k_tw
k_zero:
    s_call_b64 {sp(sRet)}, k_prep
    s_branch k_done
k_prep:
    s_lshr_b32 s{sT}, s{sW}, 2
    s_lshl_b32 s{sT+1}, s{sT}, 2
    v_lshrrev_b32 v{vWv}, 2, v2
    v_bfe_u32 v{TT}, v0, 1, 1
    v_add_u32 v{TT}, s{sT+1}, v{TT}
    v_and_b32 v{TT+1}, 1, v3
    v_lshl_add_u32 v{TT+2}, v{TT+1}, 2, v{vWv}
    v_lshlrev_b32 v{TT+2}, 1, v{TT+2}
    v_xor_b32 v{TT}, v{TT}, v{TT+2}
    v_lshl_add_u32 v{vWv}, v3, 3, v{vWv}
    v_lshlrev_b32 v{vWv}, 8, v{vWv}
    v_lshl_add_u32 v{vWv}, v{TT}, 4, v{vWv}
    v_and_b32 v{TT}, 1, v0
    v_lshl_add_u32 v{vWv}, v{TT}, 3, v{vWv}
    v_add_u32 v{vWv}, {WV}, v{vWv}
    v_xor_b32 v{TT}, 32, v{vWv}""")
    for s_ in range(3):
        for T in range(2):
            for h in range(2):
                g(f"ds_read_b64_tr_b16 {vr(VFQ[(s_,T)]+2*h,2)}, v{vWv if T == 0 else TT} offset:{s_*8192 + h*1024}")
    g(f"""s_and_b32 s{sT+2}, s{sW}, 3
    s_mul_i32 s{sT+1}, s{sT+2}, {16*272}
    v_mul_u32_u24 v{vAg}, 272, v2
    v_lshl_add_u32 v{vAg}, v3, 4, v{vAg}
    v_add_u32 v{vAg}, s{sT+1}, v{vAg}
    s_lshl_b32 s{sT+2}, s{sT+2}, 12
    s_lshl_b32 s{sT}, s{sT}, 6
    s_add_u32 s{sT}, s{sT}, s{sT+2}
    v_lshlrev_b32 v{vOut}, 8, v2
    v_lshl_add_u32 v{vOut}, v{TT+1}, 5, v{vOut}
    v_lshrrev_b32 v{TT+2}, 1, v3
    v_lshl_add_u32 v{vOut}, v{TT+2}, 4, v{vOut}
    v_add_u32 v{vOut}, s{sT}, v{vOut}
    s_waitcnt lgkmcnt(0)
    s_setpc_b64 {sp(sRet)}""")
    g(f"k_pto:\ns_mov_b64 exec, -1\ns_waitcnt vmcnt(0)\ns_branch k_polled")
    S_OV = 60
    def build_ovf(d):
        g(f"""s_add_u32 s{d}, s{pWS}, {WS_OVF}
        s_addc_u32 s{d+1}, s{pWS+1}, 0
        s_mov_b32 s{d+2}, {(WS_OVFCNT - WS_OVF) + 4096}
        s_mov_b32 s{d+3}, 0x20000""")
    g("k_slow:")
    build_ovf(S_OV)
    g(f"""s_mov_b32 s{sG}, 0xff00
    v_mov_b32 v{vT0}, {OVN}""")
    for i in range(8):
        l = g.lab("ov")
        g(f"""s_mov_b64 exec, {sp(sVal)}
        v_cmp_gt_u32 vcc, {CAP*4}, v{Rk+i}
        s_and_b64 exec, {sp(sVal)}, vcc
        ds_write_b32 v{Tm+i}, v{Ss+i}
        s_andn2_b64 exec, {sp(sVal)}, vcc
        s_cbranch_execz {l}
        ds_add_rtn_u32 v{TT+1}, v{vT0}, v{vFour}
        v_lshlrev_b32 v{TT}, 6, v{B4+i}
        v_bfi_b32 v{TT}, s{sG}, v{TT}, v{Ss+i}
        s_waitcnt lgkmcnt(0)
        buffer_store_dword v{TT}, v{TT+1}, {sq(S_OV)}, s{sN} offen{SC}
        {l}:""")
    g(f"""s_mov_b64 exec, -1
    s_waitcnt vmcnt(0)
    s_branch k_binned""")
    g(f"""k_flag:
    s_waitcnt lgkmcnt(0)""")
    lsync(SRTC, 64)
    build_ovf(S_OV)
    g(f"""v_cmp_gt_u32 vcc, {NB}, v0
    s_mov_b64 exec, vcc
    v_lshlrev_b32 v{TT}, 2, v0
    ds_read_b32 v{TT+1}, v{TT} offset:{PCNT}
    v_mul_u32_u24 v{TT}, {IST}, v0
    v_add_u32 v{TT}, {IMG}, v{TT}
    v_mov_b32 v{TT+2}, 2
    s_waitcnt lgkmcnt(0)
    v_cmp_lt_u32 vcc, {CAP*4}, v{TT+1}
    s_and_b64 exec, exec, vcc
    ds_or_b32 v{TT}, v{TT+2}
    s_mov_b64 exec, -1
    s_lshl_b32 s{sT+4}, s2, 2
    s_add_u32 s{sT+4}, s{sT+4}, {WS_OVFCNT - WS_OVF}
    v_mov_b32 v{TT}, 0
    buffer_store_dword v{Tm}, v{TT}, {sq(S_OV)}, s{sT+4} offen{SC}
    s_waitcnt vmcnt(0) lgkmcnt(0)""")
    lsync(SRTC, 96)
    img_reads()
    g("s_branch k_copy")
    g("k_mark:")
    for h in range(2):
        e = 4 + 4 * h
        g(f"""v_and_b32 v{vT0}, 2, v{e}
        v_cmp_ne_u32 vcc, 0, v{vT0}
        s_and_b64 exec, vcc, {sp(sVal+8*h)}
        v_and_b32 v{e}, -3, v{e}
        v_lshrrev_b32 v{vT0}, 3, v0
        v_add_u32 v{vT0}, {64*h}, v{vT0}
        v_lshrrev_b32 v{vT1}, 5, v{vT0}
        v_lshlrev_b32 v{vT1}, 2, v{vT1}
        v_and_b32 v{vT0}, 31, v{vT0}
        v_lshlrev_b32 v{vT0}, v{vT0}, 1
        ds_or_b32 v{vT1}, v{vT0} offset:{OVM}
        s_mov_b64 exec, -1""")
    g("s_branch k_round")
    sMap = 52
    g(f"""k_slowmode:
    s_cmp_lg_u32 s{sRound}, 0
    s_cbranch_scc1 k_sm1
    s_mov_b32 s{sRound}, 1
    v_add_u32 v{TT}, {AGF}, v1
    ds_write_b128 v{TT}, {vr(AC,4)}
    ds_write_b128 v{TT}, {vr(AC,4)} offset:16384
    s_branch k_sm1
k_extra:
    v_mov_b32 v{vT0}, 0
    ds_read_b128 {vr(BM,4)}, v{vT0} offset:{OVM}
    s_waitcnt lgkmcnt(0)
    v_readfirstlane_b32 s{sMap}, v{BM}
    v_readfirstlane_b32 s{sMap+1}, v{BM+1}
    v_readfirstlane_b32 s{sMap+2}, v{BM+2}
    v_readfirstlane_b32 s{sMap+3}, v{BM+3}
    s_barrier
    s_or_b64 {sp(sMap+4)}, {sp(sMap)}, {sp(sMap+2)}
    s_cbranch_scc1 k_x0
    v_lshrrev_b32 v{TT}, 4, v0
    v_and_b32 v{TT+1}, 0xf0, v1
    v_mul_u32_u24 v{TT}, 272, v{TT}
    v_add_u32 v{TT}, v{TT}, v{TT+1}
    v_lshlrev_b32 v{TT+1}, 1, v{TT}
    v_add_u32 v{TT+1}, {AGF}, v{TT+1}
    v_cmp_gt_u32 vcc, {NPB*16}, v0
    s_mov_b64 exec, vcc
    ds_read_b128 v[44:47], v{TT+1}
    ds_read_b128 v[48:51], v{TT+1} offset:16
    s_waitcnt lgkmcnt(0)
    v_cvt_pk_bf16_f32 v44, v44, v45
    v_cvt_pk_bf16_f32 v45, v46, v47
    v_cvt_pk_bf16_f32 v46, v48, v49
    v_cvt_pk_bf16_f32 v47, v50, v51
    ds_write_b128 v{TT}, v[44:47] offset:{AGG}
    s_mov_b64 exec, -1
    s_waitcnt lgkmcnt(0)
    s_barrier
    s_branch k_epi
k_x0:
    s_cmp_lg_u64 {sp(sMap)}, 0
    s_cbranch_scc1 k_x1
    s_ff1_i32_b64 s{sT}, {sp(sMap+2)}
    s_bitset0_b64 {sp(sMap+2)}, s{sT}
    s_add_u32 s{sT}, s{sT}, 64
    s_branch k_x2
k_x1:
    s_ff1_i32_b64 s{sT}, {sp(sMap)}
    s_bitset0_b64 {sp(sMap)}, s{sT}
k_x2:""")
    build_ovf(S_CST)
    g(f"""s_lshl_b32 s{sG}, s{sT}, 2
    s_add_u32 s{sG}, s{sG}, {WS_OVFCNT - WS_OVF}
    v_mov_b32 v{vT0}, 0
    buffer_load_dword v{vT1}, v{vT0}, {sq(S_CST)}, s{sG} offen{SC}
    s_mul_i32 s{sG}, s{sT}, {CE*4}
    buffer_load_dwordx4 v[4:7], v1, {sq(S_CST)}, s{sG} offen{SC}
    s_add_u32 s{sG}, s{sG}, 8192
    buffer_load_dwordx4 v[8:11], v1, {sq(S_CST)}, s{sG} offen{SC}""")
    for i in range(4): g(f"v_mov_b32 v{12+i}, {PADL}")
    g(f"""ds_write_b128 v1, v[12:15] offset:{LIST}
    s_cmp_lg_u32 s{sW}, 0
    s_cbranch_scc1 k_x3
    ds_write_b128 v1, v[12:15] offset:{LIST+16384}
    v_lshrrev_b32 v{TT}, 2, v1
    ds_write_b32 v{TT}, v{vT0} offset:{CNT2}
    v_and_b32 v{TT}, 0x7c, v{TT}
    ds_write_b32 v{TT}, v{vT0} offset:{EXF}
    v_mov_b32 v16, s{sMap}
    v_mov_b32 v17, s{sMap+1}
    v_mov_b32 v18, s{sMap+2}
    v_mov_b32 v19, s{sMap+3}
    ds_write_b128 v{vT0}, v[16:19] offset:{OVM}
k_x3:""")
    zero_main()
    g("s_waitcnt vmcnt(0)")
    for i in range(8):
        g(f"""v_bfe_u32 v{TT}, v{4+i}, 8, 8
        v_cmp_eq_u32 vcc, s2, v{TT}
        v_add_u32 v{TT+1}, {(i&3)*4 + (i>>2)*8192}, v1
        v_cmp_lt_u32 {sp(sVal+2*i)}, v{TT+1}, v{vT1}
        s_and_b64 {sp(sVal+2*i)}, {sp(sVal+2*i)}, vcc""")
    g(f"""s_waitcnt lgkmcnt(0)
    s_barrier
    s_cmp_lt_u32 s{sW}, 8
    s_cbranch_scc1 k_round
    s_branch k_b1""")
    return NV

def main():
    ap = argparse.ArgumentParser()
    ap.add_argument("-o", default="cdna_kernels/" + KN + ".s")
    ap.add_argument("--stamps", default="")
    ap.add_argument("--cyc", action="store_true")
    ap.add_argument("--stw", type=int, default=0)
    ap.add_argument("--pfa", type=int, default=0)
    ap.add_argument("--pfb", type=int, default=0)
    ap.add_argument("--depth", type=int, default=2)
    ap.add_argument("--prio", default="5,3,1")
    ap.add_argument("--gate", type=int, default=2)
    ap.add_argument("--abl", default="")
    ap.add_argument("--gateb", type=int, default=0)
    ap.add_argument("--inl", type=int, default=1)
    ap.add_argument("--tl", type=int, default=0)
    ap.add_argument("--rr", type=int, default=0)
    ap.add_argument("--prof", type=int, default=0)
    ap.add_argument("--la", type=int, default=0)
    ap.add_argument("--la1", type=int, default=2)
    ap.add_argument("--lock", type=int, default=0)
    ap.add_argument("--amp", type=int, default=0)
    ap.add_argument("--ampwg", type=int, default=3)
    ap.add_argument("--outflag", default="nt")
    ap.add_argument("--spin", type=int, default=200000)
    o = ap.parse_args()
    if o.outflag: o.outflag = " " + o.outflag
    g = G()
    nv = gen(g, o)
    head = f"""; featgraph: fused kernel. producers bucket edges by dst into tagged cells (d_ws), every workgroup then
; @launch grid=({NB},1,1) block=(1024,1,1) lds={LDS}
.amdgcn_target "amdgcn-amd-amdhsa--gfx950"
.text
"""
    acc = (nv + 3) // 4 * 4
    tail = f""".section .rodata,"a"
.p2align 6
.amdhsa_kernel {KN}_kernel
  .amdhsa_next_free_vgpr {nv}
  .amdhsa_next_free_sgpr 102
  .amdhsa_accum_offset {acc}
  .amdhsa_group_segment_fixed_size 0
  .amdhsa_kernarg_size 64
  .amdhsa_user_sgpr_count 2
  .amdhsa_user_sgpr_kernarg_segment_ptr 1
  .amdhsa_system_sgpr_workgroup_id_x 1
.end_amdhsa_kernel
"""
    open(o.o, "w").write(head + g.text() + tail)
main()
```

```python
import sys, argparse

KN = "standalone__kernel_systems_refs_featgraph__graph"
N, E, D = 12500, 400000, 128
NB, NPB = 250, 50
NC, CE = 125, 3200
CAP = 32
WS_EPOCH = 0
WS_CELLS = 4096
CELLS_BYTES = NB * NC * 128
WS_OVF = 4 << 20
WS_OVFCNT = 6 << 20
WS_STAMP = 8 << 20
PADW = 0x3FFF0000
PADL = 0x3FFF00FC
TAGMASK = 0xC000FF00
BIG = 0x400000
IST = 144

CNT2, OVM, AUXC, SRTC, POLC, EXF, PCNT = 0, 256, 272, 276, 280, 320, 512
OVN = PCNT + 1000
AGG = PCNT + 1024
QT = AGG + 50 * 272
LIST = (QT + 50 * 272 + 255) // 256 * 256
WQ = LIST + 17408
WV = WQ + 32768
IMG = WV + 32768
EXTRA = IMG + 16384
AGF = WQ
LDS = IMG + 256 * IST
assert LDS <= 163840 and LIST + 16384 < 65536 and WQ % 256 == 0

class G:
    def __init__(self):
        self.L = []; self.uid = 0
    def __call__(self, s=""):
        for ln in s.split("\n"):
            ln = ln.strip()
            if not ln: continue
            if ln.endswith(":") or ln.startswith("."): self.L.append(ln)
            else: self.L.append("    " + ln)
    def lab(self, p="L"):
        self.uid += 1
        return f"{p}_{self.uid}"
    def text(self): return "\n".join(self.L) + "\n"

def vr(a, n=1): return f"v{a}" if n == 1 else f"v[{a}:{a+n-1}]"
def sp(a): return f"s[{a}:{a+1}]"
def sq(a): return f"s[{a}:{a+3}]"

ST0 = 86
def gen(g, o):
    DP = o.depth
    sel = o.stamps.split(",") if o.stamps else []
    def stamp(nm):
        if nm in sel:
            i = sel.index(nm)
            g(f"{'s_memtime' if o.cyc else 's_memrealtime'} s[{ST0+2*i}:{ST0+2*i+1}]")
        if nm + "C" in sel:
            i = sel.index(nm + "C")
            g(f"s_memtime s[{ST0+2*i}:{ST0+2*i+1}]")
    pX, pSRC, pDST, pWQ, pWV, pOUT, pDBG, pWS = 4, 6, 8, 10, 12, 14, 16, 18
    S_X, S_CELL, S_CST, S_OUT, S_XI = 20, 24, 28, 32, 72
    sW, sTag, sG, sRem, sFl, sN, sRound = 36, 37, 38, 39, 40, 42, 43
    sM, sVal, sRet, sSc, s68 = 44, 52, 68, 70, 71
    sFirst, sLk, sLim, sT = 76, 77, 78, 80
    sEv = 0
    X = [12 + 16 * p for p in range(DP)]
    b = 12 + 16 * DP
    A = b; Ee = b + 16; CN = [b + 24 + 2 * p for p in range(DP)]
    b = (b + 24 + 2 * DP + 3) // 4 * 4
    AL = b; AC = b + 4; AN = b + 12
    b += 20
    b = max(b, 92)
    vLP, vRW, vRR, vFL, vLA, vGA, vQ, vT0, vT1, vFour = range(b, b + 10)
    TT = b + 10
    NV = TT + 6
    assert NV == 108 and DP == 2
    NV = 128
    VFQ = {(0,0):8, (0,1):108, (1,0):112, (1,1):116, (2,0):120, (2,1):124, (3,0):12, (3,1):16}
    vAg, vOut, vWv = 4, 5, 6
    SC = " sc1"
    sC = 3
    sCO = 79
    isprod = f"s_cmp_lt_u32 s{sC}, {NC}"
    PS = [int(ch) for ch in o.pset]
    tbl = sum(((PS.index(r) if r in PS else 15) << (4 * r)) for r in range(8))
    g(f""".p2align 8
.globl {KN}_kernel
.type {KN}_kernel,@function
{KN}_kernel:
    s_cmp_ge_u32 s2, {NB}
    s_cbranch_scc1 k_end
    s_load_dwordx16 s[4:19], s[0:1], 0
    v_lshlrev_b32 v1, 4, v0
    v_lshrrev_b32 v{vT0}, 6, v0
    v_and_b32 v2, 15, v0
    v_readfirstlane_b32 s{sW}, v{vT0}
    v_bfe_u32 v3, v0, 4, 2
    s_mul_i32 s{sN}, s2, {NPB*256}
    s_and_b32 s{sT}, s2, 7
    s_lshl_b32 s{sT}, s{sT}, 2
    s_lshr_b32 s{sT}, {tbl}, s{sT}
    s_and_b32 s{sT}, s{sT}, 15
    s_lshr_b32 s{sC}, s2, 3
    s_mulk_i32 s{sC}, {len(PS)}
    s_add_u32 s{sC}, s{sC}, s{sT}
    s_cmp_eq_u32 s{sT}, 15
    s_cselect_b32 s{sC}, 255, s{sC}
    s_mul_i32 s{sCO}, s{sC}, {CE*4}""")
    if o.stamps:
        for i in range(8): g(f"s_mov_b64 s[{ST0+2*i}:{ST0+2*i+1}], 0")
    Dd, Ss, B4, Rk, Tm = 12, 20, 28, 36, 44
    g(f"""v_cmp_gt_u32 vcc, {CE//8}, v0
    v_add_u32 v{vT1}, s{sCO}, v1
    v_add_u32 v{vQ}, {CE*2}, v{vT1}
    s_mov_b64 {sp(sVal)}, vcc
    s_waitcnt lgkmcnt(0)""")
    stamp("start")
    def w_loads(ptr, dst):
        g(f"""s_sub_u32 s{sT}, s{sW}, 8
        s_lshl_b32 s{sT+1}, s{sT}, 12
        v_lshlrev_b32 v{vLA}, 1, v3
        v_xor_b32 v{vLA}, v{vLA}, v2
        v_lshlrev_b32 v{vLA}, 4, v{vLA}
        v_lshl_add_u32 v{vLA}, v3, 8, v{vLA}
        v_add_u32 v{vLA}, s{sT+1}, v{vLA}
        s_add_u32 m0, s{sT+1}, {dst}
        v_xor_b32 v{vGA}, 0x80, v{vLA}""")
        for k in range(4): g(f"global_load_lds_dwordx4 v{vLA if k < 2 else vGA}, {sp(ptr)} offset:{1024*k}")
    def x_loads():
        g(f"""s_sub_u32 s{sT}, s{sW}, 8
        s_and_b32 s{sT+2}, s{sT}, 1
        s_lshl_b32 s{sT+2}, s{sT+2}, 3
        v_add_u32 v{vT0}, s{sT+2}, v3
        v_xor_b32 v{vT0}, v{vT0}, v2
        v_lshlrev_b32 v{vT0}, 4, v{vT0}
        v_lshl_add_u32 v{vT0}, v3, 8, v{vT0}
        v_xor_b32 v{vT1}, 64, v{vT0}
        s_lshl_b32 s{sT+2}, s{sT}, 11
        s_add_u32 m0, s{sT+2}, {LIST}
        s_add_u32 s{sT+2}, s{sT+2}, s{sN}
        buffer_load_dwordx4 v{vT0}, {sq(S_X)}, s{sT+2} offen{" nt" if o.xnt else ""} lds
        buffer_load_dwordx4 v{vT1}, {sq(S_X)}, s{sT+2} offen offset:1024{" nt" if o.xnt else ""} lds""")
    def prefetch(nw, idx_first, base):
        g(f"""s_sub_u32 s{sT}, s{sW}, 8
        s_cmp_ge_u32 s{sT}, {nw}
        s_cselect_b32 s{sT+1}, {BIG}, 0
        s_lshl_b32 s{sT}, s{sT}, 13
        s_add_u32 s{sT}, s{sT}, s{sT+1}
        s_add_u32 s{sT}, s{sT}, {base}
        s_lshr_b32 s{sT+1}, s2, 3
        s_sub_u32 s{sT+1}, 31, s{sT+1}
        s_mul_i32 s{sT+1}, s{sT+1}, {nw*8192}
        s_add_u32 s{sT}, s{sT}, s{sT+1}
        v_and_b32 v{vT0}, 63, v0
        v_lshlrev_b32 v{vT0}, 7, v{vT0}
        buffer_load_dword v{TT+5}, v{vT0}, {sq(S_X)}, s{sT} offen""")
    def lsync(addr, target):
        l = g.lab("ss")
        g(f"""v_mov_b32 v{TT+3}, 0
        s_mov_b64 exec, 1
        ds_add_u32 v{TT+3}, v{vFour} offset:{addr}
        s_mov_b64 exec, -1
        {l}:
        ds_read_b32 v{TT+4}, v{TT+3} offset:{addr}
        s_waitcnt lgkmcnt(0)
        v_cmp_gt_u32 vcc, {target}, v{TT+4}
        s_cbranch_vccnz {l}""")
    g(f"""{isprod}
    s_cbranch_scc0 k_noedge
    s_mov_b64 exec, {sp(sVal)}
    s_cbranch_execz k_noedge
    global_load_dwordx4 {vr(Dd,4)}, v{vT1}, {sp(pDST)} nt
    global_load_dwordx4 {vr(Dd+4,4)}, v{vQ}, {sp(pDST)} nt
k_noedge:
    s_mov_b64 exec, -1
    s_cmp_lt_u32 s{sW}, 14
    s_cbranch_scc1 k_i0""")
    for i in range(4): g(f"v_mov_b32 v{AN+i}, 0")
    g(f"""v_and_b32 v{vT0}, 0x7ff, v1
    ds_write_b128 v{vT0}, {vr(AN,4)}
    s_waitcnt lgkmcnt(0)
k_i0:
    s_load_dword s{sTag}, {sp(pWS)}, {WS_EPOCH}
    s_mov_b32 s{S_X}, s{pX}
    s_mov_b32 s{S_X+1}, s{pX+1}
    s_mov_b32 s{S_X+2}, {N*256}
    s_mov_b32 s{S_X+3}, 0x20000
    v_mov_b32 v{vFour}, 4
    s_barrier""")
    stamp("b0")
    def srds():
        g(f"""s_mov_b32 s{S_XI}, s{pX}
        s_or_b32 s{S_XI+1}, s{pX+1}, 0x1000000
        s_movk_i32 s{S_XI+2}, {N}
        s_mov_b32 s{S_XI+3}, 0x20000
        s_add_u32 s{S_OUT}, s{pOUT}, s{sN}
        s_addc_u32 s{S_OUT+1}, s{pOUT+1}, 0
        s_mov_b32 s{S_OUT+2}, {NPB*256}
        s_mov_b32 s{S_OUT+3}, 0x20000
        v_mov_b32 v{vOut}, -1""")
    def tagcalc():
        g(f"""s_add_u32 s{sTag}, s{sTag}, 0x100
        s_and_b32 s{sTag}, s{sTag}, 0xff00""")
    g(f"""s_cmp_ge_u32 s{sW}, 8
    s_cbranch_scc1 k_aux0
    s_mul_i32 s{sT}, s2, 16000
    s_add_u32 s{S_CST}, s{pWS}, {WS_CELLS}
    s_addc_u32 s{S_CST+1}, s{pWS+1}, 0
    s_mov_b32 s{S_CST+2}, {CELLS_BYTES}
    s_mov_b32 s{S_CST+3}, 0x20000
    s_add_u32 s{S_CELL}, s{S_CST}, s{sT}
    s_addc_u32 s{S_CELL+1}, s{S_CST+1}, 0
    s_mov_b32 s{S_CELL+2}, 16000
    s_mov_b32 s{S_CELL+3}, 0x20000
    {isprod}
    s_cbranch_scc0 k_cons
    s_mov_b64 exec, {sp(sVal)}
    s_cbranch_execz k_ns
    global_load_dwordx4 {vr(Ss,4)}, v{vT1}, {sp(pSRC)} nt
    global_load_dwordx4 {vr(Ss+4,4)}, v{vQ}, {sp(pSRC)} nt
k_ns:
    s_mov_b64 exec, -1
    v_lshrrev_b32 v{vT0}, 3, v0
    v_mul_u32_u24 v{vQ}, {IST}, v{vT0}
    v_and_b32 v{vT1}, 0x70, v1
    v_add_u32 v{vQ}, v{vQ}, v{vT1}
    v_add_u32 v{vQ}, {IMG}, v{vQ}
    s_movk_i32 s{sT+4}, 16000
    v_mad_u32_u24 v{vT1}, v{vT0}, s{sT+4}, v{vT1}
    s_mov_b32 s{sT}, 85899346
    s_movk_i32 s{sT+1}, -50
    s_mov_b32 s{sT+3}, {IMG}
    v_mov_b32 v{TT}, {IST//4}
    s_waitcnt lgkmcnt(0)""")
    tagcalc()
    g(f"s_or_b32 s{sT+2}, s{sTag}, {PADW}")
    for i in range(4): g(f"v_mov_b32 v{AN+i}, s{sT+2}")
    for k in range(4): g(f"ds_write_b128 v{vQ}, {vr(AN,4)} offset:{64*k*IST}")
    g("s_waitcnt lgkmcnt(0)")
    lsync(SRTC, 32)
    stamp("ba")
    g(f"""s_mov_b64 exec, {sp(sVal)}
    s_cbranch_execz k_binned
    s_waitcnt vmcnt(2)""")
    stamp("edges")
    for i in range(8):
        g(f"""v_mul_hi_u32 v{B4+i}, v{Dd+i}, s{sT}
        v_lshlrev_b32 v{B4+i}, 2, v{B4+i}
        ds_add_rtn_u32 v{Rk+i}, v{B4+i}, v{vFour} offset:{PCNT}""")
    g("s_waitcnt vmcnt(0)")
    for i in range(8):
        g(f"""v_lshl_add_u32 v{Ss+i}, v{Ss+i}, 14, v{Dd+i}
        v_lshl_add_u32 v{Ss+i}, v{Ss+i}, 2, s{sTag}
        v_mad_i32_i24 v{Ss+i}, v{B4+i}, s{sT+1}, v{Ss+i}
        v_mad_u32_u24 v{Tm+i}, v{B4+i}, v{TT}, s{sT+3}""")
    g("s_waitcnt lgkmcnt(0)")
    g(f"""v_max3_u32 v{vT0}, v{Rk}, v{Rk+1}, v{Rk+2}
    v_max3_u32 v{vT0}, v{vT0}, v{Rk+3}, v{Rk+4}
    v_max3_u32 v{vT0}, v{vT0}, v{Rk+5}, v{Rk+6}
    v_max_u32 v{vT0}, v{vT0}, v{Rk+7}
    v_cmp_le_u32 vcc, {CAP*4}, v{vT0}""")
    for i in range(8): g(f"v_add_u32 v{Tm+i}, v{Rk+i}, v{Tm+i}")
    g("s_cbranch_vccnz k_slow")
    for i in range(8): g(f"ds_write_b32 v{Tm+i}, v{Ss+i}")
    g(f"""k_binned:
    s_mov_b64 exec, -1
    v_mov_b32 v{vT0}, {OVN}
    s_lshl_b32 s{sT}, s{sC}, 7
    s_add_u32 s{sT+1}, s{sT}, {64*16000}
    s_add_u32 s{sT+2}, s{sT}, {128*16000}
    s_add_u32 s{sT+3}, s{sT}, {192*16000}
    s_waitcnt lgkmcnt(0)""")
    stamp("binned")
    lsync(SRTC, 64)
    stamp("bb")
    def img_reads():
        for k in range(4): g(f"ds_read_b128 {vr(12+4*k,4)}, v{vQ} offset:{64*k*IST}")
    g(f"ds_read_b32 v{Tm}, v{vT0}")
    img_reads()
    g(f"""s_waitcnt lgkmcnt(4)
    v_cmp_ne_u32 vcc, 0, v{Tm}
    s_cbranch_vccnz k_flag
k_copy:""")
    for k in range(4):
        g(f"s_waitcnt lgkmcnt({3-k})\nbuffer_store_dwordx4 {vr(12+4*k,4)}, v{vT1}, {sq(S_CST)}, s{sT+k} offen{SC}")
    stamp("copied")
    if "drained" in sel:
        g("s_waitcnt vmcnt(0)")
        stamp("drained")
    g("s_branch k_sorter")
    g(f"""k_cons:
    s_waitcnt lgkmcnt(0)""")
    tagcalc()
    lsync(SRTC, 32)
    g(f"""s_cmp_lg_u32 s{sW}, 7
    s_cbranch_scc1 k_sorter
    v_mov_b32 v{vT0}, 0
    s_mov_b64 exec, 1
    global_atomic_add v{vT0}, v{vFour}, {sp(pDBG)}
    s_mov_b64 exec, -1
    s_branch k_sorter
k_aux0:""")
    w_loads(pWQ, WQ)
    srds()
    if o.xdelay: g(f"s_sleep {o.xdelay}")
    x_loads()
    npf = 0
    if o.pfa:
        l = g.lab("npa")
        g(f"{isprod}\ns_cbranch_scc1 {l}")
        for k in range(0, o.pfa, 8):
            prefetch(min(8, o.pfa - k), NC, 32 * k * 8192); npf += 1
        g(f"s_waitcnt vmcnt({npf}) lgkmcnt(0)\ns_branch k_aux1\n{l}:")
    g(f"s_waitcnt vmcnt(0) lgkmcnt(0)\nk_aux1:")
    tagcalc()
    if o.auxprio: g(f"s_setprio {o.auxprio}")
    stamp("prebc")
    lsync(AUXC, 32)
    stamp("bc")
    if not o.wvlast: w_loads(pWV, WV)
    g(f"""s_and_b32 s{sT+1}, s{sW}, 3
    s_lshl_b32 s{sT+1}, s{sT+1}, 12
    s_add_u32 s{sT+1}, s{sT+1}, {LIST}
    v_xor_b32 v{vT0}, v3, v2
    v_lshlrev_b32 v{vT0}, 4, v{vT0}
    v_lshl_add_u32 v{vT0}, v2, 8, v{vT0}
    v_add_u32 v{vT0}, s{sT+1}, v{vT0}""")
    for s_ in range(4):
        if s_: g(f"v_xor_b32 v{vT1}, {64*s_}, v{vT0}")
        g(f"ds_read_b128 {vr(12+4*s_,4)}, v{vT1 if s_ else vT0}")
    g(f"""s_bfe_u32 s{sT}, s{sW}, 0x10002
    s_lshl_b32 s{sT+1}, s{sT}, 3
    v_lshrrev_b32 v{vQ}, 2, v2
    v_bfe_u32 v{TT}, v0, 1, 1
    v_add_u32 v{TT}, s{sT+1}, v{TT}
    v_and_b32 v{TT+1}, 1, v3
    v_lshl_add_u32 v{TT+1}, v{TT+1}, 2, v{vQ}
    v_lshlrev_b32 v{TT+1}, 1, v{TT+1}
    v_xor_b32 v{TT}, v{TT}, v{TT+1}
    v_lshl_add_u32 v{vQ}, v3, 3, v{vQ}
    v_lshlrev_b32 v{vQ}, 8, v{vQ}
    v_lshl_add_u32 v{vQ}, v{TT}, 4, v{vQ}
    v_and_b32 v{TT}, 1, v0
    v_lshl_add_u32 v{vQ}, v{TT}, 3, v{vQ}
    v_add_u32 v{vQ}, {WQ}, v{vQ}
    v_xor_b32 v{TT}, 32, v{vQ}
    v_xor_b32 v{TT+1}, 64, v{vQ}
    v_xor_b32 v{TT+2}, 0x60, v{vQ}""")
    WB = [28, 44, 60, 76]
    def trq(T, dst):
        va = vQ if T == 0 else TT + T - 1
        for s_ in range(4):
            for h in range(2):
                g(f"ds_read_b64_tr_b16 {vr(dst+4*s_+2*h,2)}, v{va} offset:{s_*8192 + h*1024}")
    trq(0, WB[0]); trq(1, WB[1])
    g(f"""s_and_b32 s{sT+1}, s{sW}, 3
    s_lshl_b32 s{sT+2}, s{sT+1}, 4
    s_mul_i32 s{sT+1}, s{sT+1}, {16*272}
    s_lshl_b32 s{sT}, s{sT}, 7
    s_add_u32 s{sT}, s{sT}, s{sT+1}
    v_mul_u32_u24 v{vT0}, 272, v2
    v_and_b32 v{vT1}, 1, v3
    v_lshl_add_u32 v{vT0}, v{vT1}, 5, v{vT0}
    v_lshrrev_b32 v{vT1}, 1, v3
    v_lshl_add_u32 v{vT0}, v{vT1}, 4, v{vT0}
    v_add_u32 v{vT0}, s{sT}, v{vT0}
    v_add_u32 v{vT1}, s{sT+2}, v2
    v_cmp_gt_u32 {sp(sVal)}, {NPB}, v{vT1}
    v_mov_b32 v{TT+3}, 0
    s_waitcnt lgkmcnt(0)
    s_mov_b64 exec, 1
    ds_add_u32 v{TT+3}, v{vFour} offset:{AUXC}
    s_mov_b64 exec, -1""")
    trq(2, WB[2]); trq(3, WB[3])
    for jj in range(2):
        if jj == 1: g("s_waitcnt lgkmcnt(1)")
        for s_ in range(4):
            for T in range(2):
                d = 4 + 4 * T
                cc = "0" if s_ == 0 else vr(d, 4)
                g(f"v_mfma_f32_16x16x32_bf16 {vr(d,4)}, {vr(WB[2*jj+T]+4*s_,4)}, {vr(12+4*s_,4)}, {cc}")
        g(f"""s_nop 6
        v_cvt_pk_bf16_f32 v4, v4, v5
        v_cvt_pk_bf16_f32 v5, v6, v7
        v_cvt_pk_bf16_f32 v6, v8, v9
        v_cvt_pk_bf16_f32 v7, v10, v11
        s_nop 1
        v_permlane16_swap_b32 v4, v6
        v_permlane16_swap_b32 v5, v7
        s_mov_b64 exec, {sp(sVal)}
        ds_write_b128 v{vT0}, v[4:7] offset:{QT + jj*64}
        s_mov_b64 exec, -1""")
    for i in range(4): g(f"v_mov_b32 v{8+i}, {PADL}")
    g(f"""v_and_b32 v{vT0}, 0x1fff, v1
k_as2:
    ds_read_b32 v{TT+4}, v{TT+3} offset:{AUXC}
    s_waitcnt lgkmcnt(0)
    v_cmp_gt_u32 vcc, 64, v{TT+4}
    s_cbranch_vccnz k_as2
    ds_write_b128 v{vT0}, v[8:11] offset:{LIST}
    ds_write_b128 v{vT0}, v[8:11] offset:{LIST+8192}
    s_cmp_lg_u32 s{sW}, 8
    s_cbranch_scc1 k_as3
    ds_write_b128 v{vT0}, v[8:11] offset:{LIST+16384}
k_as3:""")
    def consts():
        g(f"""v_and_b32 v{vT0}, 3, v0
        v_lshl_add_u32 v{vLP}, v3, 2, v{vT0}
        v_lshlrev_b32 v{vLP}, 4, v{vLP}
        v_and_b32 v{vT1}, 12, v0
        v_add_u32 v{vFL}, v{vT1}, v{vLP}
        s_lshl_b32 s{sT}, s{sW}, 10
        s_add_u32 s{sT}, s{sT}, {IMG}
        v_bfe_u32 v{vRR}, v0, 3, 1
        v_mul_u32_u24 v{vRR}, 272, v{vRR}
        v_bfe_u32 v{vT1}, v0, 2, 1
        v_lshl_add_u32 v{vRR}, v{vT1}, 7, v{vRR}
        v_lshl_add_u32 v{vRR}, v{vT0}, 5, v{vRR}
        v_add_u32 v{vRR}, s{sT}, v{vRR}
        v_lshl_add_u32 v{vRW}, v{vT0}, 1, v{vRR}
        v_lshl_add_u32 v{vRW}, v3, 3, v{vRW}
        s_mov_b32 s{sM}, 0x000f000f
        s_mov_b32 s{sM+1}, 0x000f000f
        s_lshl_b64 {sp(sM+2)}, {sp(sM)}, 4
        s_lshl_b64 {sp(sM+4)}, {sp(sM)}, 8
        s_lshl_b64 {sp(sM+6)}, {sp(sM)}, 12
        s_mov_b32 s{sSc}, 0xbe0293ee
        s_movk_i32 s{s68}, 68
        s_mov_b32 s{sRound}, 0""")
    def zero_main():
        for i in range(16): g(f"v_mov_b32 v{A+i}, 0")
        for i in range(8): g(f"v_mov_b32 v{AC+i}, 0")
        for t in range(4): g(f"v_mov_b32 v{Ee+2*t+1}, v{vLP}")
    consts()
    zero_main()
    stamp("qdone")
    if o.wvlast: w_loads(pWV, WV)
    if o.wvw == 1: g("s_waitcnt vmcnt(0)")
    stamp("wvi")
    if o.pfc:
        g(f"""v_mov_b32 v{TT+3}, 0
k_pc:
        ds_read_b32 v{TT+4}, v{TT+3} offset:{POLC}
        s_waitcnt lgkmcnt(0)
        v_cmp_gt_u32 vcc, 32, v{TT+4}
        s_cbranch_vccnz k_pc""")
        prefetch(o.pfc, 0, 32 * o.pfa * 8192)
    g("s_branch k_b1")
    g("k_sorter:")
    srds()
    for i in range(4): g(f"v_mov_b32 v{8+i}, 0")
    g(f"""ds_write_b128 v1, v[8:11] offset:{AGG}
    v_cmp_gt_u32 vcc, {(50*272-8192)//16}, v0
    s_mov_b64 exec, vcc
    ds_write_b128 v1, v[8:11] offset:{AGG+8192}
    s_mov_b64 exec, -1""")
    consts()
    zero_main()
    pA, pB = sVal, sVal + 2
    for i in range(4): g(f"v_mov_b32 v{8+i}, -1")
    g(f"""s_mov_b64 {sp(pA)}, -1
    s_movk_i32 s{sT}, {16000-8192}
    v_cmp_gt_u32 {sp(pB)}, s{sT}, v1
    s_movk_i32 s{sT}, 8192
    s_mov_b32 s{sT+1}, {TAGMASK}
    s_mov_b32 s{sT+2}, {o.spin}
    s_mov_b32 s{sLim}, {N << 16}""")
    if o.gate >= 0:
        gm = sum(1 << (8 * int(x)) for x in str(o.gate))
        g(f"""s_mov_b32 exec_lo, {gm & 0xffffffff}
        s_mov_b32 exec_hi, {gm >> 32}
k_gate:
        buffer_load_dword v4, v1, {sq(S_CELL)}, {"s%d" % sT if o.gateb else "0"} offen{SC}
        s_sub_u32 s{sT+2}, s{sT+2}, 1
        s_cbranch_scc1 k_pto
        s_waitcnt vmcnt(0)
        v_xor_b32 v{vT0}, s{sTag}, v4
        v_and_b32 v{vT0}, s{sT+1}, v{vT0}
        v_cmp_ne_u32 vcc, 0, v{vT0}
        s_cbranch_vccnz k_gate""")
        stamp("gated")
    if o.psleep: g(f"s_branch k_poll\nk_polls:\ns_sleep {o.psleep}")
    g(f"""k_poll:
    s_mov_b64 exec, {sp(pA)}
    s_cbranch_execz k_p1
    buffer_load_dwordx4 v[4:7], v1, {sq(S_CELL)}, 0 offen{SC}
k_p1:
    s_mov_b64 exec, {sp(pB)}
    s_cbranch_execz k_p2
    buffer_load_dwordx4 v[8:11], v1, {sq(S_CELL)}, s{sT} offen{SC}
k_p2:
    s_mov_b64 exec, -1
    s_sub_u32 s{sT+2}, s{sT+2}, 1
    s_cbranch_scc1 k_pto
    s_waitcnt vmcnt(0)
    v_bitop3_b32 v{vT0}, v4, v5, s{sTag} bitop3:0x7e
    v_bitop3_b32 v{vT1}, v6, v7, s{sTag} bitop3:0x7e
    v_bitop3_b32 v{TT}, v8, v9, s{sTag} bitop3:0x7e
    v_bitop3_b32 v{TT+1}, v10, v11, s{sTag} bitop3:0x7e
    v_bitop3_b32 v{vT0}, v{vT0}, v{vT1}, s{sT+1} bitop3:0xa8
    v_bitop3_b32 v{TT}, v{TT}, v{TT+1}, s{sT+1} bitop3:0xa8
    v_cmp_ne_u32 {sp(pA)}, 0, v{vT0}
    v_cmp_ne_u32 vcc, 0, v{TT}
    s_and_b64 {sp(pB)}, {sp(pB)}, vcc
    s_or_b64 vcc, {sp(pA)}, {sp(pB)}
    s_cbranch_scc1 k_poll{"s" if o.psleep else ""}
k_polled:""")
    stamp("polled")
    if o.pfc:
        g(f"""v_mov_b32 v{vT0}, 0
        s_mov_b64 exec, 1
        ds_add_u32 v{vT0}, v{vFour} offset:{POLC}
        s_mov_b64 exec, -1""")
    for i in range(8): g(f"v_cmp_gt_u32 {sp(sVal+2*i)}, s{sLim}, v{4+i}")
    g(f"""v_and_b32 v{vT0}, 2, v4
    v_and_b32 v{vT1}, 2, v8
    v_cmp_ne_u32 vcc, 0, v{vT0}
    v_cmp_ne_u32 {sp(sFl)}, 0, v{vT1}
    s_and_b64 {sp(sFl)}, {sp(sFl)}, {sp(sVal+8)}
    s_or_b64 vcc, vcc, {sp(sFl)}
    s_cbranch_scc1 k_mark
k_round:""")
    Tn, Rn, On = 12, 20, 28
    for i in range(8):
        g(f"v_and_b32 v{Tn+i}, 0xfc, v{4+i}")
    for i in range(8):
        g(f"s_mov_b64 exec, {sp(sVal+2*i)}\nds_add_rtn_u32 v{Rn+i}, v{Tn+i}, v{vFour} offset:{CNT2}")
    g(f"""s_mov_b64 exec, -1
k_b1:
    v_and_b32 v{vT0}, 63, v0
    v_lshlrev_b32 v{vT0}, 2, v{vT0}
    v_and_b32 v{vLA}, 12, v0
    v_lshlrev_b32 v{vGA}, 2, v{vLA}
    v_add_u32 v{TT}, {IMG}, v1
    s_waitcnt lgkmcnt(0)
    s_barrier""")
    stamp("b1")
    c, inc = vT1, vQ
    g(f"""ds_read_b32 v{c}, v{vT0} offset:{CNT2}
    ds_read_b32 v{TT+1}, v{vLA} offset:{OVM}
    ds_write_b128 v{TT}, {vr(AC,4)}""")
    if o.pfb:
        l = g.lab("pb")
        g(f"s_cmp_lt_u32 s{sW}, 8\ns_cbranch_scc1 {l}\ns_cmp_lg_u32 s{sRound}, 0\ns_cbranch_scc1 {l}")
        prefetch(o.pfb, 0, 32 * o.pfa * 8192)
        g(f"{l}:")
    g(f"""s_waitcnt lgkmcnt(1)
    v_add_u32 v{c}, 12, v{c}
    v_and_b32 v{c}, -16, v{c}
    v_cmp_ne_u32 vcc, 0, v{TT+1}
    s_cbranch_vccnz k_slowmode
k_sm1:
    v_add_u32_dpp v{inc}, v{c}, v{c} row_shr:1 row_mask:0xf bank_mask:0xf bound_ctrl:0
    s_nop 1
    v_add_u32_dpp v{inc}, v{inc}, v{inc} row_shr:2 row_mask:0xf bank_mask:0xf bound_ctrl:0
    s_nop 1
    v_add_u32_dpp v{inc}, v{inc}, v{inc} row_shr:4 row_mask:0xf bank_mask:0xf bound_ctrl:0
    s_nop 1
    v_add_u32_dpp v{inc}, v{inc}, v{inc} row_shr:8 row_mask:0xf bank_mask:0xf bound_ctrl:0
    s_nop 1
    v_add_u32_dpp v{inc}, v{inc}, v{inc} row_bcast:15 row_mask:0xa bank_mask:0xf
    s_nop 1
    v_add_u32_dpp v{inc}, v{inc}, v{inc} row_bcast:31 row_mask:0xc bank_mask:0xf
    s_cmp_ge_u32 s{sW}, 8
    v_sub_u32 v{c}, v{inc}, v{c}
    v_readlane_b32 s{sG}, v{inc}, 63
    s_cbranch_scc1 k_nosc""")
    for i in range(8): g(f"ds_bpermute_b32 v{On+i}, v{Tn+i}, v{c}")
    for half in range(2):
        g("s_waitcnt lgkmcnt(4)")
        for i in range(4 * half, 4 * half + 4): g(f"v_add_u32 v{On+i}, v{On+i}, v{Rn+i}")
        for i in range(4 * half, 4 * half + 4):
            g(f"s_mov_b64 exec, {sp(sVal+2*i)}\nds_write_b32 v{On+i}, v{4+i} offset:{LIST}")
        g("s_mov_b64 exec, -1")
    prio_ev = [int(x) for x in o.prio.split(",")] if o.prio else []
    evs = sorted(set(list(range(1, DP - 1 if o.la else DP)) + prio_ev))
    evmask = sum(1 << e for e in evs)
    g(f"""k_nosc:
    s_add_u32 s{sG}, s{sG}, 63
    s_lshr_b32 s{sG}, s{sG}, 6
    s_add_u32 s{sT+1}, s{sG}, 15
    s_lshr_b32 s{sT+1}, s{sT+1}, 4
    s_lshl_b32 s{sT+2}, s{sT+1}, 4
    s_sub_u32 s{sT+2}, s{sT+2}, s{sG}
    s_add_u32 s{sT+2}, s{sT+2}, s{sW}
    s_mul_i32 s{sT}, s{sW}, s{sT+1}
    s_sub_u32 s{sT+3}, s{sT+2}, 16
    s_cselect_b32 s{sT+3}, 0, s{sT+3}
    s_cselect_b32 s{sT+2}, 0, 1
    s_sub_u32 s{sT}, s{sT}, s{sT+3}
    s_sub_u32 s{sRem}, s{sT+1}, s{sT+2}
    s_lshl_b32 s{sT}, s{sT}, 6
    s_add_u32 s{sT}, s{sT}, {LIST}
    v_add_u32 v{vLA}, s{sT}, v{vLA}
    v_add_u32 v{vGA}, s{sT}, v{vGA}
    v_subrev_u32 v{vT0}, 16, v{vGA}
    s_mov_b32 s{sEv}, {evmask}""")
    if prio_ev: g("s_setprio 3")
    g(f"s_waitcnt vmcnt({1 if o.pfc else 0}) lgkmcnt(0)\ns_barrier" if o.wvw == 2 else "s_waitcnt lgkmcnt(0)\ns_barrier")
    stamp("b2")
    def readE(off):
        for t in range(4): g(f"ds_read_u16 v{Ee+2*t}, v{vLA} offset:{off + 16*t + 2}")
    def readCN(p, off):
        g(f"ds_read_u8 v{CN[p]}, v{vGA} offset:{off}\nds_read_u8 v{CN[p]+1}, v{vGA} offset:{off+16}")
    def adv():
        g(f"v_add_u32 v{vLA}, {64*DP}, v{vLA}\nv_add_u32 v{vGA}, {64*DP}, v{vGA}")
    def loadX(p):
        for t in range(4):
            g(f"buffer_load_dwordx4 {vr(X[p]+4*t,4)}, {vr(Ee+2*t,2)}, {sq(S_XI)}, 0 idxen offen")
    def readQ(p):
        g(f"v_mad_u32_u24 v{vQ}, v{CN[p]}, s{s68}, v{vLP}")
        for t in range(4):
            g(f"s_mov_b64 exec, {sp(sM+2*t)}\nds_read_b128 {vr(A+4*t,4)}, v{vQ} offset:{QT}")
        g("s_mov_b64 exec, -1")
    flush_sites = []; ev_sites = []
    def pt(k):
        if o.prof: g(f"s_memtime s[{52+2*k}:{53+2*k}]")
        if o.tl == k + 1:
            g("s_waitcnt lgkmcnt(0)")
            for j in range(1, 7): g(f"s_mov_b64 s[{ST0+2*j}:{ST0+2*j+1}], s[{ST0+2*j+2}:{ST0+2*j+3}]")
            g(f"s_memtime s[{ST0+14}:{ST0+15}]")
    LA = o.la
    def agg(p, first=False):
        for t in range(4):
            lf, lb = g.lab("fl"), g.lab("fb")
            g(f"""v_mfma_f32_4x4x4_16b_bf16 {vr(AC,4)}, {vr(AN+2*t,2)}, {vr(X[p]+4*t,2)}, {vr(AC,4)}
            v_mfma_f32_4x4x4_16b_bf16 {vr(AC+4,4)}, {vr(AN+2*t,2)}, {vr(X[p]+4*t+2,2)}, {vr(AC+4,4)}
            s_bitcmp1_b32 s{sFl}, {4*t}
            s_cbranch_scc1 {lf}
            {lb}:""")
            flush_sites.append((lf, lb, CN[p], 4 * t))
    def logits(p):
        for t in range(4):
            cc = "0" if t == 0 else vr(AL, 4)
            g(f"v_mfma_f32_16x16x32_bf16 {vr(AL,4)}, {vr(A+4*t,4)}, {vr(X[p]+4*t,4)}, {cc}")
    def sigm(p):
        g(f"""v_mov_b32_dpp v{vT0}, v{AL} quad_perm:[0,0,0,0] row_mask:0xf bank_mask:0xf
        v_add_f32_dpp v{vT0}, v{AL+1}, v{vT0} quad_perm:[1,1,1,1] row_mask:0xf bank_mask:0xf
        v_add_f32_dpp v{vT0}, v{AL+2}, v{vT0} quad_perm:[2,2,2,2] row_mask:0xf bank_mask:0xf
        v_add_f32_dpp v{vT0}, v{AL+3}, v{vT0} quad_perm:[3,3,3,3] row_mask:0xf bank_mask:0xf
        v_mul_f32 v{vT0}, s{sSc}, v{vT0}
        v_exp_f32 v{vT0}, v{vT0}
        v_cmp_ne_u32 {sp(sFl)}, v{CN[p]}, v{CN[p]+1}
        v_add_f32 v{vT0}, 1.0, v{vT0}
        v_rcp_f32 v{vT0}, v{vT0}
        s_nop 0
        v_cvt_pk_bf16_f32 v{vT0}, v{vT0}, v{vT0}
        ds_write_b16 v{vRW}, v{vT0}
        ds_read_b128 {vr(AN,4)}, v{vRR}
        ds_read_b128 {vr(AN+4,4)}, v{vRR} offset:16""")
    def body_la(p):
        q = (p + 1) % DP; r = (p + DP - 1) % DP
        le, lr = g.lab("ev"), g.lab("er")
        ev_sites.append((le, lr))
        off = 64 * p
        readE(off)
        g(f"""s_bitcmp1_b32 s{sEv}, s{sRem}
        s_cbranch_scc1 {le}
        {lr}:
        s_waitcnt vmcnt(4) lgkmcnt(4)""")
        pt(1)
        logits(p)
        readQ(q)
        agg(r)
        ls = g.lab("sk")
        g(f"s_cmp_lt_u32 s{sRem}, 3\ns_cbranch_scc1 {ls}\ns_waitcnt lgkmcnt(4)")
        loadX(r)
        g(f"{ls}:")
        readCN(r, off)
        if p == DP - 1: adv()
        sigm(p)
        g(f"s_sub_u32 s{sRem}, s{sRem}, 1\ns_cmp_eq_u32 s{sRem}, 0\ns_cbranch_scc1 k_last{p}")
    def body(p):
        q = (p + 1) % DP
        le, lr = g.lab("ev"), g.lab("er")
        ev_sites.append((le, lr))
        readE(64 * p)
        pt(0)
        g(f"""s_bitcmp1_b32 s{sEv}, s{sRem}
        s_cbranch_scc1 {le}
        {lr}:
        s_waitcnt vmcnt({4*(DP-1)}) lgkmcnt({6 if o.prof else 4})""")
        pt(1)
        for t in range(4):
            cc = "0" if t == 0 else vr(AL, 4)
            if "l" not in o.abl: g(f"v_mfma_f32_16x16x32_bf16 {vr(AL,4)}, {vr(A+4*t,4)}, {vr(X[p]+4*t,4)}, {cc}")
        g(f"v_cmp_ne_u32 {sp(sFl)}, v{CN[p]}, v{CN[p]+1}")
        readQ(q)
        if "v" not in o.abl:
            g(f"""v_mov_b32_dpp v{vT0}, v{AL} quad_perm:[0,0,0,0] row_mask:0xf bank_mask:0xf
            v_add_f32_dpp v{vT0}, v{AL+1}, v{vT0} quad_perm:[1,1,1,1] row_mask:0xf bank_mask:0xf
            v_add_f32_dpp v{vT0}, v{AL+2}, v{vT0} quad_perm:[2,2,2,2] row_mask:0xf bank_mask:0xf
            v_add_f32_dpp v{vT0}, v{AL+3}, v{vT0} quad_perm:[3,3,3,3] row_mask:0xf bank_mask:0xf
            v_mul_f32 v{vT0}, s{sSc}, v{vT0}
            v_exp_f32 v{vT0}, v{vT0}
            s_nop 0
            v_add_f32 v{vT0}, 1.0, v{vT0}
            v_rcp_f32 v{vT0}, v{vT0}
            s_nop 0
            v_cvt_pk_bf16_f32 v{vT0}, v{vT0}, v{vT0}
            ds_write_b16 v{vRW}, v{vT0}
            ds_read_b128 {vr(AN,4)}, v{vRR}
            ds_read_b128 {vr(AN+4,4)}, v{vRR} offset:16""")
        pt(2)
        g("s_waitcnt lgkmcnt(0)" if o.prof else "s_waitcnt lgkmcnt(1)")
        pt(3)
        for t in range(4):
            lf, lb = g.lab("fl"), g.lab("fb")
            if t == 2: g("s_waitcnt lgkmcnt(0)")
            if "m" not in o.abl:
                g(f"""v_mfma_f32_4x4x4_16b_bf16 {vr(AC,4)}, {vr(AN+2*t,2)}, {vr(X[p]+4*t,2)}, {vr(AC,4)}
                v_mfma_f32_4x4x4_16b_bf16 {vr(AC+4,4)}, {vr(AN+2*t,2)}, {vr(X[p]+4*t+2,2)}, {vr(AC+4,4)}""")
            if "f" not in o.abl:
                g(f"s_bitcmp1_b32 s{sFl}, {4*t}\ns_cbranch_scc1 {lf}")
            else: g("s_nop 1")
            g(f"{lb}:")
            flush_sites.append((lf, lb, CN[p], 4 * t))
        ls = g.lab("sk")
        pt(4)
        g(f"s_cmp_le_u32 s{sRem}, {DP}\ns_cbranch_scc1 {ls}")
        loadX(p)
        g(f"{ls}:")
        pt(5)
        if o.prof:
            g("s_waitcnt lgkmcnt(0)")
            for k in range(5):
                g(f"s_sub_u32 s{sT}, s{52+2*(k+1)}, s{52+2*k}\ns_add_u32 s{ST0+2*k+2}, s{ST0+2*k+2}, s{sT}")
            g(f"s_add_u32 s{ST0+12}, s{ST0+12}, 1")
        g(f"s_sub_u32 s{sRem}, s{sRem}, 1\ns_cmp_eq_u32 s{sRem}, 0\ns_cbranch_scc1 k_exit{p}")
        readCN(p, 64 * p)
        if p == DP - 1: adv()
    g(f"""s_cmp_eq_u32 s{sRem}, 0
    s_cbranch_scc1 k_zero""")
    if LA:
        assert DP == 3
        for p in range(3):
            if p > 0: g(f"s_cmp_lt_u32 s{sRem}, {p+1}\ns_cbranch_scc1 k_pro{p}")
            readE(64 * p); readCN(p, 64 * p)
            if p == 0: g(f"ds_read_u8 v{vT1}, v{vT0}\ns_waitcnt lgkmcnt(3)")
            else: g("s_waitcnt lgkmcnt(2)")
            if p == 2: break
            loadX(p)
            if p == 0:
                g("s_waitcnt lgkmcnt(0)")
                readQ(0)
                g(f"""v_cmp_eq_u32 vcc, v{vT1}, v{CN[0]}
                s_and_b32 s{sFirst}, vcc_lo, 1
                s_cmp_eq_u32 s{sW}, 0
                s_cselect_b32 s{sFirst}, 0, s{sFirst}""")
        g("s_waitcnt vmcnt(4)")
        logits(0)
        loadX(2)
        g("s_branch k_pro3\nk_pro1:\ns_waitcnt vmcnt(0)\nk_pro2:\ns_waitcnt vmcnt(4) lgkmcnt(0)")
        logits(0)
        g("k_pro3:")
        readQ(1)
        g(f"v_add_u32 v{vLA}, {64*2}, v{vLA}\nv_add_u32 v{vGA}, {64*2}, v{vGA}")
        sigm(0)
        g(f"s_sub_u32 s{sRem}, s{sRem}, 1\ns_cmp_eq_u32 s{sRem}, 0\ns_cbranch_scc1 k_last0\ns_branch k_loop1")
        g("k_loop:")
        for p in range(DP):
            g(f"k_loop{p}:")
            body_la(p)
        g("s_branch k_loop")
        for p in range(DP):
            g(f"k_last{p}:\ns_waitcnt lgkmcnt(0)")
            agg(p)
            g(f"v_readlane_b32 s{sN}, v{CN[p]}, 12")
            if p < DP - 1: g("s_branch k_exit")
    else:
        for p in range(DP):
            if p > 0: g(f"s_cmp_lt_u32 s{sRem}, {p+1}\ns_cbranch_scc1 k_pro")
            readE(64 * p); readCN(p, 64 * p)
            if p == 0: g(f"ds_read_u8 v{vT0}, v{vT0}\ns_waitcnt lgkmcnt(3)")
            else: g("s_waitcnt lgkmcnt(2)")
            loadX(p)
            if o.rr and p == 0: g("s_setprio 0")
        g("k_pro:")
        if o.rr: g("s_setprio 3")
        adv()
        g("s_waitcnt lgkmcnt(0)")
        readQ(0)
        g(f"""v_cmp_eq_u32 vcc, v{vT0}, v{CN[0]}
        s_and_b32 s{sFirst}, vcc_lo, 1
        s_cmp_eq_u32 s{sW}, 0
        s_cselect_b32 s{sFirst}, 0, s{sFirst}
        s_call_b64 {sp(sRet)}, k_prep""")
        g("k_loop:")
        for p in range(DP): body(p)
        g("s_branch k_loop")
        for p in range(DP):
            g(f"""k_exit{p}:
            v_readlane_b32 s{sN}, v{CN[p]}, 12""")
            if p < DP - 1: g("s_branch k_exit")
    g(f"""k_exit:
    {"s_branch k_done" if "f" in o.abl else ""}
    s_bitcmp1_b32 s{sFl}, 12
    s_cbranch_scc1 k_done
    s_cmp_ge_u32 s{sN}, {4*NPB}
    s_cbranch_scc1 k_done
k_tw:
    v_cmp_eq_u32 vcc, 0, v{Ee+2}
    s_cbranch_vccnz k_tw2""")
    for t in range(4):
        g(f"""s_mov_b64 exec, {sp(sM+2*t)}
        v_add_f32 v{AC+2*t}, v{AC+2*t}, v{Ee}
        v_add_f32 v{AC+2*t+1}, v{AC+2*t+1}, v{Ee+1}""")
    g(f"""s_mov_b64 exec, -1
    s_call_b64 {sp(sRet)}, k_flush
k_done:""")
    if prio_ev: g("s_setprio 0")
    stamp("main")
    g(f"""s_cmp_lg_u32 s2, {NB-1}
    s_cbranch_scc1 k_ne1
    v_mov_b32 v{vLA}, 0
    global_load_dword v{vGA}, v{vLA}, {sp(pDBG)}{SC}
k_ne1:""")
    BA = 44
    g(f"""v_xor_b32 v{vT1}, 32, v{vWv}
    s_cmp_lg_u32 s{sRound}, 0
    s_waitcnt lgkmcnt(0)
    s_barrier
    s_cbranch_scc1 k_extra
k_epi:""")
    stamp("b3")
    D0, D1, BM = 76, 80, 84
    for s_ in range(4):
        if s_ == 3:
            for T in range(2):
                for h in range(2):
                    g(f"ds_read_b64_tr_b16 {vr(VFQ[(3,T)]+2*h,2)}, v{vWv if T == 0 else vT1} offset:{3*8192 + h*1024}")
        g(f"ds_read_b128 {vr(BA+4*s_,4)}, v{vAg} offset:{AGG+s_*64}")
    for s_ in range(4):
        g(f"s_waitcnt lgkmcnt({[7, 6, 5, 0][s_]})")
        for T in range(2):
            d = D0 if T == 0 else D1
            cc = "0" if s_ == 0 else vr(d, 4)
            g(f"v_mfma_f32_16x16x32_bf16 {vr(d,4)}, {vr(VFQ[(s_,T)],4)}, {vr(BA+4*s_,4)}, {cc}")
    g(f"""s_nop 6
    v_cvt_pk_bf16_f32 v20, v{D0}, v{D0+1}
    v_cvt_pk_bf16_f32 v21, v{D0+2}, v{D0+3}
    v_cvt_pk_bf16_f32 v22, v{D1}, v{D1+1}
    v_cvt_pk_bf16_f32 v23, v{D1+2}, v{D1+3}
    s_nop 1
    v_permlane16_swap_b32 v20, v22
    v_permlane16_swap_b32 v21, v23
    buffer_store_dwordx4 v[20:23], v{vOut}, {sq(S_OUT)}, 0 offen{o.outflag}""")
    stamp("stored")
    g(f"""s_cmp_lg_u32 s2, {NB-1}
    s_cbranch_scc1 k_fin
    s_cmp_lg_u32 s{sW}, 15
    s_cbranch_scc1 k_fin
    s_mov_b32 s{sT+2}, {o.spin}
    s_waitcnt vmcnt(1)
k_ep:
    v_readfirstlane_b32 s{sT}, v{vGA}
    s_cmp_ge_u32 s{sT}, {4*(NB-NC)}
    s_cbranch_scc1 k_ep2
    s_sub_u32 s{sT+2}, s{sT+2}, 1
    s_cbranch_scc1 k_ep2
    global_load_dword v{vGA}, v{vLA}, {sp(pDBG)}{SC}
    s_waitcnt vmcnt(0)
    s_branch k_ep
k_ep2:
    v_mov_b32 v{vGA}, s{sTag}
    s_mov_b64 exec, 1
    global_store_dword v{vLA}, v{vGA}, {sp(pWS)} offset:{WS_EPOCH}
    s_mov_b64 exec, -1
k_fin:""")
    if o.amp:
        g(f"""s_cmp_lg_u32 s2, {o.ampwg}
        s_cbranch_scc1 k_end
        s_cmp_lg_u32 s{sW}, {o.stw}
        s_cbranch_scc1 k_end
        s_memrealtime s[60:61]
        s_waitcnt lgkmcnt(0)
        s_sub_u32 s62, s{ST0+2}, s{ST0}
        s_mul_i32 s62, s62, {o.amp}
        s_min_u32 s62, s62, 100000
k_amp:
        s_memrealtime s[64:65]
        s_waitcnt lgkmcnt(0)
        s_sub_u32 s63, s64, s60
        s_cmp_lt_u32 s63, s62
        s_cbranch_scc1 k_amp
        s_endpgm""")
    if o.stamps:
        g("s_waitcnt vmcnt(0)")
        stamp("end")
        g("s_waitcnt lgkmcnt(0)")
        l = g.lab("st")
        g(f"""v_cmp_eq_u32 vcc, {o.stw*64}, v0
        s_and_saveexec_b64 s[52:53], vcc
        s_cbranch_execz {l}
        s_add_u32 s54, s{pWS}, {WS_STAMP}
        s_addc_u32 s55, s{pWS+1}, 0
        s_mul_i32 s56, s2, 64
        v_mov_b32 v1, s56""")
        for i in range(8):
            g(f"v_mov_b32 v2, s{ST0+2*i}\nv_mov_b32 v3, s{ST0+2*i+1}\nglobal_store_dwordx2 v1, v[2:3], s[54:55] offset:{8*i}\ns_nop 1")
        g(f"s_waitcnt vmcnt(0)\n{l}:")
    g("k_end:\ns_endpgm")
    def reduce_scatter():
        for k in range(4):
            g(f"v_add_f32_dpp v{TT+k}, v{AC+k}, v{AC+k} row_ror:8 row_mask:0xf bank_mask:0x3")
        for k in range(4):
            g(f"v_add_f32_dpp v{TT+k}, v{AC+4+k}, v{AC+4+k} row_ror:8 row_mask:0xf bank_mask:0xc")
        g(f"v_add_u32 v{vT1}, s{sN}, v{vFL}")
        for k in range(2):
            g(f"v_add_f32_dpp v{TT+4+k}, v{TT+k}, v{TT+k} row_shl:4 row_mask:0xf bank_mask:0x5")
        for k in range(2):
            g(f"v_add_f32_dpp v{TT+4+k}, v{TT+2+k}, v{TT+2+k} row_shr:4 row_mask:0xf bank_mask:0xa")
    for lf, lb, cn, lane in flush_sites:
        if o.inl:
            ls = g.lab("fs")
            g(f"""{lf}:
            v_readlane_b32 s{sN}, v{cn}, {lane}
            s_or_b32 s{sT}, s{sRound}, s{sFirst}
            s_cbranch_scc1 {ls}
            s_mulk_i32 s{sN}, 68""")
            reduce_scatter()
            for k in range(4): g(f"v_mov_b32 v{AC+k}, 0")
            g(f"v_cvt_pk_bf16_f32 v{TT+4}, v{TT+4}, v{TT+5}")
            for k in range(4, 8): g(f"v_mov_b32 v{AC+k}, 0")
            g(f"ds_write_b32 v{vT1}, v{TT+4} offset:{AGG}")
            g(f"""s_branch {lb}
            {ls}:
            s_call_b64 {sp(sRet)}, k_flush
            s_branch {lb}""")
        else:
            g(f"""{lf}:
            v_readlane_b32 s{sN}, v{cn}, {lane}
            s_call_b64 {sp(sRet)}, k_flush
            s_branch {lb}""")
    g(f"k_flush:\ns_nop 0\ns_mulk_i32 s{sN}, 68")
    reduce_scatter()
    g(f"""s_or_b32 s{sT}, s{sRound}, s{sFirst}
    s_cbranch_scc1 k_flush2
    v_cvt_pk_bf16_f32 v{TT+4}, v{TT+4}, v{TT+5}
    ds_write_b32 v{vT1}, v{TT+4} offset:{AGG}
k_flush4:""")
    for k in range(8): g(f"v_mov_b32 v{AC+k}, 0")
    g(f"""s_setpc_b64 {sp(sRet)}
k_flush2:
    s_cmp_lg_u32 s{sFirst}, 0
    s_cbranch_scc1 k_flush5
    v_lshlrev_b32 v{vT1}, 1, v{vT1}
    v_add_u32 v{vT1}, {AGF}, v{vT1}
    ds_read_b64 {vr(TT,2)}, v{vT1}
    s_waitcnt lgkmcnt(0)
    v_add_f32 v{TT+4}, v{TT+4}, v{TT}
    v_add_f32 v{TT+5}, v{TT+5}, v{TT+1}
    ds_write_b64 v{vT1}, {vr(TT+4,2)}
    s_branch k_flush4
k_flush5:
    s_lshl_b32 s{sT}, s{sW}, 9
    s_add_u32 s{sT}, s{sT}, {EXTRA}
    v_lshl_add_u32 v{vT1}, v{vFL}, 1, s{sT}
    s_lshl_b32 s{sT}, s{sW}, 2
    v_mov_b32 v{TT}, s{sT}
    ds_write_b64 v{vT1}, {vr(TT+4,2)}
    ds_write_b32 v{TT}, v{vFour} offset:{EXF}
    s_mov_b32 s{sFirst}, 0
    s_branch k_flush4""")
    for le, lr in ev_sites:
        g(f"{le}:\ns_call_b64 {sp(sRet)}, k_event\ns_branch {lr}")
    g("k_event:")
    for i, e in enumerate(sorted(prio_ev, reverse=True)):
        l = g.lab("pe")
        g(f"s_cmp_lg_u32 s{sRem}, {e}\ns_cbranch_scc1 {l}\ns_setprio {2-i}\n{l}:")
    for r in range(DP - 2 if o.la else DP - 1, 1, -1):
        l = g.lab("we")
        g(f"s_cmp_lg_u32 s{sRem}, {r}\ns_cbranch_scc1 {l}\ns_waitcnt vmcnt({4*(r-1)})\n{l}:")
    g(f"""s_cmp_lg_u32 s{sRem}, 1
    s_cbranch_scc1 k_ev1
k_ev2:
    s_lshl_b32 s{sT}, s{sW}, 2
    v_mov_b32 v{vT0}, s{sT}
    s_lshl_b32 s{sT}, s{sW}, 9
    s_add_u32 s{sT}, s{sT}, {EXTRA+512}
    v_lshl_add_u32 v{vT1}, v{vFL}, 1, s{sT}
    ds_read_b32 v{Ee+2}, v{vT0} offset:{EXF+4}
    ds_read_b64 {vr(Ee,2)}, v{vT1}
    s_waitcnt vmcnt(0) lgkmcnt(2)
k_ev1:
    s_setpc_b64 {sp(sRet)}
k_tw2:
    s_call_b64 {sp(sRet)}, k_ev2
    s_waitcnt lgkmcnt(0)
    s_branch k_tw
k_zero:
    s_call_b64 {sp(sRet)}, k_prep
    s_branch k_done
k_prep:
    s_lshr_b32 s{sT}, s{sW}, 2
    s_lshl_b32 s{sT+1}, s{sT}, 2
    v_lshrrev_b32 v{vWv}, 2, v2
    v_bfe_u32 v{TT}, v0, 1, 1
    v_add_u32 v{TT}, s{sT+1}, v{TT}
    v_and_b32 v{TT+1}, 1, v3
    v_lshl_add_u32 v{TT+2}, v{TT+1}, 2, v{vWv}
    v_lshlrev_b32 v{TT+2}, 1, v{TT+2}
    v_xor_b32 v{TT}, v{TT}, v{TT+2}
    v_lshl_add_u32 v{vWv}, v3, 3, v{vWv}
    v_lshlrev_b32 v{vWv}, 8, v{vWv}
    v_lshl_add_u32 v{vWv}, v{TT}, 4, v{vWv}
    v_and_b32 v{TT}, 1, v0
    v_lshl_add_u32 v{vWv}, v{TT}, 3, v{vWv}
    v_add_u32 v{vWv}, {WV}, v{vWv}
    v_xor_b32 v{TT}, 32, v{vWv}""")
    for s_ in range(3):
        for T in range(2):
            for h in range(2):
                g(f"ds_read_b64_tr_b16 {vr(VFQ[(s_,T)]+2*h,2)}, v{vWv if T == 0 else TT} offset:{s_*8192 + h*1024}")
    g(f"""s_and_b32 s{sT+2}, s{sW}, 3
    s_mul_i32 s{sT+1}, s{sT+2}, {16*272}
    v_mul_u32_u24 v{vAg}, 272, v2
    v_lshl_add_u32 v{vAg}, v3, 4, v{vAg}
    v_add_u32 v{vAg}, s{sT+1}, v{vAg}
    s_lshl_b32 s{sT+2}, s{sT+2}, 12
    s_lshl_b32 s{sT}, s{sT}, 6
    s_add_u32 s{sT}, s{sT}, s{sT+2}
    v_lshlrev_b32 v{vOut}, 8, v2
    v_lshl_add_u32 v{vOut}, v{TT+1}, 5, v{vOut}
    v_lshrrev_b32 v{TT+2}, 1, v3
    v_lshl_add_u32 v{vOut}, v{TT+2}, 4, v{vOut}
    v_add_u32 v{vOut}, s{sT}, v{vOut}
    s_waitcnt lgkmcnt(0)
    s_setpc_b64 {sp(sRet)}""")
    g(f"k_pto:\ns_mov_b64 exec, -1\ns_waitcnt vmcnt(0)\ns_branch k_polled")
    S_OV = 60
    def build_ovf(d):
        g(f"""s_add_u32 s{d}, s{pWS}, {WS_OVF}
        s_addc_u32 s{d+1}, s{pWS+1}, 0
        s_mov_b32 s{d+2}, {(WS_OVFCNT - WS_OVF) + 4096}
        s_mov_b32 s{d+3}, 0x20000""")
    g("k_slow:")
    build_ovf(S_OV)
    g(f"""s_mov_b32 s{sG}, 0xff00
    v_mov_b32 v{vT0}, {OVN}""")
    for i in range(8):
        l = g.lab("ov")
        g(f"""s_mov_b64 exec, {sp(sVal)}
        v_cmp_gt_u32 vcc, {CAP*4}, v{Rk+i}
        s_and_b64 exec, {sp(sVal)}, vcc
        ds_write_b32 v{Tm+i}, v{Ss+i}
        s_andn2_b64 exec, {sp(sVal)}, vcc
        s_cbranch_execz {l}
        ds_add_rtn_u32 v{TT+1}, v{vT0}, v{vFour}
        v_lshlrev_b32 v{TT}, 6, v{B4+i}
        v_bfi_b32 v{TT}, s{sG}, v{TT}, v{Ss+i}
        s_waitcnt lgkmcnt(0)
        buffer_store_dword v{TT}, v{TT+1}, {sq(S_OV)}, s{sCO} offen{SC}
        {l}:""")
    g(f"""s_mov_b64 exec, -1
    s_waitcnt vmcnt(0)
    s_branch k_binned""")
    g(f"""k_flag:
    s_waitcnt lgkmcnt(0)""")
    lsync(SRTC, 96)
    build_ovf(S_OV)
    g(f"""v_cmp_gt_u32 vcc, {NB}, v0
    s_mov_b64 exec, vcc
    v_lshlrev_b32 v{TT}, 2, v0
    ds_read_b32 v{TT+1}, v{TT} offset:{PCNT}
    v_mul_u32_u24 v{TT}, {IST}, v0
    v_add_u32 v{TT}, {IMG}, v{TT}
    v_mov_b32 v{TT+2}, 2
    s_waitcnt lgkmcnt(0)
    v_cmp_lt_u32 vcc, {CAP*4}, v{TT+1}
    s_and_b64 exec, exec, vcc
    ds_or_b32 v{TT}, v{TT+2}
    s_mov_b64 exec, -1
    s_lshl_b32 s{sT+4}, s{sC}, 2
    s_add_u32 s{sT+4}, s{sT+4}, {WS_OVFCNT - WS_OVF}
    v_mov_b32 v{TT}, 0
    buffer_store_dword v{Tm}, v{TT}, {sq(S_OV)}, s{sT+4} offen{SC}
    s_waitcnt vmcnt(0) lgkmcnt(0)""")
    lsync(SRTC, 128)
    img_reads()
    g("s_branch k_copy")
    g("k_mark:")
    for h in range(2):
        e = 4 + 4 * h
        g(f"""v_and_b32 v{vT0}, 2, v{e}
        v_cmp_ne_u32 vcc, 0, v{vT0}
        s_and_b64 exec, vcc, {sp(sVal+8*h)}
        v_and_b32 v{e}, -3, v{e}
        v_lshrrev_b32 v{vT0}, 3, v0
        v_add_u32 v{vT0}, {64*h}, v{vT0}
        v_lshrrev_b32 v{vT1}, 5, v{vT0}
        v_lshlrev_b32 v{vT1}, 2, v{vT1}
        v_and_b32 v{vT0}, 31, v{vT0}
        v_lshlrev_b32 v{vT0}, v{vT0}, 1
        ds_or_b32 v{vT1}, v{vT0} offset:{OVM}
        s_mov_b64 exec, -1""")
    g("s_branch k_round")
    sMap = 52
    g(f"""k_slowmode:
    s_cmp_lg_u32 s{sRound}, 0
    s_cbranch_scc1 k_sm1
    s_mov_b32 s{sRound}, 1
    v_add_u32 v{TT}, {AGF}, v1
    ds_write_b128 v{TT}, {vr(AC,4)}
    ds_write_b128 v{TT}, {vr(AC,4)} offset:16384
    s_branch k_sm1
k_extra:
    v_mov_b32 v{vT0}, 0
    ds_read_b128 {vr(BM,4)}, v{vT0} offset:{OVM}
    s_waitcnt lgkmcnt(0)
    v_readfirstlane_b32 s{sMap}, v{BM}
    v_readfirstlane_b32 s{sMap+1}, v{BM+1}
    v_readfirstlane_b32 s{sMap+2}, v{BM+2}
    v_readfirstlane_b32 s{sMap+3}, v{BM+3}
    s_barrier
    s_or_b64 {sp(sMap+4)}, {sp(sMap)}, {sp(sMap+2)}
    s_cbranch_scc1 k_x0
    v_lshrrev_b32 v{TT}, 4, v0
    v_and_b32 v{TT+1}, 0xf0, v1
    v_mul_u32_u24 v{TT}, 272, v{TT}
    v_add_u32 v{TT}, v{TT}, v{TT+1}
    v_lshlrev_b32 v{TT+1}, 1, v{TT}
    v_add_u32 v{TT+1}, {AGF}, v{TT+1}
    v_cmp_gt_u32 vcc, {NPB*16}, v0
    s_mov_b64 exec, vcc
    ds_read_b128 v[44:47], v{TT+1}
    ds_read_b128 v[48:51], v{TT+1} offset:16
    s_waitcnt lgkmcnt(0)
    v_cvt_pk_bf16_f32 v44, v44, v45
    v_cvt_pk_bf16_f32 v45, v46, v47
    v_cvt_pk_bf16_f32 v46, v48, v49
    v_cvt_pk_bf16_f32 v47, v50, v51
    ds_write_b128 v{TT}, v[44:47] offset:{AGG}
    s_mov_b64 exec, -1
    s_waitcnt lgkmcnt(0)
    s_barrier
    s_branch k_epi
k_x0:
    s_cmp_lg_u64 {sp(sMap)}, 0
    s_cbranch_scc1 k_x1
    s_ff1_i32_b64 s{sT}, {sp(sMap+2)}
    s_bitset0_b64 {sp(sMap+2)}, s{sT}
    s_add_u32 s{sT}, s{sT}, 64
    s_branch k_x2
k_x1:
    s_ff1_i32_b64 s{sT}, {sp(sMap)}
    s_bitset0_b64 {sp(sMap)}, s{sT}
k_x2:""")
    build_ovf(S_CST)
    g(f"""s_lshl_b32 s{sG}, s{sT}, 2
    s_add_u32 s{sG}, s{sG}, {WS_OVFCNT - WS_OVF}
    v_mov_b32 v{vT0}, 0
    buffer_load_dword v{vT1}, v{vT0}, {sq(S_CST)}, s{sG} offen{SC}
    s_mul_i32 s{sG}, s{sT}, {CE*4}
    buffer_load_dwordx4 v[4:7], v1, {sq(S_CST)}, s{sG} offen{SC}
    s_add_u32 s{sG}, s{sG}, 8192
    buffer_load_dwordx4 v[8:11], v1, {sq(S_CST)}, s{sG} offen{SC}""")
    for i in range(4): g(f"v_mov_b32 v{12+i}, {PADL}")
    g(f"""ds_write_b128 v1, v[12:15] offset:{LIST}
    s_cmp_lg_u32 s{sW}, 0
    s_cbranch_scc1 k_x3
    ds_write_b128 v1, v[12:15] offset:{LIST+16384}
    v_lshrrev_b32 v{TT}, 2, v1
    ds_write_b32 v{TT}, v{vT0} offset:{CNT2}
    v_and_b32 v{TT}, 0x7c, v{TT}
    ds_write_b32 v{TT}, v{vT0} offset:{EXF}
    v_mov_b32 v16, s{sMap}
    v_mov_b32 v17, s{sMap+1}
    v_mov_b32 v18, s{sMap+2}
    v_mov_b32 v19, s{sMap+3}
    ds_write_b128 v{vT0}, v[16:19] offset:{OVM}
k_x3:""")
    zero_main()
    g("s_waitcnt vmcnt(0)")
    for i in range(8):
        g(f"""v_bfe_u32 v{TT}, v{4+i}, 8, 8
        v_cmp_eq_u32 vcc, s2, v{TT}
        v_add_u32 v{TT+1}, {(i&3)*4 + (i>>2)*8192}, v1
        v_cmp_lt_u32 {sp(sVal+2*i)}, v{TT+1}, v{vT1}
        s_and_b64 {sp(sVal+2*i)}, {sp(sVal+2*i)}, vcc""")
    g(f"""s_waitcnt lgkmcnt(0)
    s_barrier
    s_cmp_lt_u32 s{sW}, 8
    s_cbranch_scc1 k_round
    s_branch k_b1""")
    return NV

def main():
    ap = argparse.ArgumentParser()
    ap.add_argument("-o", default="cdna_kernels/" + KN + ".s")
    ap.add_argument("--stamps", default="")
    ap.add_argument("--cyc", action="store_true")
    ap.add_argument("--stw", type=int, default=0)
    ap.add_argument("--pfa", type=int, default=0)
    ap.add_argument("--pfb", type=int, default=0)
    ap.add_argument("--depth", type=int, default=2)
    ap.add_argument("--prio", default="5,3,1")
    ap.add_argument("--gate", type=int, default=4)
    ap.add_argument("--abl", default="")
    ap.add_argument("--xdelay", type=int, default=0)
    ap.add_argument("--pfc", type=int, default=0)
    ap.add_argument("--xnt", type=int, default=0)
    ap.add_argument("--dstfirst", type=int, default=1)
    ap.add_argument("--pset", default="0123")
    ap.add_argument("--wtouch", type=int, default=0)
    ap.add_argument("--wvlast", type=int, default=1)
    ap.add_argument("--wvw", type=int, default=2)
    ap.add_argument("--auxprio", type=int, default=0)
    ap.add_argument("--psleep", type=int, default=0)
    ap.add_argument("--gateb", type=int, default=1)
    ap.add_argument("--inl", type=int, default=1)
    ap.add_argument("--tl", type=int, default=0)
    ap.add_argument("--rr", type=int, default=0)
    ap.add_argument("--prof", type=int, default=0)
    ap.add_argument("--la", type=int, default=0)
    ap.add_argument("--la1", type=int, default=2)
    ap.add_argument("--lock", type=int, default=0)
    ap.add_argument("--amp", type=int, default=0)
    ap.add_argument("--ampwg", type=int, default=3)
    ap.add_argument("--outflag", default="nt")
    ap.add_argument("--spin", type=int, default=200000)
    o = ap.parse_args()
    if o.outflag: o.outflag = " " + o.outflag
    g = G()
    nv = gen(g, o)
    head = f"""; featgraph: fused kernel. producers bucket edges by dst into tagged cells (d_ws), every workgroup then
; @launch grid=({NB},1,1) block=(1024,1,1) lds={LDS}
.amdgcn_target "amdgcn-amd-amdhsa--gfx950"
.text
"""
    acc = (nv + 3) // 4 * 4
    tail = f""".section .rodata,"a"
.p2align 6
.amdhsa_kernel {KN}_kernel
  .amdhsa_next_free_vgpr {nv}
  .amdhsa_next_free_sgpr 102
  .amdhsa_accum_offset {acc}
  .amdhsa_group_segment_fixed_size 0
  .amdhsa_kernarg_size 64
  .amdhsa_user_sgpr_count 2
  .amdhsa_user_sgpr_kernarg_segment_ptr 1
  .amdhsa_system_sgpr_workgroup_id_x 1
.end_amdhsa_kernel
"""
    open(o.o, "w").write(head + g.text() + tail)
main()
```

```python
import sys, argparse

KN = "standalone__kernel_systems_refs_featgraph__graph"
N, E, D = 12500, 400000, 128
NB, NPB = 250, 50
NC, CE = 125, 3200
CAP = 32
WS_EPOCH = 0
WS_CELLS = 4096
CELLS_BYTES = NB * NC * 128
WS_OVF = 4 << 20
WS_OVFCNT = 6 << 20
WS_STAMP = 8 << 20
PADW = 0x3FFF0000
PADL = 0x3FFF00FC
TAGMASK = 0xC000FF00
BIG = 0x400000
IST = 144

CNT2, OVM, AUXC, SRTC, POLC, EXF, PCNT = 0, 256, 272, 276, 280, 320, 512
OVN = PCNT + 1000
AGG = PCNT + 1024
QT = AGG + 50 * 272
LIST = (QT + 50 * 272 + 255) // 256 * 256
WQ = LIST + 17408
WV = WQ + 32768
IMG = WV + 32768
EXTRA = IMG + 16384
AGF = WQ
LDS = IMG + 256 * IST
assert LDS <= 163840 and LIST + 16384 < 65536 and WQ % 256 == 0

class G:
    def __init__(self):
        self.L = []; self.uid = 0
    def __call__(self, s=""):
        for ln in s.split("\n"):
            ln = ln.strip()
            if not ln: continue
            if ln.endswith(":") or ln.startswith("."): self.L.append(ln)
            else: self.L.append("    " + ln)
    def lab(self, p="L"):
        self.uid += 1
        return f"{p}_{self.uid}"
    def text(self): return "\n".join(self.L) + "\n"

def vr(a, n=1): return f"v{a}" if n == 1 else f"v[{a}:{a+n-1}]"
def sp(a): return f"s[{a}:{a+1}]"
def sq(a): return f"s[{a}:{a+3}]"

ST0 = 86
def gen(g, o):
    DP = o.depth
    sel = o.stamps.split(",") if o.stamps else []
    def stamp(nm):
        if nm in sel:
            i = sel.index(nm)
            g(f"{'s_memtime' if o.cyc else 's_memrealtime'} s[{ST0+2*i}:{ST0+2*i+1}]")
        if nm + "C" in sel:
            i = sel.index(nm + "C")
            g(f"s_memtime s[{ST0+2*i}:{ST0+2*i+1}]")
    pX, pSRC, pDST, pWQ, pWV, pOUT, pDBG, pWS = 4, 6, 8, 10, 12, 14, 16, 18
    S_X, S_CELL, S_CST, S_OUT, S_XI = 20, 24, 28, 32, 72
    sW, sTag, sG, sRem, sFl, sN, sRound = 36, 37, 38, 39, 40, 42, 43
    sM, sVal, sRet, sSc, s68 = 44, 52, 68, 70, 71
    sFirst, sLk, sLim, sT = 76, 77, 78, 80
    sEv = 0
    X = [12 + 16 * p for p in range(DP)]
    b = 12 + 16 * DP
    A = b; Ee = b + 16; CN = [b + 24 + 2 * p for p in range(DP)]
    b = (b + 24 + 2 * DP + 3) // 4 * 4
    AL = b; AC = b + 4; AN = b + 12
    b += 20
    b = max(b, 92)
    vLP, vRW, vRR, vFL, vLA, vGA, vQ, vT0, vT1, vFour = range(b, b + 10)
    TT = b + 10
    NV = TT + 6
    assert NV == 108 and DP == 2
    NV = 128
    VFQ = {(0,0):8, (0,1):108, (1,0):112, (1,1):116, (2,0):120, (2,1):124, (3,0):12, (3,1):16}
    vAg, vOut, vWv = 4, 5, 6
    SC = " sc1"
    sC = 3
    sCO = 79
    isprod = f"s_cmp_lt_u32 s{sC}, {NC}"
    PS = [int(ch) for ch in o.pset]
    tbl = sum(((PS.index(r) if r in PS else 15) << (4 * r)) for r in range(8))
    g(f""".p2align 8
.globl {KN}_kernel
.type {KN}_kernel,@function
{KN}_kernel:
    s_cmp_ge_u32 s2, {NB}
    s_cbranch_scc1 k_end
    s_load_dwordx16 s[4:19], s[0:1], 0
    v_lshlrev_b32 v1, 4, v0
    v_lshrrev_b32 v{vT0}, 6, v0
    v_and_b32 v2, 15, v0
    v_readfirstlane_b32 s{sW}, v{vT0}
    v_bfe_u32 v3, v0, 4, 2
    s_mul_i32 s{sN}, s2, {NPB*256}
    s_and_b32 s{sT}, s2, 7
    s_lshl_b32 s{sT}, s{sT}, 2
    s_lshr_b32 s{sT}, {tbl}, s{sT}
    s_and_b32 s{sT}, s{sT}, 15
    s_lshr_b32 s{sC}, s2, 3
    s_mulk_i32 s{sC}, {len(PS)}
    s_add_u32 s{sC}, s{sC}, s{sT}
    s_cmp_eq_u32 s{sT}, 15
    s_cselect_b32 s{sC}, 255, s{sC}
    s_mul_i32 s{sCO}, s{sC}, {CE*4}""")
    if o.stamps:
        for i in range(8): g(f"s_mov_b64 s[{ST0+2*i}:{ST0+2*i+1}], 0")
    Dd, Ss, B4, Rk, Tm = 12, 20, 28, 36, 44
    g(f"""v_cmp_gt_u32 vcc, {CE//8}, v0
    v_add_u32 v{vT1}, s{sCO}, v1
    v_add_u32 v{vQ}, {CE*2}, v{vT1}
    s_mov_b64 {sp(sVal)}, vcc
    s_waitcnt lgkmcnt(0)""")
    stamp("start")
    def w_loads(ptr, dst):
        g(f"""s_sub_u32 s{sT}, s{sW}, 8
        s_lshl_b32 s{sT+1}, s{sT}, 12
        v_lshlrev_b32 v{vLA}, 1, v3
        v_xor_b32 v{vLA}, v{vLA}, v2
        v_lshlrev_b32 v{vLA}, 4, v{vLA}
        v_lshl_add_u32 v{vLA}, v3, 8, v{vLA}
        v_add_u32 v{vLA}, s{sT+1}, v{vLA}
        s_add_u32 m0, s{sT+1}, {dst}
        v_xor_b32 v{vGA}, 0x80, v{vLA}""")
        for k in range(4): g(f"global_load_lds_dwordx4 v{vLA if k < 2 else vGA}, {sp(ptr)} offset:{1024*k}")
    def x_loads():
        g(f"""s_sub_u32 s{sT}, s{sW}, 8
        s_and_b32 s{sT+2}, s{sT}, 1
        s_lshl_b32 s{sT+2}, s{sT+2}, 3
        v_add_u32 v{vT0}, s{sT+2}, v3
        v_xor_b32 v{vT0}, v{vT0}, v2
        v_lshlrev_b32 v{vT0}, 4, v{vT0}
        v_lshl_add_u32 v{vT0}, v3, 8, v{vT0}
        v_xor_b32 v{vT1}, 64, v{vT0}
        s_lshl_b32 s{sT+2}, s{sT}, 11
        s_add_u32 m0, s{sT+2}, {LIST}
        s_add_u32 s{sT+2}, s{sT+2}, s{sN}
        buffer_load_dwordx4 v{vT0}, {sq(S_X)}, s{sT+2} offen{" nt" if o.xnt else ""} lds
        buffer_load_dwordx4 v{vT1}, {sq(S_X)}, s{sT+2} offen offset:1024{" nt" if o.xnt else ""} lds""")
    def prefetch(nw, idx_first, base):
        g(f"""s_sub_u32 s{sT}, s{sW}, 8
        s_cmp_ge_u32 s{sT}, {nw}
        s_cselect_b32 s{sT+1}, {BIG}, 0
        s_lshl_b32 s{sT}, s{sT}, 13
        s_add_u32 s{sT}, s{sT}, s{sT+1}
        s_add_u32 s{sT}, s{sT}, {base}
        s_lshr_b32 s{sT+1}, s2, 3
        s_sub_u32 s{sT+1}, 31, s{sT+1}
        s_mul_i32 s{sT+1}, s{sT+1}, {nw*8192}
        s_add_u32 s{sT}, s{sT}, s{sT+1}
        v_and_b32 v{vT0}, 63, v0
        v_lshlrev_b32 v{vT0}, 7, v{vT0}
        buffer_load_dword v{TT+5}, v{vT0}, {sq(S_X)}, s{sT} offen""")
    def lsync(addr, target):
        l = g.lab("ss")
        g(f"""v_mov_b32 v{TT+3}, 0
        s_mov_b64 exec, 1
        ds_add_u32 v{TT+3}, v{vFour} offset:{addr}
        s_mov_b64 exec, -1
        {l}:
        ds_read_b32 v{TT+4}, v{TT+3} offset:{addr}
        s_waitcnt lgkmcnt(0)
        v_cmp_gt_u32 vcc, {target}, v{TT+4}
        s_cbranch_vccnz {l}""")
    g(f"""{isprod}
    s_cbranch_scc0 k_noedge
    s_mov_b64 exec, {sp(sVal)}
    s_cbranch_execz k_noedge
    global_load_dwordx4 {vr(Dd,4)}, v{vT1}, {sp(pDST)} nt
    global_load_dwordx4 {vr(Dd+4,4)}, v{vQ}, {sp(pDST)} nt
k_noedge:
    s_mov_b64 exec, -1
    s_cmp_lt_u32 s{sW}, 14
    s_cbranch_scc1 k_i0""")
    for i in range(4): g(f"v_mov_b32 v{AN+i}, 0")
    g(f"""v_and_b32 v{vT0}, 0x7ff, v1
    ds_write_b128 v{vT0}, {vr(AN,4)}
    s_waitcnt lgkmcnt(0)
k_i0:
    s_load_dword s{sTag}, {sp(pWS)}, {WS_EPOCH}
    s_mov_b32 s{S_X}, s{pX}
    s_mov_b32 s{S_X+1}, s{pX+1}
    s_mov_b32 s{S_X+2}, {N*256}
    s_mov_b32 s{S_X+3}, 0x20000
    v_mov_b32 v{vFour}, 4
    s_barrier""")
    stamp("b0")
    def srds():
        g(f"""s_mov_b32 s{S_XI}, s{pX}
        s_or_b32 s{S_XI+1}, s{pX+1}, 0x1000000
        s_movk_i32 s{S_XI+2}, {N}
        s_mov_b32 s{S_XI+3}, 0x20000
        s_add_u32 s{S_OUT}, s{pOUT}, s{sN}
        s_addc_u32 s{S_OUT+1}, s{pOUT+1}, 0
        s_mov_b32 s{S_OUT+2}, {NPB*256}
        s_mov_b32 s{S_OUT+3}, 0x20000
        v_mov_b32 v{vOut}, -1""")
    def tagcalc():
        g(f"""s_add_u32 s{sTag}, s{sTag}, 0x100
        s_and_b32 s{sTag}, s{sTag}, 0xff00""")
    g(f"""s_cmp_ge_u32 s{sW}, 8
    s_cbranch_scc1 k_aux0
    s_mul_i32 s{sT}, s2, 16000
    s_add_u32 s{S_CST}, s{pWS}, {WS_CELLS}
    s_addc_u32 s{S_CST+1}, s{pWS+1}, 0
    s_mov_b32 s{S_CST+2}, {CELLS_BYTES}
    s_mov_b32 s{S_CST+3}, 0x20000
    s_add_u32 s{S_CELL}, s{S_CST}, s{sT}
    s_addc_u32 s{S_CELL+1}, s{S_CST+1}, 0
    s_mov_b32 s{S_CELL+2}, 16000
    s_mov_b32 s{S_CELL+3}, 0x20000
    {isprod}
    s_cbranch_scc0 k_cons
    s_mov_b64 exec, {sp(sVal)}
    s_cbranch_execz k_ns
    global_load_dwordx4 {vr(Ss,4)}, v{vT1}, {sp(pSRC)} nt
    global_load_dwordx4 {vr(Ss+4,4)}, v{vQ}, {sp(pSRC)} nt
k_ns:
    s_mov_b64 exec, -1
    v_lshrrev_b32 v{vT0}, 3, v0
    v_mul_u32_u24 v{vQ}, {IST}, v{vT0}
    v_and_b32 v{vT1}, 0x70, v1
    v_add_u32 v{vQ}, v{vQ}, v{vT1}
    v_add_u32 v{vQ}, {IMG}, v{vQ}
    s_movk_i32 s{sT+4}, 16000
    v_mad_u32_u24 v{vT1}, v{vT0}, s{sT+4}, v{vT1}
    s_mov_b32 s{sT}, 85899346
    s_movk_i32 s{sT+1}, -50
    s_mov_b32 s{sT+3}, {IMG}
    v_mov_b32 v{TT}, {IST//4}
    s_waitcnt lgkmcnt(0)""")
    tagcalc()
    g(f"s_or_b32 s{sT+2}, s{sTag}, {PADW}")
    for i in range(4): g(f"v_mov_b32 v{AN+i}, s{sT+2}")
    for k in range(4): g(f"ds_write_b128 v{vQ}, {vr(AN,4)} offset:{64*k*IST}")
    g("s_waitcnt lgkmcnt(0)")
    lsync(SRTC, 32)
    stamp("ba")
    g(f"""s_mov_b64 exec, {sp(sVal)}
    s_cbranch_execz k_binned
    s_waitcnt vmcnt(2)""")
    stamp("edges")
    for i in range(8):
        g(f"""v_mul_hi_u32 v{B4+i}, v{Dd+i}, s{sT}
        v_lshlrev_b32 v{B4+i}, 2, v{B4+i}
        ds_add_rtn_u32 v{Rk+i}, v{B4+i}, v{vFour} offset:{PCNT}""")
    g("s_waitcnt vmcnt(0)")
    for i in range(8):
        g(f"""v_lshl_add_u32 v{Ss+i}, v{Ss+i}, 14, v{Dd+i}
        v_lshl_add_u32 v{Ss+i}, v{Ss+i}, 2, s{sTag}
        v_mad_i32_i24 v{Ss+i}, v{B4+i}, s{sT+1}, v{Ss+i}
        v_mad_u32_u24 v{Tm+i}, v{B4+i}, v{TT}, s{sT+3}""")
    g("s_waitcnt lgkmcnt(0)")
    g(f"""v_max3_u32 v{vT0}, v{Rk}, v{Rk+1}, v{Rk+2}
    v_max3_u32 v{vT0}, v{vT0}, v{Rk+3}, v{Rk+4}
    v_max3_u32 v{vT0}, v{vT0}, v{Rk+5}, v{Rk+6}
    v_max_u32 v{vT0}, v{vT0}, v{Rk+7}
    v_cmp_le_u32 vcc, {CAP*4}, v{vT0}""")
    for i in range(8): g(f"v_add_u32 v{Tm+i}, v{Rk+i}, v{Tm+i}")
    g("s_cbranch_vccnz k_slow")
    for i in range(8): g(f"ds_write_b32 v{Tm+i}, v{Ss+i}")
    g(f"""k_binned:
    s_mov_b64 exec, -1
    v_mov_b32 v{vT0}, {OVN}
    s_lshl_b32 s{sT}, s{sC}, 7
    s_add_u32 s{sT+1}, s{sT}, {64*16000}
    s_add_u32 s{sT+2}, s{sT}, {128*16000}
    s_add_u32 s{sT+3}, s{sT}, {192*16000}
    s_waitcnt lgkmcnt(0)""")
    stamp("binned")
    lsync(SRTC, 64)
    stamp("bb")
    def img_reads():
        for k in range(4): g(f"ds_read_b128 {vr(12+4*k,4)}, v{vQ} offset:{64*k*IST}")
    g(f"ds_read_b32 v{Tm}, v{vT0}")
    img_reads()
    g(f"""s_waitcnt lgkmcnt(4)
    v_cmp_ne_u32 vcc, 0, v{Tm}
    s_cbranch_vccnz k_flag
k_copy:""")
    for k in range(4):
        g(f"s_waitcnt lgkmcnt({3-k})\nbuffer_store_dwordx4 {vr(12+4*k,4)}, v{vT1}, {sq(S_CST)}, s{sT+k} offen{SC}")
    stamp("copied")
    if "drained" in sel:
        g("s_waitcnt vmcnt(0)")
        stamp("drained")
    g("s_branch k_sorter")
    g(f"""k_cons:
    s_waitcnt lgkmcnt(0)""")
    tagcalc()
    lsync(SRTC, 32)
    g(f"""s_cmp_lg_u32 s{sW}, 7
    s_cbranch_scc1 k_sorter
    v_mov_b32 v{vT0}, 0
    s_mov_b64 exec, 1
    global_atomic_add v{vT0}, v{vFour}, {sp(pDBG)}
    s_mov_b64 exec, -1
    s_branch k_sorter
k_aux0:""")
    w_loads(pWQ, WQ)
    srds()
    if o.xdelay: g(f"s_sleep {o.xdelay}")
    x_loads()
    npf = 0
    if o.pfa:
        l = g.lab("npa")
        g(f"{isprod}\ns_cbranch_scc1 {l}")
        for k in range(0, o.pfa, 8):
            prefetch(min(8, o.pfa - k), NC, 32 * k * 8192); npf += 1
        g(f"s_waitcnt vmcnt({npf}) lgkmcnt(0)\ns_branch k_aux1\n{l}:")
    g(f"s_waitcnt vmcnt(0) lgkmcnt(0)\nk_aux1:")
    tagcalc()
    if o.auxprio: g(f"s_setprio {o.auxprio}")
    stamp("prebc")
    lsync(AUXC, 32)
    stamp("bc")
    if not o.wvlast: w_loads(pWV, WV)
    g(f"""s_and_b32 s{sT+1}, s{sW}, 3
    s_lshl_b32 s{sT+1}, s{sT+1}, 12
    s_add_u32 s{sT+1}, s{sT+1}, {LIST}
    v_xor_b32 v{vT0}, v3, v2
    v_lshlrev_b32 v{vT0}, 4, v{vT0}
    v_lshl_add_u32 v{vT0}, v2, 8, v{vT0}
    v_add_u32 v{vT0}, s{sT+1}, v{vT0}""")
    for s_ in range(4):
        if s_: g(f"v_xor_b32 v{vT1}, {64*s_}, v{vT0}")
        g(f"ds_read_b128 {vr(12+4*s_,4)}, v{vT1 if s_ else vT0}")
    g(f"""s_bfe_u32 s{sT}, s{sW}, 0x10002
    s_lshl_b32 s{sT+1}, s{sT}, 3
    v_lshrrev_b32 v{vQ}, 2, v2
    v_bfe_u32 v{TT}, v0, 1, 1
    v_add_u32 v{TT}, s{sT+1}, v{TT}
    v_and_b32 v{TT+1}, 1, v3
    v_lshl_add_u32 v{TT+1}, v{TT+1}, 2, v{vQ}
    v_lshlrev_b32 v{TT+1}, 1, v{TT+1}
    v_xor_b32 v{TT}, v{TT}, v{TT+1}
    v_lshl_add_u32 v{vQ}, v3, 3, v{vQ}
    v_lshlrev_b32 v{vQ}, 8, v{vQ}
    v_lshl_add_u32 v{vQ}, v{TT}, 4, v{vQ}
    v_and_b32 v{TT}, 1, v0
    v_lshl_add_u32 v{vQ}, v{TT}, 3, v{vQ}
    v_add_u32 v{vQ}, {WQ}, v{vQ}
    v_xor_b32 v{TT}, 32, v{vQ}
    v_xor_b32 v{TT+1}, 64, v{vQ}
    v_xor_b32 v{TT+2}, 0x60, v{vQ}""")
    WB = [28, 44, 60, 76]
    def trq(T, dst):
        va = vQ if T == 0 else TT + T - 1
        for s_ in range(4):
            for h in range(2):
                g(f"ds_read_b64_tr_b16 {vr(dst+4*s_+2*h,2)}, v{va} offset:{s_*8192 + h*1024}")
    trq(0, WB[0]); trq(1, WB[1])
    g(f"""s_and_b32 s{sT+1}, s{sW}, 3
    s_lshl_b32 s{sT+2}, s{sT+1}, 4
    s_mul_i32 s{sT+1}, s{sT+1}, {16*272}
    s_lshl_b32 s{sT}, s{sT}, 7
    s_add_u32 s{sT}, s{sT}, s{sT+1}
    v_mul_u32_u24 v{vT0}, 272, v2
    v_and_b32 v{vT1}, 1, v3
    v_lshl_add_u32 v{vT0}, v{vT1}, 5, v{vT0}
    v_lshrrev_b32 v{vT1}, 1, v3
    v_lshl_add_u32 v{vT0}, v{vT1}, 4, v{vT0}
    v_add_u32 v{vT0}, s{sT}, v{vT0}
    v_add_u32 v{vT1}, s{sT+2}, v2
    v_cmp_gt_u32 {sp(sVal)}, {NPB}, v{vT1}
    v_mov_b32 v{TT+3}, 0
    s_waitcnt lgkmcnt(0)
    s_mov_b64 exec, 1
    ds_add_u32 v{TT+3}, v{vFour} offset:{AUXC}
    s_mov_b64 exec, -1""")
    trq(2, WB[2]); trq(3, WB[3])
    for jj in range(2):
        if jj == 1: g("s_waitcnt lgkmcnt(1)")
        for s_ in range(4):
            for T in range(2):
                d = 4 + 4 * T
                cc = "0" if s_ == 0 else vr(d, 4)
                g(f"v_mfma_f32_16x16x32_bf16 {vr(d,4)}, {vr(WB[2*jj+T]+4*s_,4)}, {vr(12+4*s_,4)}, {cc}")
        g(f"""s_nop 6
        v_cvt_pk_bf16_f32 v4, v4, v5
        v_cvt_pk_bf16_f32 v5, v6, v7
        v_cvt_pk_bf16_f32 v6, v8, v9
        v_cvt_pk_bf16_f32 v7, v10, v11
        s_nop 1
        v_permlane16_swap_b32 v4, v6
        v_permlane16_swap_b32 v5, v7
        s_mov_b64 exec, {sp(sVal)}
        ds_write_b128 v{vT0}, v[4:7] offset:{QT + jj*64}
        s_mov_b64 exec, -1""")
    for i in range(4): g(f"v_mov_b32 v{8+i}, {PADL}")
    g(f"""v_and_b32 v{vT0}, 0x1fff, v1
k_as2:
    ds_read_b32 v{TT+4}, v{TT+3} offset:{AUXC}
    s_waitcnt lgkmcnt(0)
    v_cmp_gt_u32 vcc, 64, v{TT+4}
    s_cbranch_vccnz k_as2
    ds_write_b128 v{vT0}, v[8:11] offset:{LIST}
    ds_write_b128 v{vT0}, v[8:11] offset:{LIST+8192}
    s_cmp_lg_u32 s{sW}, 8
    s_cbranch_scc1 k_as3
    ds_write_b128 v{vT0}, v[8:11] offset:{LIST+16384}
k_as3:""")
    def consts():
        g(f"""v_and_b32 v{vT0}, 3, v0
        v_lshl_add_u32 v{vLP}, v3, 2, v{vT0}
        v_lshlrev_b32 v{vLP}, 4, v{vLP}
        v_and_b32 v{vT1}, 12, v0
        v_add_u32 v{vFL}, v{vT1}, v{vLP}
        s_lshl_b32 s{sT}, s{sW}, 10
        s_add_u32 s{sT}, s{sT}, {IMG}
        v_bfe_u32 v{vRR}, v0, 3, 1
        v_mul_u32_u24 v{vRR}, 272, v{vRR}
        v_bfe_u32 v{vT1}, v0, 2, 1
        v_lshl_add_u32 v{vRR}, v{vT1}, 7, v{vRR}
        v_lshl_add_u32 v{vRR}, v{vT0}, 5, v{vRR}
        v_add_u32 v{vRR}, s{sT}, v{vRR}
        v_lshl_add_u32 v{vRW}, v{vT0}, 1, v{vRR}
        v_lshl_add_u32 v{vRW}, v3, 3, v{vRW}
        s_mov_b32 s{sM}, 0x000f000f
        s_mov_b32 s{sM+1}, 0x000f000f
        s_lshl_b64 {sp(sM+2)}, {sp(sM)}, 4
        s_lshl_b64 {sp(sM+4)}, {sp(sM)}, 8
        s_lshl_b64 {sp(sM+6)}, {sp(sM)}, 12
        s_mov_b32 s{sSc}, 0xbe0293ee
        s_movk_i32 s{s68}, 68
        s_mov_b32 s{sRound}, 0""")
    def zero_main():
        for i in range(16): g(f"v_mov_b32 v{A+i}, 0")
        for i in range(8): g(f"v_mov_b32 v{AC+i}, 0")
        for t in range(4): g(f"v_mov_b32 v{Ee+2*t+1}, v{vLP}")
    consts()
    zero_main()
    stamp("qdone")
    if o.wvlast: w_loads(pWV, WV)
    if o.wvw == 1: g("s_waitcnt vmcnt(0)")
    stamp("wvi")
    if o.pfc:
        g(f"""v_mov_b32 v{TT+3}, 0
k_pc:
        ds_read_b32 v{TT+4}, v{TT+3} offset:{POLC}
        s_waitcnt lgkmcnt(0)
        v_cmp_gt_u32 vcc, 32, v{TT+4}
        s_cbranch_vccnz k_pc""")
        prefetch(o.pfc, 0, 32 * o.pfa * 8192)
    g("s_branch k_b1")
    g("k_sorter:")
    srds()
    for i in range(4): g(f"v_mov_b32 v{8+i}, 0")
    g(f"""ds_write_b128 v1, v[8:11] offset:{AGG}
    v_cmp_gt_u32 vcc, {(50*272-8192)//16}, v0
    s_mov_b64 exec, vcc
    ds_write_b128 v1, v[8:11] offset:{AGG+8192}
    s_mov_b64 exec, -1""")
    consts()
    zero_main()
    pA, pB = sVal, sVal + 2
    for i in range(4): g(f"v_mov_b32 v{8+i}, -1")
    g(f"""s_mov_b64 {sp(pA)}, -1
    s_movk_i32 s{sT}, {16000-8192}
    v_cmp_gt_u32 {sp(pB)}, s{sT}, v1
    s_movk_i32 s{sT}, 8192
    s_mov_b32 s{sT+1}, {TAGMASK}
    s_mov_b32 s{sT+2}, {o.spin}
    s_mov_b32 s{sLim}, {N << 16}""")
    if o.gate >= 0:
        gm = sum(1 << (8 * int(x)) for x in str(o.gate))
        g(f"""s_mov_b32 exec_lo, {gm & 0xffffffff}
        s_mov_b32 exec_hi, {gm >> 32}
k_gate:
        buffer_load_dword v4, v1, {sq(S_CELL)}, {"s%d" % sT if o.gateb else "0"} offen{SC}
        s_sub_u32 s{sT+2}, s{sT+2}, 1
        s_cbranch_scc1 k_pto
        s_waitcnt vmcnt(0)
        v_xor_b32 v{vT0}, s{sTag}, v4
        v_and_b32 v{vT0}, s{sT+1}, v{vT0}
        v_cmp_ne_u32 vcc, 0, v{vT0}
        s_cbranch_vccnz k_gate""")
        stamp("gated")
    if o.psleep: g(f"s_branch k_poll\nk_polls:\ns_sleep {o.psleep}")
    g(f"""k_poll:
    s_mov_b64 exec, {sp(pA)}
    s_cbranch_execz k_p1
    buffer_load_dwordx4 v[4:7], v1, {sq(S_CELL)}, 0 offen{SC}
k_p1:
    s_mov_b64 exec, {sp(pB)}
    s_cbranch_execz k_p2
    buffer_load_dwordx4 v[8:11], v1, {sq(S_CELL)}, s{sT} offen{SC}
k_p2:
    s_mov_b64 exec, -1
    s_sub_u32 s{sT+2}, s{sT+2}, 1
    s_cbranch_scc1 k_pto
    s_waitcnt vmcnt(0)
    v_bitop3_b32 v{vT0}, v4, v5, s{sTag} bitop3:0x7e
    v_bitop3_b32 v{vT1}, v6, v7, s{sTag} bitop3:0x7e
    v_bitop3_b32 v{TT}, v8, v9, s{sTag} bitop3:0x7e
    v_bitop3_b32 v{TT+1}, v10, v11, s{sTag} bitop3:0x7e
    v_bitop3_b32 v{vT0}, v{vT0}, v{vT1}, s{sT+1} bitop3:0xa8
    v_bitop3_b32 v{TT}, v{TT}, v{TT+1}, s{sT+1} bitop3:0xa8
    v_cmp_ne_u32 {sp(pA)}, 0, v{vT0}
    v_cmp_ne_u32 vcc, 0, v{TT}
    s_and_b64 {sp(pB)}, {sp(pB)}, vcc
    s_or_b64 vcc, {sp(pA)}, {sp(pB)}
    s_cbranch_scc1 k_poll{"s" if o.psleep else ""}
k_polled:""")
    stamp("polled")
    if o.pfc:
        g(f"""v_mov_b32 v{vT0}, 0
        s_mov_b64 exec, 1
        ds_add_u32 v{vT0}, v{vFour} offset:{POLC}
        s_mov_b64 exec, -1""")
    for i in range(8): g(f"v_cmp_gt_u32 {sp(sVal+2*i)}, s{sLim}, v{4+i}")
    g(f"""v_and_b32 v{vT0}, 2, v4
    v_and_b32 v{vT1}, 2, v8
    v_cmp_ne_u32 vcc, 0, v{vT0}
    v_cmp_ne_u32 {sp(sFl)}, 0, v{vT1}
    s_and_b64 {sp(sFl)}, {sp(sFl)}, {sp(sVal+8)}
    s_or_b64 vcc, vcc, {sp(sFl)}
    s_cbranch_scc1 k_mark
k_round:""")
    Tn, Rn, On = 12, 20, 28
    for i in range(8):
        g(f"v_and_b32 v{Tn+i}, 0xfc, v{4+i}")
    for i in range(8):
        g(f"s_mov_b64 exec, {sp(sVal+2*i)}\nds_add_rtn_u32 v{Rn+i}, v{Tn+i}, v{vFour} offset:{CNT2}")
    g(f"""s_mov_b64 exec, -1
k_b1:
    v_and_b32 v{vT0}, 63, v0
    v_lshlrev_b32 v{vT0}, 2, v{vT0}
    v_and_b32 v{vLA}, 12, v0
    v_lshlrev_b32 v{vGA}, 2, v{vLA}
    v_add_u32 v{TT}, {IMG}, v1
    s_waitcnt lgkmcnt(0)
    s_barrier""")
    stamp("b1")
    c, inc = vT1, vQ
    g(f"""ds_read_b32 v{c}, v{vT0} offset:{CNT2}
    ds_read_b32 v{TT+1}, v{vLA} offset:{OVM}
    ds_write_b128 v{TT}, {vr(AC,4)}""")
    if o.pfb:
        l = g.lab("pb")
        g(f"s_cmp_lt_u32 s{sW}, 8\ns_cbranch_scc1 {l}\ns_cmp_lg_u32 s{sRound}, 0\ns_cbranch_scc1 {l}")
        prefetch(o.pfb, 0, 32 * o.pfa * 8192)
        g(f"{l}:")
    g(f"""s_waitcnt lgkmcnt(1)
    v_add_u32 v{c}, 12, v{c}
    v_and_b32 v{c}, -16, v{c}
    v_cmp_ne_u32 vcc, 0, v{TT+1}
    s_cbranch_vccnz k_slowmode
k_sm1:
    v_add_u32_dpp v{inc}, v{c}, v{c} row_shr:1 row_mask:0xf bank_mask:0xf bound_ctrl:0
    s_nop 1
    v_add_u32_dpp v{inc}, v{inc}, v{inc} row_shr:2 row_mask:0xf bank_mask:0xf bound_ctrl:0
    s_nop 1
    v_add_u32_dpp v{inc}, v{inc}, v{inc} row_shr:4 row_mask:0xf bank_mask:0xf bound_ctrl:0
    s_nop 1
    v_add_u32_dpp v{inc}, v{inc}, v{inc} row_shr:8 row_mask:0xf bank_mask:0xf bound_ctrl:0
    s_nop 1
    v_add_u32_dpp v{inc}, v{inc}, v{inc} row_bcast:15 row_mask:0xa bank_mask:0xf
    s_nop 1
    v_add_u32_dpp v{inc}, v{inc}, v{inc} row_bcast:31 row_mask:0xc bank_mask:0xf
    s_cmp_ge_u32 s{sW}, 8
    v_sub_u32 v{c}, v{inc}, v{c}
    v_readlane_b32 s{sG}, v{inc}, 63
    s_cbranch_scc1 k_nosc""")
    for i in range(8): g(f"ds_bpermute_b32 v{On+i}, v{Tn+i}, v{c}")
    for half in range(2):
        g("s_waitcnt lgkmcnt(4)")
        for i in range(4 * half, 4 * half + 4): g(f"v_add_u32 v{On+i}, v{On+i}, v{Rn+i}")
        for i in range(4 * half, 4 * half + 4):
            g(f"s_mov_b64 exec, {sp(sVal+2*i)}\nds_write_b32 v{On+i}, v{4+i} offset:{LIST}")
        g("s_mov_b64 exec, -1")
    prio_ev = [int(x) for x in o.prio.split(",")] if o.prio else []
    evs = sorted(set(list(range(1, DP - 1 if o.la else DP)) + prio_ev))
    evmask = sum(1 << e for e in evs)
    g(f"""k_nosc:
    s_add_u32 s{sG}, s{sG}, 63
    s_lshr_b32 s{sG}, s{sG}, 6
    s_add_u32 s{sT+1}, s{sG}, 15
    s_lshr_b32 s{sT+1}, s{sT+1}, 4
    s_lshl_b32 s{sT+2}, s{sT+1}, 4
    s_sub_u32 s{sT+2}, s{sT+2}, s{sG}
    s_add_u32 s{sT+2}, s{sT+2}, s{sW}
    s_mul_i32 s{sT}, s{sW}, s{sT+1}
    s_sub_u32 s{sT+3}, s{sT+2}, 16
    s_cselect_b32 s{sT+3}, 0, s{sT+3}
    s_cselect_b32 s{sT+2}, 0, 1
    s_sub_u32 s{sT}, s{sT}, s{sT+3}
    s_sub_u32 s{sRem}, s{sT+1}, s{sT+2}
    s_lshl_b32 s{sT}, s{sT}, 6
    s_add_u32 s{sT}, s{sT}, {LIST}
    v_add_u32 v{vLA}, s{sT}, v{vLA}
    v_add_u32 v{vGA}, s{sT}, v{vGA}
    v_subrev_u32 v{vT0}, 16, v{vGA}
    s_mov_b32 s{sEv}, {evmask}""")
    if prio_ev: g("s_setprio 3")
    g(f"s_waitcnt vmcnt({1 if o.pfc else 0}) lgkmcnt(0)\ns_barrier" if o.wvw == 2 else "s_waitcnt lgkmcnt(0)\ns_barrier")
    stamp("b2")
    def readE(off):
        for t in range(4): g(f"ds_read_u16 v{Ee+2*t}, v{vLA} offset:{off + 16*t + 2}")
    def readCN(p, off):
        g(f"ds_read_u8 v{CN[p]}, v{vGA} offset:{off}\nds_read_u8 v{CN[p]+1}, v{vGA} offset:{off+16}")
    def adv():
        g(f"v_add_u32 v{vLA}, {64*DP}, v{vLA}\nv_add_u32 v{vGA}, {64*DP}, v{vGA}")
    def loadX(p):
        for t in range(4):
            g(f"buffer_load_dwordx4 {vr(X[p]+4*t,4)}, {vr(Ee+2*t,2)}, {sq(S_XI)}, 0 idxen offen")
    def readQ(p):
        g(f"v_mad_u32_u24 v{vQ}, v{CN[p]}, s{s68}, v{vLP}")
        for t in range(4):
            g(f"s_mov_b64 exec, {sp(sM+2*t)}\nds_read_b128 {vr(A+4*t,4)}, v{vQ} offset:{QT}")
        g("s_mov_b64 exec, -1")
    flush_sites = []; ev_sites = []
    def pt(k):
        if o.prof: g(f"s_memtime s[{52+2*k}:{53+2*k}]")
        if o.tl == k + 1:
            g("s_waitcnt lgkmcnt(0)")
            for j in range(1, 7): g(f"s_mov_b64 s[{ST0+2*j}:{ST0+2*j+1}], s[{ST0+2*j+2}:{ST0+2*j+3}]")
            g(f"s_memtime s[{ST0+14}:{ST0+15}]")
    LA = o.la
    def agg(p, first=False):
        for t in range(4):
            lf, lb = g.lab("fl"), g.lab("fb")
            g(f"""v_mfma_f32_4x4x4_16b_bf16 {vr(AC,4)}, {vr(AN+2*t,2)}, {vr(X[p]+4*t,2)}, {vr(AC,4)}
            v_mfma_f32_4x4x4_16b_bf16 {vr(AC+4,4)}, {vr(AN+2*t,2)}, {vr(X[p]+4*t+2,2)}, {vr(AC+4,4)}
            s_bitcmp1_b32 s{sFl}, {4*t}
            s_cbranch_scc1 {lf}
            {lb}:""")
            flush_sites.append((lf, lb, CN[p], 4 * t))
    def logits(p):
        for t in range(4):
            cc = "0" if t == 0 else vr(AL, 4)
            g(f"v_mfma_f32_16x16x32_bf16 {vr(AL,4)}, {vr(A+4*t,4)}, {vr(X[p]+4*t,4)}, {cc}")
    def sigm(p):
        g(f"""v_mov_b32_dpp v{vT0}, v{AL} quad_perm:[0,0,0,0] row_mask:0xf bank_mask:0xf
        v_add_f32_dpp v{vT0}, v{AL+1}, v{vT0} quad_perm:[1,1,1,1] row_mask:0xf bank_mask:0xf
        v_add_f32_dpp v{vT0}, v{AL+2}, v{vT0} quad_perm:[2,2,2,2] row_mask:0xf bank_mask:0xf
        v_add_f32_dpp v{vT0}, v{AL+3}, v{vT0} quad_perm:[3,3,3,3] row_mask:0xf bank_mask:0xf
        v_mul_f32 v{vT0}, s{sSc}, v{vT0}
        v_exp_f32 v{vT0}, v{vT0}
        v_cmp_ne_u32 {sp(sFl)}, v{CN[p]}, v{CN[p]+1}
        v_add_f32 v{vT0}, 1.0, v{vT0}
        v_rcp_f32 v{vT0}, v{vT0}
        s_nop 0
        v_cvt_pk_bf16_f32 v{vT0}, v{vT0}, v{vT0}
        ds_write_b16 v{vRW}, v{vT0}
        ds_read_b128 {vr(AN,4)}, v{vRR}
        ds_read_b128 {vr(AN+4,4)}, v{vRR} offset:16""")
    def body_la(p):
        q = (p + 1) % DP; r = (p + DP - 1) % DP
        le, lr = g.lab("ev"), g.lab("er")
        ev_sites.append((le, lr))
        off = 64 * p
        readE(off)
        g(f"""s_bitcmp1_b32 s{sEv}, s{sRem}
        s_cbranch_scc1 {le}
        {lr}:
        s_waitcnt vmcnt(4) lgkmcnt(4)""")
        pt(1)
        logits(p)
        readQ(q)
        agg(r)
        ls = g.lab("sk")
        g(f"s_cmp_lt_u32 s{sRem}, 3\ns_cbranch_scc1 {ls}\ns_waitcnt lgkmcnt(4)")
        loadX(r)
        g(f"{ls}:")
        readCN(r, off)
        if p == DP - 1: adv()
        sigm(p)
        g(f"s_sub_u32 s{sRem}, s{sRem}, 1\ns_cmp_eq_u32 s{sRem}, 0\ns_cbranch_scc1 k_last{p}")
    def body(p):
        q = (p + 1) % DP
        le, lr = g.lab("ev"), g.lab("er")
        ev_sites.append((le, lr))
        readE(64 * p)
        pt(0)
        g(f"""s_bitcmp1_b32 s{sEv}, s{sRem}
        s_cbranch_scc1 {le}
        {lr}:
        s_waitcnt vmcnt({4*(DP-1)}) lgkmcnt({6 if o.prof else 4})""")
        pt(1)
        for t in range(4):
            cc = "0" if t == 0 else vr(AL, 4)
            if "l" not in o.abl: g(f"v_mfma_f32_16x16x32_bf16 {vr(AL,4)}, {vr(A+4*t,4)}, {vr(X[p]+4*t,4)}, {cc}")
        g(f"v_cmp_ne_u32 {sp(sFl)}, v{CN[p]}, v{CN[p]+1}")
        readQ(q)
        if "v" not in o.abl:
            g(f"""v_mov_b32_dpp v{vT0}, v{AL} quad_perm:[0,0,0,0] row_mask:0xf bank_mask:0xf
            v_add_f32_dpp v{vT0}, v{AL+1}, v{vT0} quad_perm:[1,1,1,1] row_mask:0xf bank_mask:0xf
            v_add_f32_dpp v{vT0}, v{AL+2}, v{vT0} quad_perm:[2,2,2,2] row_mask:0xf bank_mask:0xf
            v_add_f32_dpp v{vT0}, v{AL+3}, v{vT0} quad_perm:[3,3,3,3] row_mask:0xf bank_mask:0xf
            v_mul_f32 v{vT0}, s{sSc}, v{vT0}
            v_exp_f32 v{vT0}, v{vT0}
            s_nop 0
            v_add_f32 v{vT0}, 1.0, v{vT0}
            v_rcp_f32 v{vT0}, v{vT0}
            s_nop 0
            v_cvt_pk_bf16_f32 v{vT0}, v{vT0}, v{vT0}
            ds_write_b16 v{vRW}, v{vT0}
            ds_read_b128 {vr(AN,4)}, v{vRR}
            ds_read_b128 {vr(AN+4,4)}, v{vRR} offset:16""")
        pt(2)
        g("s_waitcnt lgkmcnt(0)" if o.prof else "s_waitcnt lgkmcnt(1)")
        pt(3)
        for t in range(4):
            lf, lb = g.lab("fl"), g.lab("fb")
            if t == 2: g("s_waitcnt lgkmcnt(0)")
            if "m" not in o.abl:
                g(f"""v_mfma_f32_4x4x4_16b_bf16 {vr(AC,4)}, {vr(AN+2*t,2)}, {vr(X[p]+4*t,2)}, {vr(AC,4)}
                v_mfma_f32_4x4x4_16b_bf16 {vr(AC+4,4)}, {vr(AN+2*t,2)}, {vr(X[p]+4*t+2,2)}, {vr(AC+4,4)}""")
            if "f" not in o.abl:
                g(f"s_bitcmp1_b32 s{sFl}, {4*t}\ns_cbranch_scc1 {lf}")
            else: g("s_nop 1")
            g(f"{lb}:")
            flush_sites.append((lf, lb, CN[p], 4 * t))
        ls = g.lab("sk")
        pt(4)
        g(f"s_cmp_le_u32 s{sRem}, {DP}\ns_cbranch_scc1 {ls}")
        loadX(p)
        g(f"{ls}:")
        pt(5)
        if o.prof:
            g("s_waitcnt lgkmcnt(0)")
            for k in range(5):
                g(f"s_sub_u32 s{sT}, s{52+2*(k+1)}, s{52+2*k}\ns_add_u32 s{ST0+2*k+2}, s{ST0+2*k+2}, s{sT}")
            g(f"s_add_u32 s{ST0+12}, s{ST0+12}, 1")
        g(f"s_sub_u32 s{sRem}, s{sRem}, 1\ns_cmp_eq_u32 s{sRem}, 0\ns_cbranch_scc1 k_exit{p}")
        readCN(p, 64 * p)
        if p == DP - 1: adv()
    g(f"""s_cmp_eq_u32 s{sRem}, 0
    s_cbranch_scc1 k_zero""")
    if LA:
        assert DP == 3
        for p in range(3):
            if p > 0: g(f"s_cmp_lt_u32 s{sRem}, {p+1}\ns_cbranch_scc1 k_pro{p}")
            readE(64 * p); readCN(p, 64 * p)
            if p == 0: g(f"ds_read_u8 v{vT1}, v{vT0}\ns_waitcnt lgkmcnt(3)")
            else: g("s_waitcnt lgkmcnt(2)")
            if p == 2: break
            loadX(p)
            if p == 0:
                g("s_waitcnt lgkmcnt(0)")
                readQ(0)
                g(f"""v_cmp_eq_u32 vcc, v{vT1}, v{CN[0]}
                s_and_b32 s{sFirst}, vcc_lo, 1
                s_cmp_eq_u32 s{sW}, 0
                s_cselect_b32 s{sFirst}, 0, s{sFirst}""")
        g("s_waitcnt vmcnt(4)")
        logits(0)
        loadX(2)
        g("s_branch k_pro3\nk_pro1:\ns_waitcnt vmcnt(0)\nk_pro2:\ns_waitcnt vmcnt(4) lgkmcnt(0)")
        logits(0)
        g("k_pro3:")
        readQ(1)
        g(f"v_add_u32 v{vLA}, {64*2}, v{vLA}\nv_add_u32 v{vGA}, {64*2}, v{vGA}")
        sigm(0)
        g(f"s_sub_u32 s{sRem}, s{sRem}, 1\ns_cmp_eq_u32 s{sRem}, 0\ns_cbranch_scc1 k_last0\ns_branch k_loop1")
        g("k_loop:")
        for p in range(DP):
            g(f"k_loop{p}:")
            body_la(p)
        g("s_branch k_loop")
        for p in range(DP):
            g(f"k_last{p}:\ns_waitcnt lgkmcnt(0)")
            agg(p)
            g(f"v_readlane_b32 s{sN}, v{CN[p]}, 12")
            if p < DP - 1: g("s_branch k_exit")
    else:
        for p in range(DP):
            if p > 0: g(f"s_cmp_lt_u32 s{sRem}, {p+1}\ns_cbranch_scc1 k_pro")
            readE(64 * p); readCN(p, 64 * p)
            if p == 0: g(f"ds_read_u8 v{vT0}, v{vT0}\ns_waitcnt lgkmcnt(3)")
            else: g("s_waitcnt lgkmcnt(2)")
            loadX(p)
            if o.rr and p == 0: g("s_setprio 0")
        g("k_pro:")
        if o.rr: g("s_setprio 3")
        adv()
        g("s_waitcnt lgkmcnt(0)")
        readQ(0)
        g(f"""v_cmp_eq_u32 vcc, v{vT0}, v{CN[0]}
        s_and_b32 s{sFirst}, vcc_lo, 1
        s_cmp_eq_u32 s{sW}, 0
        s_cselect_b32 s{sFirst}, 0, s{sFirst}
        s_call_b64 {sp(sRet)}, k_prep""")
        g("k_loop:")
        for p in range(DP): body(p)
        g("s_branch k_loop")
        for p in range(DP):
            g(f"""k_exit{p}:
            v_readlane_b32 s{sN}, v{CN[p]}, 12""")
            if p < DP - 1: g("s_branch k_exit")
    g(f"""k_exit:
    {"s_branch k_done" if "f" in o.abl else ""}
    s_bitcmp1_b32 s{sFl}, 12
    s_cbranch_scc1 k_done
    s_cmp_ge_u32 s{sN}, {4*NPB}
    s_cbranch_scc1 k_done
k_tw:
    v_cmp_eq_u32 vcc, 0, v{Ee+2}
    s_cbranch_vccnz k_tw2""")
    for t in range(4):
        g(f"""s_mov_b64 exec, {sp(sM+2*t)}
        v_add_f32 v{AC+2*t}, v{AC+2*t}, v{Ee}
        v_add_f32 v{AC+2*t+1}, v{AC+2*t+1}, v{Ee+1}""")
    g(f"""s_mov_b64 exec, -1
    s_call_b64 {sp(sRet)}, k_flush
k_done:""")
    if prio_ev: g("s_setprio 0")
    stamp("main")
    g(f"""s_cmp_lg_u32 s2, {NB-1}
    s_cbranch_scc1 k_ne1
    v_mov_b32 v{vLA}, 0
    global_load_dword v{vGA}, v{vLA}, {sp(pDBG)}{SC}
k_ne1:""")
    BA = 44
    g(f"""v_xor_b32 v{vT1}, 32, v{vWv}
    s_cmp_lg_u32 s{sRound}, 0
    s_waitcnt lgkmcnt(0)
    s_barrier
    s_cbranch_scc1 k_extra
k_epi:""")
    stamp("b3")
    D0, D1, BM = 76, 80, 84
    for s_ in range(4):
        if s_ == 3:
            for T in range(2):
                for h in range(2):
                    g(f"ds_read_b64_tr_b16 {vr(VFQ[(3,T)]+2*h,2)}, v{vWv if T == 0 else vT1} offset:{3*8192 + h*1024}")
        g(f"ds_read_b128 {vr(BA+4*s_,4)}, v{vAg} offset:{AGG+s_*64}")
    for s_ in range(4):
        g(f"s_waitcnt lgkmcnt({[7, 6, 5, 0][s_]})")
        for T in range(2):
            d = D0 if T == 0 else D1
            cc = "0" if s_ == 0 else vr(d, 4)
            g(f"v_mfma_f32_16x16x32_bf16 {vr(d,4)}, {vr(VFQ[(s_,T)],4)}, {vr(BA+4*s_,4)}, {cc}")
    g(f"""s_nop 6
    v_cvt_pk_bf16_f32 v20, v{D0}, v{D0+1}
    v_cvt_pk_bf16_f32 v21, v{D0+2}, v{D0+3}
    v_cvt_pk_bf16_f32 v22, v{D1}, v{D1+1}
    v_cvt_pk_bf16_f32 v23, v{D1+2}, v{D1+3}
    s_nop 1
    v_permlane16_swap_b32 v20, v22
    v_permlane16_swap_b32 v21, v23
    buffer_store_dwordx4 v[20:23], v{vOut}, {sq(S_OUT)}, 0 offen{o.outflag}""")
    stamp("stored")
    g(f"""s_cmp_lg_u32 s2, {NB-1}
    s_cbranch_scc1 k_fin
    s_cmp_lg_u32 s{sW}, 15
    s_cbranch_scc1 k_fin
    s_mov_b32 s{sT+2}, {o.spin}
    s_waitcnt vmcnt(1)
k_ep:
    v_readfirstlane_b32 s{sT}, v{vGA}
    s_cmp_ge_u32 s{sT}, {4*(NB-NC)}
    s_cbranch_scc1 k_ep2
    s_sub_u32 s{sT+2}, s{sT+2}, 1
    s_cbranch_scc1 k_ep2
    global_load_dword v{vGA}, v{vLA}, {sp(pDBG)}{SC}
    s_waitcnt vmcnt(0)
    s_branch k_ep
k_ep2:
    v_mov_b32 v{vGA}, s{sTag}
    s_mov_b64 exec, 1
    global_store_dword v{vLA}, v{vGA}, {sp(pWS)} offset:{WS_EPOCH}
    s_mov_b64 exec, -1
k_fin:""")
    if o.span:
        g(f"""s_cmp_lg_u32 s{sW}, {o.stw}
        s_cbranch_scc1 k_end
        s_waitcnt lgkmcnt(0)
        s_sub_u32 s54, 0, s{ST0}
        v_mov_b32 v1, 0
        v_mov_b32 v2, s54
        v_mov_b32 v3, s{ST0+2}
        v_mov_b32 v4, 1
        s_mov_b64 exec, 1
        global_atomic_umax v1, v2, {sp(pDBG)} offset:64
        global_atomic_umax v1, v3, {sp(pDBG)} offset:68
        s_waitcnt vmcnt(0)
        global_atomic_add v1, v4, {sp(pDBG)} offset:128
        s_cmp_lg_u32 s2, {o.ampwg}
        s_cbranch_scc1 k_end
        s_mov_b32 s62, 100000
k_sp1:
        global_load_dword v2, v1, {sp(pDBG)} offset:128 sc1
        s_waitcnt vmcnt(0)
        v_readfirstlane_b32 s60, v2
        s_sub_u32 s62, s62, 1
        s_cbranch_scc1 k_end
        s_cmp_lt_u32 s60, {NB}
        s_cbranch_scc1 k_sp1
        global_load_dwordx2 v[2:3], v1, {sp(pDBG)} offset:64 sc1
        s_memrealtime s[60:61]
        s_waitcnt vmcnt(0) lgkmcnt(0)
        v_readfirstlane_b32 s62, v2
        v_readfirstlane_b32 s63, v3
        s_add_u32 s62, s62, s63
        s_mul_i32 s62, s62, {o.span - 1}
        s_min_u32 s62, s62, 100000
k_sp2:
        s_memrealtime s[64:65]
        s_waitcnt lgkmcnt(0)
        s_sub_u32 s63, s64, s60
        s_cmp_lt_u32 s63, s62
        s_cbranch_scc1 k_sp2
        s_endpgm""")
    if o.amp:
        g(f"""s_cmp_lg_u32 s2, {o.ampwg}
        s_cbranch_scc1 k_end
        s_cmp_lg_u32 s{sW}, {o.stw}
        s_cbranch_scc1 k_end
        s_memrealtime s[60:61]
        s_waitcnt lgkmcnt(0)
        s_sub_u32 s62, s{ST0+2}, s{ST0}
        s_mul_i32 s62, s62, {o.amp}
        s_min_u32 s62, s62, 100000
k_amp:
        s_memrealtime s[64:65]
        s_waitcnt lgkmcnt(0)
        s_sub_u32 s63, s64, s60
        s_cmp_lt_u32 s63, s62
        s_cbranch_scc1 k_amp
        s_endpgm""")
    if o.stamps:
        g("s_waitcnt vmcnt(0)")
        stamp("end")
        g("s_waitcnt lgkmcnt(0)")
        l = g.lab("st")
        g(f"""v_cmp_eq_u32 vcc, {o.stw*64}, v0
        s_and_saveexec_b64 s[52:53], vcc
        s_cbranch_execz {l}
        s_add_u32 s54, s{pWS}, {WS_STAMP}
        s_addc_u32 s55, s{pWS+1}, 0
        s_mul_i32 s56, s2, 64
        v_mov_b32 v1, s56""")
        for i in range(8):
            g(f"v_mov_b32 v2, s{ST0+2*i}\nv_mov_b32 v3, s{ST0+2*i+1}\nglobal_store_dwordx2 v1, v[2:3], s[54:55] offset:{8*i}\ns_nop 1")
        g(f"s_waitcnt vmcnt(0)\n{l}:")
    g("k_end:\ns_endpgm")
    def reduce_scatter():
        for k in range(4):
            g(f"v_add_f32_dpp v{TT+k}, v{AC+k}, v{AC+k} row_ror:8 row_mask:0xf bank_mask:0x3")
        for k in range(4):
            g(f"v_add_f32_dpp v{TT+k}, v{AC+4+k}, v{AC+4+k} row_ror:8 row_mask:0xf bank_mask:0xc")
        g(f"v_add_u32 v{vT1}, s{sN}, v{vFL}")
        for k in range(2):
            g(f"v_add_f32_dpp v{TT+4+k}, v{TT+k}, v{TT+k} row_shl:4 row_mask:0xf bank_mask:0x5")
        for k in range(2):
            g(f"v_add_f32_dpp v{TT+4+k}, v{TT+2+k}, v{TT+2+k} row_shr:4 row_mask:0xf bank_mask:0xa")
    for lf, lb, cn, lane in flush_sites:
        if o.inl:
            ls = g.lab("fs")
            g(f"""{lf}:
            v_readlane_b32 s{sN}, v{cn}, {lane}
            s_or_b32 s{sT}, s{sRound}, s{sFirst}
            s_cbranch_scc1 {ls}
            s_mulk_i32 s{sN}, 68""")
            reduce_scatter()
            for k in range(4): g(f"v_mov_b32 v{AC+k}, 0")
            g(f"v_cvt_pk_bf16_f32 v{TT+4}, v{TT+4}, v{TT+5}")
            for k in range(4, 8): g(f"v_mov_b32 v{AC+k}, 0")
            g(f"ds_write_b32 v{vT1}, v{TT+4} offset:{AGG}")
            g(f"""s_branch {lb}
            {ls}:
            s_call_b64 {sp(sRet)}, k_flush
            s_branch {lb}""")
        else:
            g(f"""{lf}:
            v_readlane_b32 s{sN}, v{cn}, {lane}
            s_call_b64 {sp(sRet)}, k_flush
            s_branch {lb}""")
    g(f"k_flush:\ns_nop 0\ns_mulk_i32 s{sN}, 68")
    reduce_scatter()
    g(f"""s_or_b32 s{sT}, s{sRound}, s{sFirst}
    s_cbranch_scc1 k_flush2
    v_cvt_pk_bf16_f32 v{TT+4}, v{TT+4}, v{TT+5}
    ds_write_b32 v{vT1}, v{TT+4} offset:{AGG}
k_flush4:""")
    for k in range(8): g(f"v_mov_b32 v{AC+k}, 0")
    g(f"""s_setpc_b64 {sp(sRet)}
k_flush2:
    s_cmp_lg_u32 s{sFirst}, 0
    s_cbranch_scc1 k_flush5
    v_lshlrev_b32 v{vT1}, 1, v{vT1}
    v_add_u32 v{vT1}, {AGF}, v{vT1}
    ds_read_b64 {vr(TT,2)}, v{vT1}
    s_waitcnt lgkmcnt(0)
    v_add_f32 v{TT+4}, v{TT+4}, v{TT}
    v_add_f32 v{TT+5}, v{TT+5}, v{TT+1}
    ds_write_b64 v{vT1}, {vr(TT+4,2)}
    s_branch k_flush4
k_flush5:
    s_lshl_b32 s{sT}, s{sW}, 9
    s_add_u32 s{sT}, s{sT}, {EXTRA}
    v_lshl_add_u32 v{vT1}, v{vFL}, 1, s{sT}
    s_lshl_b32 s{sT}, s{sW}, 2
    v_mov_b32 v{TT}, s{sT}
    ds_write_b64 v{vT1}, {vr(TT+4,2)}
    ds_write_b32 v{TT}, v{vFour} offset:{EXF}
    s_mov_b32 s{sFirst}, 0
    s_branch k_flush4""")
    for le, lr in ev_sites:
        g(f"{le}:\ns_call_b64 {sp(sRet)}, k_event\ns_branch {lr}")
    g("k_event:")
    for i, e in enumerate(sorted(prio_ev, reverse=True)):
        l = g.lab("pe")
        g(f"s_cmp_lg_u32 s{sRem}, {e}\ns_cbranch_scc1 {l}\ns_setprio {2-i}\n{l}:")
    for r in range(DP - 2 if o.la else DP - 1, 1, -1):
        l = g.lab("we")
        g(f"s_cmp_lg_u32 s{sRem}, {r}\ns_cbranch_scc1 {l}\ns_waitcnt vmcnt({4*(r-1)})\n{l}:")
    g(f"""s_cmp_lg_u32 s{sRem}, 1
    s_cbranch_scc1 k_ev1
k_ev2:
    s_lshl_b32 s{sT}, s{sW}, 2
    v_mov_b32 v{vT0}, s{sT}
    s_lshl_b32 s{sT}, s{sW}, 9
    s_add_u32 s{sT}, s{sT}, {EXTRA+512}
    v_lshl_add_u32 v{vT1}, v{vFL}, 1, s{sT}
    ds_read_b32 v{Ee+2}, v{vT0} offset:{EXF+4}
    ds_read_b64 {vr(Ee,2)}, v{vT1}
    s_waitcnt vmcnt(0) lgkmcnt(2)
k_ev1:
    s_setpc_b64 {sp(sRet)}
k_tw2:
    s_call_b64 {sp(sRet)}, k_ev2
    s_waitcnt lgkmcnt(0)
    s_branch k_tw
k_zero:
    s_call_b64 {sp(sRet)}, k_prep
    s_branch k_done
k_prep:
    s_lshr_b32 s{sT}, s{sW}, 2
    s_lshl_b32 s{sT+1}, s{sT}, 2
    v_lshrrev_b32 v{vWv}, 2, v2
    v_bfe_u32 v{TT}, v0, 1, 1
    v_add_u32 v{TT}, s{sT+1}, v{TT}
    v_and_b32 v{TT+1}, 1, v3
    v_lshl_add_u32 v{TT+2}, v{TT+1}, 2, v{vWv}
    v_lshlrev_b32 v{TT+2}, 1, v{TT+2}
    v_xor_b32 v{TT}, v{TT}, v{TT+2}
    v_lshl_add_u32 v{vWv}, v3, 3, v{vWv}
    v_lshlrev_b32 v{vWv}, 8, v{vWv}
    v_lshl_add_u32 v{vWv}, v{TT}, 4, v{vWv}
    v_and_b32 v{TT}, 1, v0
    v_lshl_add_u32 v{vWv}, v{TT}, 3, v{vWv}
    v_add_u32 v{vWv}, {WV}, v{vWv}
    v_xor_b32 v{TT}, 32, v{vWv}""")
    for s_ in range(3):
        for T in range(2):
            for h in range(2):
                g(f"ds_read_b64_tr_b16 {vr(VFQ[(s_,T)]+2*h,2)}, v{vWv if T == 0 else TT} offset:{s_*8192 + h*1024}")
    g(f"""s_and_b32 s{sT+2}, s{sW}, 3
    s_mul_i32 s{sT+1}, s{sT+2}, {16*272}
    v_mul_u32_u24 v{vAg}, 272, v2
    v_lshl_add_u32 v{vAg}, v3, 4, v{vAg}
    v_add_u32 v{vAg}, s{sT+1}, v{vAg}
    s_lshl_b32 s{sT+2}, s{sT+2}, 12
    s_lshl_b32 s{sT}, s{sT}, 6
    s_add_u32 s{sT}, s{sT}, s{sT+2}
    v_lshlrev_b32 v{vOut}, 8, v2
    v_lshl_add_u32 v{vOut}, v{TT+1}, 5, v{vOut}
    v_lshrrev_b32 v{TT+2}, 1, v3
    v_lshl_add_u32 v{vOut}, v{TT+2}, 4, v{vOut}
    v_add_u32 v{vOut}, s{sT}, v{vOut}
    s_waitcnt lgkmcnt(0)
    s_setpc_b64 {sp(sRet)}""")
    g(f"k_pto:\ns_mov_b64 exec, -1\ns_waitcnt vmcnt(0)\ns_branch k_polled")
    S_OV = 60
    def build_ovf(d):
        g(f"""s_add_u32 s{d}, s{pWS}, {WS_OVF}
        s_addc_u32 s{d+1}, s{pWS+1}, 0
        s_mov_b32 s{d+2}, {(WS_OVFCNT - WS_OVF) + 4096}
        s_mov_b32 s{d+3}, 0x20000""")
    g("k_slow:")
    build_ovf(S_OV)
    g(f"""s_mov_b32 s{sG}, 0xff00
    v_mov_b32 v{vT0}, {OVN}""")
    for i in range(8):
        l = g.lab("ov")
        g(f"""s_mov_b64 exec, {sp(sVal)}
        v_cmp_gt_u32 vcc, {CAP*4}, v{Rk+i}
        s_and_b64 exec, {sp(sVal)}, vcc
        ds_write_b32 v{Tm+i}, v{Ss+i}
        s_andn2_b64 exec, {sp(sVal)}, vcc
        s_cbranch_execz {l}
        ds_add_rtn_u32 v{TT+1}, v{vT0}, v{vFour}
        v_lshlrev_b32 v{TT}, 6, v{B4+i}
        v_bfi_b32 v{TT}, s{sG}, v{TT}, v{Ss+i}
        s_waitcnt lgkmcnt(0)
        buffer_store_dword v{TT}, v{TT+1}, {sq(S_OV)}, s{sCO} offen{SC}
        {l}:""")
    g(f"""s_mov_b64 exec, -1
    s_waitcnt vmcnt(0)
    s_branch k_binned""")
    g(f"""k_flag:
    s_waitcnt lgkmcnt(0)""")
    lsync(SRTC, 96)
    build_ovf(S_OV)
    g(f"""v_cmp_gt_u32 vcc, {NB}, v0
    s_mov_b64 exec, vcc
    v_lshlrev_b32 v{TT}, 2, v0
    ds_read_b32 v{TT+1}, v{TT} offset:{PCNT}
    v_mul_u32_u24 v{TT}, {IST}, v0
    v_add_u32 v{TT}, {IMG}, v{TT}
    v_mov_b32 v{TT+2}, 2
    s_waitcnt lgkmcnt(0)
    v_cmp_lt_u32 vcc, {CAP*4}, v{TT+1}
    s_and_b64 exec, exec, vcc
    ds_or_b32 v{TT}, v{TT+2}
    s_mov_b64 exec, -1
    s_lshl_b32 s{sT+4}, s{sC}, 2
    s_add_u32 s{sT+4}, s{sT+4}, {WS_OVFCNT - WS_OVF}
    v_mov_b32 v{TT}, 0
    buffer_store_dword v{Tm}, v{TT}, {sq(S_OV)}, s{sT+4} offen{SC}
    s_waitcnt vmcnt(0) lgkmcnt(0)""")
    lsync(SRTC, 128)
    img_reads()
    g("s_branch k_copy")
    g("k_mark:")
    for h in range(2):
        e = 4 + 4 * h
        g(f"""v_and_b32 v{vT0}, 2, v{e}
        v_cmp_ne_u32 vcc, 0, v{vT0}
        s_and_b64 exec, vcc, {sp(sVal+8*h)}
        v_and_b32 v{e}, -3, v{e}
        v_lshrrev_b32 v{vT0}, 3, v0
        v_add_u32 v{vT0}, {64*h}, v{vT0}
        v_lshrrev_b32 v{vT1}, 5, v{vT0}
        v_lshlrev_b32 v{vT1}, 2, v{vT1}
        v_and_b32 v{vT0}, 31, v{vT0}
        v_lshlrev_b32 v{vT0}, v{vT0}, 1
        ds_or_b32 v{vT1}, v{vT0} offset:{OVM}
        s_mov_b64 exec, -1""")
    g("s_branch k_round")
    sMap = 52
    g(f"""k_slowmode:
    s_cmp_lg_u32 s{sRound}, 0
    s_cbranch_scc1 k_sm1
    s_mov_b32 s{sRound}, 1
    v_add_u32 v{TT}, {AGF}, v1
    ds_write_b128 v{TT}, {vr(AC,4)}
    ds_write_b128 v{TT}, {vr(AC,4)} offset:16384
    s_branch k_sm1
k_extra:
    v_mov_b32 v{vT0}, 0
    ds_read_b128 {vr(BM,4)}, v{vT0} offset:{OVM}
    s_waitcnt lgkmcnt(0)
    v_readfirstlane_b32 s{sMap}, v{BM}
    v_readfirstlane_b32 s{sMap+1}, v{BM+1}
    v_readfirstlane_b32 s{sMap+2}, v{BM+2}
    v_readfirstlane_b32 s{sMap+3}, v{BM+3}
    s_barrier
    s_or_b64 {sp(sMap+4)}, {sp(sMap)}, {sp(sMap+2)}
    s_cbranch_scc1 k_x0
    v_lshrrev_b32 v{TT}, 4, v0
    v_and_b32 v{TT+1}, 0xf0, v1
    v_mul_u32_u24 v{TT}, 272, v{TT}
    v_add_u32 v{TT}, v{TT}, v{TT+1}
    v_lshlrev_b32 v{TT+1}, 1, v{TT}
    v_add_u32 v{TT+1}, {AGF}, v{TT+1}
    v_cmp_gt_u32 vcc, {NPB*16}, v0
    s_mov_b64 exec, vcc
    ds_read_b128 v[44:47], v{TT+1}
    ds_read_b128 v[48:51], v{TT+1} offset:16
    s_waitcnt lgkmcnt(0)
    v_cvt_pk_bf16_f32 v44, v44, v45
    v_cvt_pk_bf16_f32 v45, v46, v47
    v_cvt_pk_bf16_f32 v46, v48, v49
    v_cvt_pk_bf16_f32 v47, v50, v51
    ds_write_b128 v{TT}, v[44:47] offset:{AGG}
    s_mov_b64 exec, -1
    s_waitcnt lgkmcnt(0)
    s_barrier
    s_branch k_epi
k_x0:
    s_cmp_lg_u64 {sp(sMap)}, 0
    s_cbranch_scc1 k_x1
    s_ff1_i32_b64 s{sT}, {sp(sMap+2)}
    s_bitset0_b64 {sp(sMap+2)}, s{sT}
    s_add_u32 s{sT}, s{sT}, 64
    s_branch k_x2
k_x1:
    s_ff1_i32_b64 s{sT}, {sp(sMap)}
    s_bitset0_b64 {sp(sMap)}, s{sT}
k_x2:""")
    build_ovf(S_CST)
    g(f"""s_lshl_b32 s{sG}, s{sT}, 2
    s_add_u32 s{sG}, s{sG}, {WS_OVFCNT - WS_OVF}
    v_mov_b32 v{vT0}, 0
    buffer_load_dword v{vT1}, v{vT0}, {sq(S_CST)}, s{sG} offen{SC}
    s_mul_i32 s{sG}, s{sT}, {CE*4}
    buffer_load_dwordx4 v[4:7], v1, {sq(S_CST)}, s{sG} offen{SC}
    s_add_u32 s{sG}, s{sG}, 8192
    buffer_load_dwordx4 v[8:11], v1, {sq(S_CST)}, s{sG} offen{SC}""")
    for i in range(4): g(f"v_mov_b32 v{12+i}, {PADL}")
    g(f"""ds_write_b128 v1, v[12:15] offset:{LIST}
    s_cmp_lg_u32 s{sW}, 0
    s_cbranch_scc1 k_x3
    ds_write_b128 v1, v[12:15] offset:{LIST+16384}
    v_lshrrev_b32 v{TT}, 2, v1
    ds_write_b32 v{TT}, v{vT0} offset:{CNT2}
    v_and_b32 v{TT}, 0x7c, v{TT}
    ds_write_b32 v{TT}, v{vT0} offset:{EXF}
    v_mov_b32 v16, s{sMap}
    v_mov_b32 v17, s{sMap+1}
    v_mov_b32 v18, s{sMap+2}
    v_mov_b32 v19, s{sMap+3}
    ds_write_b128 v{vT0}, v[16:19] offset:{OVM}
k_x3:""")
    zero_main()
    g("s_waitcnt vmcnt(0)")
    for i in range(8):
        g(f"""v_bfe_u32 v{TT}, v{4+i}, 8, 8
        v_cmp_eq_u32 vcc, s2, v{TT}
        v_add_u32 v{TT+1}, {(i&3)*4 + (i>>2)*8192}, v1
        v_cmp_lt_u32 {sp(sVal+2*i)}, v{TT+1}, v{vT1}
        s_and_b64 {sp(sVal+2*i)}, {sp(sVal+2*i)}, vcc""")
    g(f"""s_waitcnt lgkmcnt(0)
    s_barrier
    s_cmp_lt_u32 s{sW}, 8
    s_cbranch_scc1 k_round
    s_branch k_b1""")
    return NV

def main():
    ap = argparse.ArgumentParser()
    ap.add_argument("-o", default="cdna_kernels/" + KN + ".s")
    ap.add_argument("--stamps", default="")
    ap.add_argument("--cyc", action="store_true")
    ap.add_argument("--stw", type=int, default=0)
    ap.add_argument("--pfa", type=int, default=0)
    ap.add_argument("--pfb", type=int, default=0)
    ap.add_argument("--depth", type=int, default=2)
    ap.add_argument("--prio", default="5,3,1")
    ap.add_argument("--gate", type=int, default=4)
    ap.add_argument("--abl", default="")
    ap.add_argument("--span", type=int, default=0)
    ap.add_argument("--xdelay", type=int, default=0)
    ap.add_argument("--pfc", type=int, default=0)
    ap.add_argument("--xnt", type=int, default=0)
    ap.add_argument("--dstfirst", type=int, default=1)
    ap.add_argument("--pset", default="0123")
    ap.add_argument("--wtouch", type=int, default=0)
    ap.add_argument("--wvlast", type=int, default=1)
    ap.add_argument("--wvw", type=int, default=2)
    ap.add_argument("--auxprio", type=int, default=0)
    ap.add_argument("--psleep", type=int, default=0)
    ap.add_argument("--gateb", type=int, default=1)
    ap.add_argument("--inl", type=int, default=1)
    ap.add_argument("--tl", type=int, default=0)
    ap.add_argument("--rr", type=int, default=0)
    ap.add_argument("--prof", type=int, default=0)
    ap.add_argument("--la", type=int, default=0)
    ap.add_argument("--la1", type=int, default=2)
    ap.add_argument("--lock", type=int, default=0)
    ap.add_argument("--amp", type=int, default=0)
    ap.add_argument("--ampwg", type=int, default=3)
    ap.add_argument("--outflag", default="nt")
    ap.add_argument("--spin", type=int, default=200000)
    o = ap.parse_args()
    if o.outflag: o.outflag = " " + o.outflag
    g = G()
    nv = gen(g, o)
    head = f"""; featgraph: fused kernel. producers bucket edges by dst into tagged cells (d_ws), every workgroup then
; @launch grid=({NB},1,1) block=(1024,1,1) lds={LDS}
.amdgcn_target "amdgcn-amd-amdhsa--gfx950"
.text
"""
    acc = (nv + 3) // 4 * 4
    tail = f""".section .rodata,"a"
.p2align 6
.amdhsa_kernel {KN}_kernel
  .amdhsa_next_free_vgpr {nv}
  .amdhsa_next_free_sgpr 102
  .amdhsa_accum_offset {acc}
  .amdhsa_group_segment_fixed_size 0
  .amdhsa_kernarg_size 64
  .amdhsa_user_sgpr_count 2
  .amdhsa_user_sgpr_kernarg_segment_ptr 1
  .amdhsa_system_sgpr_workgroup_id_x 1
.end_amdhsa_kernel
"""
    open(o.o, "w").write(head + g.text() + tail)
main()
```
